```python
import torch

def _softmax(x, axis=-1):
    return torch.softmax(x, dim=axis)
def _gelu(x):
    return torch.nn.functional.gelu(x, approximate="tanh")
def _silu(x):
    return torch.nn.functional.silu(x)
def _sigmoid(x):
    return torch.sigmoid(x)
def _layernorm(x, axis=-1, eps=1e-5):
    m = x.mean(dim=axis, keepdim=True)
    v = x.var(dim=axis, keepdim=True, unbiased=False)
    return (x - m) / torch.sqrt(v + eps)
def _scatter_add(tgt, idx, src, axis=0):
    return tgt.clone().index_add_(axis, idx, src)
def _segment_sum(src, seg, n):
    out = torch.zeros((n,) + src.shape[1:], dtype=src.dtype)
    return out.index_add_(0, seg, src)
def _pad(x, pw):
    flat = tuple(v for pair in reversed(pw) for v in pair)
    return torch.nn.functional.pad(x, flat)

kernel_name = 'concat_heads__sliding_block_cached__sliding_block_cached__decode'

def setup_inputs():

    _w = (lambda a: (lambda t: t.to(torch.bfloat16) if t.is_floating_point() else t)(torch.as_tensor(a)))
    def _A_setup():
        B, Sq, D = 2, 1, 512
        Hq, Hkv, Sk, Dh = 32, 8, 8192, 128
        assert Hq % Hkv == 0, (Hq, Hkv)
        return {
            "x": _w((lambda *s: torch.randn(*s, dtype=torch.bfloat16) * 0.8)(B, Sq, D)),
            "k_cache": _w((lambda *s: torch.randn(*s, dtype=torch.bfloat16) * 0.8)(B, Hkv, Sk, Dh)),
            "v_cache": _w((lambda *s: torch.randn(*s, dtype=torch.bfloat16) * 0.05)(B, Hkv, Sk, Dh)),
            "wq": _w((lambda *s: torch.randn(*s, dtype=torch.bfloat16) * 0.8)(D, Hq * Dh) * (D ** -0.5)),
            "wo": _w((lambda *s: torch.randn(*s, dtype=torch.bfloat16) * 0.05)(Hq * Dh, D) * ((Hq * Dh) ** -0.5)),
        }
    _A_in = _A_setup()

    def _B_setup():
        B, Sq, D = 2, 1, 512
        Hq, Hkv, Sk, Dh = 32, 8, 8192, 128
        assert Hq % Hkv == 0, (Hq, Hkv)
        return {
            "x": _w((lambda *s: torch.randn(*s, dtype=torch.bfloat16) * 0.8)(B, Sq, D)),
            "k_cache": _w((lambda *s: torch.randn(*s, dtype=torch.bfloat16) * 0.8)(B, Hkv, Sk, Dh)),
            "v_cache": _w((lambda *s: torch.randn(*s, dtype=torch.bfloat16) * 0.05)(B, Hkv, Sk, Dh)),
            "wq": _w((lambda *s: torch.randn(*s, dtype=torch.bfloat16) * 0.8)(D, Hq * Dh) * (D ** -0.5)),
            "wo": _w((lambda *s: torch.randn(*s, dtype=torch.bfloat16) * 0.05)(Hq * Dh, D) * ((Hq * Dh) ** -0.5)),
        }
    _B_in = _B_setup()

    return {
        "A_x": _A_in["x"],
        "A_k_cache": _A_in["k_cache"],
        "A_v_cache": _A_in["v_cache"],
        "A_wq": _A_in["wq"],
        "A_wo": _A_in["wo"],
        "B_x": _B_in["x"],
        "B_k_cache": _B_in["k_cache"],
        "B_v_cache": _B_in["v_cache"],
        "B_wq": _B_in["wq"],
        "B_wo": _B_in["wo"],
    }

def reference(A_x, A_k_cache, A_v_cache, A_wq, A_wo, B_x, B_k_cache, B_v_cache, B_wq, B_wo):
    def _A_ref(x, k_cache, v_cache, wq, wo):
        B, Sq, D = x.shape
        Hq, Dh = 32, 128
        Hkv, Sk = k_cache.shape[1], k_cache.shape[2]
        W = min(4096, max(256, Sk // 4))
        rep = Hq // Hkv
        q = (lambda x, *d: x.permute(*d))((x @ wq).reshape(B, Sq, Hq, Dh), 0, 2, 1, 3)
        k = (lambda x, n, axis: torch.repeat_interleave(x, n, dim=axis))(k_cache[:, :, Sk - W:, :], rep, axis=1)
        v = (lambda x, n, axis: torch.repeat_interleave(x, n, dim=axis))(v_cache[:, :, Sk - W:, :], rep, axis=1)
        scores = torch.einsum("bhqd,bhkd->bhqk", q, k) * (Dh ** -0.5)
        p = _softmax(scores, axis=-1)
        o = torch.einsum("bhqk,bhkd->bhqd", p, v)
        return (lambda x, *d: x.permute(*d))(o, 0, 2, 1, 3).reshape(B, Sq, Hq * Dh) @ wo

    def _B_ref(x, k_cache, v_cache, wq, wo):
        B, Sq, D = x.shape
        Hq, Dh = 32, 128
        Hkv, Sk = k_cache.shape[1], k_cache.shape[2]
        W = min(4096, max(256, Sk // 4))
        rep = Hq // Hkv
        q = (lambda x, *d: x.permute(*d))((x @ wq).reshape(B, Sq, Hq, Dh), 0, 2, 1, 3)
        k = (lambda x, n, axis: torch.repeat_interleave(x, n, dim=axis))(k_cache[:, :, Sk - W:, :], rep, axis=1)
        v = (lambda x, n, axis: torch.repeat_interleave(x, n, dim=axis))(v_cache[:, :, Sk - W:, :], rep, axis=1)
        scores = torch.einsum("bhqd,bhkd->bhqk", q, k) * (Dh ** -0.5)
        p = _softmax(scores, axis=-1)
        o = torch.einsum("bhqk,bhkd->bhqd", p, v)
        return (lambda x, *d: x.permute(*d))(o, 0, 2, 1, 3).reshape(B, Sq, Hq * Dh) @ wo

    a = _A_ref(A_x, A_k_cache, A_v_cache, A_wq, A_wo)
    b = _B_ref(B_x, B_k_cache, B_v_cache, B_wq, B_wo)
    return torch.concatenate([a, b], axis=-1)
```

```python
import sys

NAME = "concat_heads__sliding_block_cached__sliding_block_cached__decode"

class Opt:
    prof = False
    vlate = True
    nt = False
    spin = 200000
    codewarm = False

def gen(o):
    L = []
    def e(s): L.append("    " + s)
    def lab(s): L.append(s + ":")
    def cm(s): L.append("    ; " + s)
    NT = " nt" if o.nt else ""

    WS_EP = 0
    WS_Q = 0x1000
    WS_ML = WS_Q + 0x40000
    WS_O = 0x100000
    WS_F = 0x200000
    WS_PROF = 0x800000
    L_QP = 0
    L_OP = 0
    L_QL = 8192
    L_PL = 9216
    L_ML = 14336
    L_FP = 16384
    LDS = 32768

    sX, sK, sV, sWQ, sWO = 8, 10, 12, 14, 16
    sOUT, sDBG, sWS = 28, 30, 32
    sEP = 34; sTAG = 35
    sB, sS = 36, 37
    sHI, sLO = 38, 39
    sT0, sT1, sT2, sT3 = 40, 41, 42, 43
    sA = 44
    sA2 = 46
    sM1, sM2, sM3 = 48, 50, 52
    sC = 54
    sCNT = 56
    sSEL_LO, sSEL_HI = 57, 58
    sC1 = 59
    sCL = 60
    sST = 64
    nst = [0]
    def stamp(i):
        if o.prof:
            e(f"s_memrealtime s[{sST+2*i}:{sST+2*i+1}]")

    vL = 0
    vM = 1
    vT = 5
    vWQ = 16
    vKK = 48
    vXX = 112
    vBB = 120
    vQA = 128
    vS = 136
    vQ = 152
    vWO = 156
    vR = 172
    vP0 = 176
    vVV = 16
    vX = 80
    vPV = 112
    vACC = 128
    NV = 192

    L.append(f"; @launch grid=(256,1,1) block=(512,1,1) lds={LDS}")
    L.append('.amdgcn_target "amdgcn-amd-amdhsa--gfx950"')
    L.append(".text")
    L.append(f".globl {NAME}_kernel")
    L.append(".p2align 8")
    L.append(f".type {NAME}_kernel,@function")
    lab(f"{NAME}_kernel")
    e("s_cmp_ge_u32 s2, 0x100")
    e("s_cbranch_scc1 L_end")
    e("s_load_dwordx16 s[8:23], s[0:1], 0")
    e("s_load_dwordx8 s[24:31], s[0:1], 64")
    e("s_load_dwordx2 s[32:33], s[0:1], 96")
    stamp(0)
    e("v_lshrrev_b32 v5, 6, v0")
    e("v_and_b32 v0, 63, v0")
    e("s_lshr_b32 s4, s2, 7")
    e("v_readfirstlane_b32 s3, v5")
    e("s_and_b32 s5, s2, 7")
    e("s_bfe_u32 s6, s2, 0x40003")
    e(f"s_lshr_b32 s{sB}, s6, 3")
    e(f"s_and_b32 s{sS}, s6, 7")
    e(f"s_lshr_b32 s{sHI}, s6, 1")
    e(f"s_and_b32 s{sLO}, s6, 1")
    e(f"s_lshl_b32 s{sCL}, s4, 3")
    e(f"s_add_u32 s{sCL}, s{sCL}, s5")
    e(f"s_lshl_b32 s{sT0}, s{sB}, 3")
    e(f"s_add_u32 s{sT0}, s{sT0}, s5")
    e(f"s_lshl_b32 s{sT0}, s{sT0}, 21")
    e(f"s_lshl_b32 s{sT1}, s{sS}, 16")
    e(f"s_add_u32 s{sT0}, s{sT0}, s{sT1}")
    e(f"s_and_b32 s{sT1}, s3, 3")
    e(f"s_lshl_b32 s{sT1}, s{sT1}, 14")
    e(f"s_add_u32 s{sT0}, s{sT0}, s{sT1}")
    e(f"s_add_u32 s{sT0}, s{sT0}, {6144*256 + 4096}")
    e("s_cmp_ge_u32 s3, 4")
    e("s_cbranch_scc1 L_vpath")

    cm("K-wave: lane offsets")
    e("v_lshrrev_b32 v6, 3, v0")
    e("v_and_b32 v7, 7, v0")
    e("v_lshlrev_b32 v5, 16, v6")
    e("v_lshl_add_u32 v5, v7, 4, v5")
    e("v_lshlrev_b32 v6, 4, v6")
    e("v_bfe_u32 v8, v0, 2, 2")
    e("v_lshlrev_b32 v8, 8, v8")
    e("v_lshrrev_b32 v9, 4, v0")
    e("v_lshl_add_u32 v8, v9, 6, v8")
    e("v_and_b32 v9, 3, v0")
    e("v_lshl_add_u32 v8, v9, 4, v8")
    e(f"s_lshl_b32 s{sT1}, s{sLO}, 8")
    e(f"s_lshl_b32 s{sT2}, s3, 6")
    e(f"s_add_u32 s{sT1}, s{sT1}, s{sT2}")
    e(f"s_lshl_b32 s{sT2}, s{sT1}, 13")
    e(f"s_lshl_b32 s{sT3}, s5, 10")
    e(f"s_add_u32 s{sT2}, s{sT2}, s{sT3}")
    e(f"s_lshl_b32 s{sT3}, s{sHI}, 7")
    e(f"s_add_u32 s{sT2}, s{sT2}, s{sT3}")
    e(f"s_lshl_b32 s{sT1}, s{sT1}, 1")
    e("s_waitcnt lgkmcnt(0)")
    e("s_cmp_eq_u32 s4, 0")
    e(f"s_cselect_b64 s[{sWQ}:{sWQ+1}], s[14:15], s[24:25]")
    e(f"s_cselect_b64 s[{sX}:{sX+1}], s[8:9], s[18:19]")
    e(f"s_cselect_b64 s[{sK}:{sK+1}], s[10:11], s[20:21]")
    e(f"s_add_u32 s{sA}, s{sWQ}, s{sT2}")
    e(f"s_addc_u32 s{sA+1}, s{sWQ+1}, 0")
    for t in range(8):
        e(f"global_load_dwordx4 v[{vWQ+4*t}:{vWQ+4*t+3}], v5, s[{sA}:{sA+1}]{NT}")
        if t < 7:
            e(f"s_add_u32 s{sA}, s{sA}, 8192")
            e(f"s_addc_u32 s{sA+1}, s{sA+1}, 0")
    e(f"s_add_u32 s{sX}, s{sX}, s{sT1}")
    e(f"s_addc_u32 s{sX+1}, s{sX+1}, 0")
    e(f"global_load_dwordx4 v[{vXX}:{vXX+3}], v6, s[{sX}:{sX+1}]")
    e(f"global_load_dwordx4 v[{vXX+4}:{vXX+7}], v6, s[{sX}:{sX+1}] offset:1024")
    e(f"s_add_u32 s{sK}, s{sK}, s{sT0}")
    e(f"s_addc_u32 s{sK+1}, s{sK+1}, 0")
    for t in range(16):
        if t == 8:
            e(f"s_add_u32 s{sK}, s{sK}, 8192")
            e(f"s_addc_u32 s{sK+1}, s{sK+1}, 0")
        e(f"global_load_dwordx4 v[{vKK+4*t}:{vKK+4*t+3}], v8, s[{sK}:{sK+1}] offset:{(t%8)*1024-4096}{NT}")
    stamp(1)
    e(f"s_cselect_b64 s[{sWO}:{sWO+1}], s[16:17], s[26:27]") if False else None
    e("s_cmp_eq_u32 s4, 0")
    e(f"s_cselect_b64 s[{sWO}:{sWO+1}], s[16:17], s[26:27]")
    e(f"s_lshl_b32 s{sT3}, s4, 8")
    e(f"s_load_dword s{sEP}, s[{sWS}:{sWS+1}], s{sT3}")

    def masks():
        cm("mask_r (v1..v4): i'=l&7; ((i'>>1)==r) ? (i'&1 ? hi : lo) : 0")
        e("v_and_b32 v10, 1, v0")
        e("v_lshlrev_b32 v10, 4, v10")
        e("v_mov_b32 v11, 0xffff")
        e("v_lshlrev_b32 v11, v10, v11")
        e("v_bfe_u32 v10, v0, 1, 2")
        for r in range(4):
            e(f"v_cmp_eq_u32 vcc, {r}, v10")
            e("s_nop 1")
            e(f"v_cndmask_b32 v{vM+r}, 0, v11, vcc")
    masks()
    e(f"s_mov_b32 s{sSEL_LO}, 0x01000100")
    e(f"s_mov_b32 s{sSEL_HI}, 0x03020302")
    e("v_and_b32 v10, 3, v0")
    e(f"v_cmp_eq_u32 s[{sM1}:{sM1+1}], 1, v10")
    e(f"v_cmp_eq_u32 s[{sM2}:{sM2+1}], 2, v10")
    e(f"v_cmp_eq_u32 s[{sM3}:{sM3+1}], 3, v10")
    for i in range(8):
        e(f"v_mov_b32 v{vQA+i}, 0")
    cm("q-proj: wait for wq + x (16 K loads stay in flight)")
    e("s_waitcnt vmcnt(16)")
    stamp(2)
    def bbuild(dst, src, sel, tmp):
        e(f"v_perm_b32 v{tmp}, v{src}, v{src}, s{sel}")
        for r in range(4):
            e(f"v_and_b32 v{dst+r}, v{tmp}, v{vM+r}")
    for t in range(8):
        sel = sSEL_HI if (t & 1) else sSEL_LO
        bbuild(vBB, vXX + (t >> 1), sel, 10)
        bbuild(vBB+4, vXX + 4 + (t >> 1), sel, 11)
        e(f"v_mfma_f32_16x16x32_bf16 v[{vQA}:{vQA+3}], v[{vWQ+4*t}:{vWQ+4*t+3}], v[{vBB}:{vBB+3}], v[{vQA}:{vQA+3}]")
        e("s_nop 0")
        e(f"v_mfma_f32_16x16x32_bf16 v[{vQA+4}:{vQA+7}], v[{vWQ+4*t}:{vWQ+4*t+3}], v[{vBB+4}:{vBB+7}], v[{vQA+4}:{vQA+7}]")
    e(f"s_lshl_b32 s{sT1}, s3, 11")
    e(f"v_lshlrev_b32 v10, 2, v0")
    e(f"v_add_u32 v10, s{sT1}, v10")
    e("s_nop 7")
    for b in range(2):
        e(f"ds_write2st64_b32 v10, v{vQA+4*b}, v{vQA+4*b+1} offset0:{4*b} offset1:{4*b+1}")
        e(f"ds_write2st64_b32 v10, v{vQA+4*b+2}, v{vQA+4*b+3} offset0:{4*b+2} offset1:{4*b+3}")
    e("s_waitcnt lgkmcnt(0)")
    e(f"s_add_u32 s{sTAG}, s{sEP}, 0x9e3779b9")
    e("s_barrier")
    stamp(3)
    cm("poll q: wave h=k reads 64 pairs x 2 partials")
    e(f"s_lshl_b32 s{sT1}, s{sCL}, 1")
    e(f"s_add_u32 s{sT1}, s{sT1}, s{sB}")
    e(f"s_lshl_b32 s{sT1}, s{sT1}, 13")
    e(f"s_lshl_b32 s{sT2}, s3, 10")
    e(f"s_add_u32 s{sT1}, s{sT1}, s{sT2}")
    e(f"s_add_u32 s{sT1}, s{sT1}, {WS_Q+4096}")
    e(f"s_add_u32 s{sA}, s{sWS}, s{sT1}")
    e(f"s_addc_u32 s{sA+1}, s{sWS+1}, 0")
    e("v_lshlrev_b32 v12, 4, v0")
    e(f"s_mov_b32 s{sCNT}, {o.spin}")
    lab("L_pollq")
    e(f"global_load_dwordx4 v[{vP0}:{vP0+3}], v12, s[{sA}:{sA+1}] offset:-4096 sc1")
    e(f"global_load_dwordx4 v[{vP0+4}:{vP0+7}], v12, s[{sA}:{sA+1}] sc1")
    e("s_waitcnt vmcnt(0)")
    def tagcheck(regs):
        e(f"v_cmp_eq_u32 vcc, s{sTAG}, v{regs[0]}")
        for r in regs[1:]:
            e(f"v_cmp_eq_u32 s[{sC}:{sC+1}], s{sTAG}, v{r}")
            e(f"s_and_b64 vcc, vcc, s[{sC}:{sC+1}]")
        e("s_cmp_eq_u64 vcc, exec")
    tagcheck([vP0+1, vP0+3, vP0+5, vP0+7])
    e("s_cbranch_scc1 L_gotq")
    e(f"s_sub_u32 s{sCNT}, s{sCNT}, 1")
    e(f"s_cmp_lg_u32 s{sCNT}, 0")
    e("s_cbranch_scc1 L_pollq")
    lab("L_gotq")
    stamp(4)
    def wo_loads():
        e(f"s_lshl_b32 s{sT1}, s5, 19")
        e(f"s_lshl_b32 s{sT2}, s{sHI}, 16")
        e(f"s_add_u32 s{sT1}, s{sT1}, s{sT2}")
        e(f"s_lshl_b32 s{sT2}, s3, 13")
        e(f"s_add_u32 s{sT1}, s{sT1}, s{sT2}")
        e(f"s_lshl_b32 s{sT2}, s{sLO}, 9")
        e(f"s_add_u32 s{sT1}, s{sT1}, s{sT2}")
        e(f"s_add_u32 s{sT1}, s{sT1}, 4096")
        e(f"s_add_u32 s{sA2}, s{sWO}, s{sT1}")
        e(f"s_addc_u32 s{sA2+1}, s{sWO+1}, 0")
        e("v_lshrrev_b32 v13, 4, v0")
        e("v_lshlrev_b32 v13, 10, v13")
        e("v_and_b32 v14, 15, v0")
        e("v_lshl_add_u32 v13, v14, 4, v13")
        for rg in range(2):
            for hf in range(2):
                i = rg*2+hf
                e(f"global_load_dwordx4 v[{vWO+4*i}:{vWO+4*i+3}], v13, s[{sA2}:{sA2+1}] offset:{rg*4096-4096+hf*256}{NT}")
    e(f"v_add_f32 v{vP0}, v{vP0}, v{vP0+4}")
    e(f"v_add_f32 v{vP0+2}, v{vP0+2}, v{vP0+6}")
    e(f"s_lshl_b32 s{sT1}, s3, 8")
    e(f"v_lshlrev_b32 v10, 2, v0")
    e(f"v_cvt_pk_bf16_f32 v11, v{vP0}, v{vP0+2}")
    e(f"v_add_u32 v10, s{sT1}, v10")
    e(f"ds_write_b32 v10, v11 offset:{L_QL}")
    wo_loads()
    e("v_bfe_u32 v10, v0, 2, 2")
    e("v_lshlrev_b32 v10, 8, v10")
    e("v_lshrrev_b32 v11, 4, v0")
    e("v_lshl_add_u32 v10, v11, 6, v10")
    e("v_and_b32 v11, 3, v0")
    e("v_lshl_add_u32 v10, v11, 4, v10")
    e("s_waitcnt lgkmcnt(0)")
    e("s_barrier")
    e(f"ds_read_b128 v[{vQ}:{vQ+3}], v10 offset:{L_QL}")
    e("s_waitcnt lgkmcnt(0)")
    cm("QK^T")
    vD = vWQ
    def dreg(G, a): return vD + (G & 1)*16 + a*4
    def mf(G, a):
        t = 4*G + a
        d = dreg(G, a)
        e(f"v_mfma_f32_16x16x32_bf16 v[{d}:{d+3}], v[{vKK+4*t}:{vKK+4*t+3}], v[{vQ}:{vQ+3}], 0")
    def dpp(G, step):
        for a in range(4):
            d = dreg(G, a) + step
            sdst = vS + 4*G + a
            qp = f"quad_perm:[{step},{step},{step},{step}] row_mask:0xf bank_mask:0xf"
            if step == 0:
                e(f"v_mov_b32_dpp v{sdst}, v{d} {qp}")
            else:
                e(f"v_add_f32_dpp v{sdst}, v{d}, v{sdst} {qp}")
    for a in range(4): mf(0, a)
    for G in range(1, 4):
        for a in range(4):
            mf(G, a)
            if a == 0: e("s_nop 4")
            dpp(G-1, a)
    e("s_nop 4")
    for st in range(4): dpp(3, st)
    cm("compress")
    for G in range(4):
        e(f"v_cndmask_b32 v{vR+G}, v{vS+4*G}, v{vS+4*G+1}, s[{sM1}:{sM1+1}]")
    for G in range(4):
        e(f"v_cndmask_b32 v{vR+G}, v{vR+G}, v{vS+4*G+2}, s[{sM2}:{sM2+1}]")
    for G in range(4):
        e(f"v_cndmask_b32 v{vR+G}, v{vR+G}, v{vS+4*G+3}, s[{sM3}:{sM3+1}]")
    def quadrow_reduce(v, op, t1):
        e("s_nop 1")
        e(f"{op}_dpp v{v}, v{v}, v{v} quad_perm:[1,0,3,2] row_mask:0xf bank_mask:0xf")
        e("s_nop 1")
        e(f"{op}_dpp v{v}, v{v}, v{v} quad_perm:[2,3,0,1] row_mask:0xf bank_mask:0xf")
        e(f"v_mov_b32 v{t1}, v{v}") if False else None
        e("s_nop 0")
        e(f"v_mov_b32 v{t1}, v{v}")
        e("s_nop 1")
        e(f"v_permlane16_swap_b32 v{v}, v{t1}")
        e("s_nop 1")
        e(f"{op} v{v}, v{v}, v{t1}")
        e(f"v_mov_b32 v{t1}, v{v}")
        e("s_nop 1")
        e(f"v_permlane32_swap_b32 v{v}, v{t1}")
        e("s_nop 1")
        e(f"{op} v{v}, v{v}, v{t1}")
    e(f"v_max3_f32 v10, v{vR}, v{vR+1}, v{vR+2}")
    e(f"v_max_f32 v10, v10, v{vR+3}")
    quadrow_reduce(10, "v_max_f32", 11)
    e(f"s_mov_b32 s{sC1}, 0x3e0293ee")
    e(f"v_mul_f32 v10, s{sC1}, v10")
    for G in range(4):
        e(f"v_fma_f32 v{vR+G}, v{vR+G}, s{sC1}, -v10")
    for G in range(4):
        e(f"v_exp_f32 v{vR+G}, v{vR+G}")
    e("s_nop 0")
    e(f"v_add_f32 v12, v{vR}, v{vR+1}")
    e(f"v_add_f32 v13, v{vR+2}, v{vR+3}")
    for G in range(4):
        e(f"v_cvt_pk_bf16_f32 v{vR+G}, v{vR+G}, v{vR+G}")
    e(f"v_add_f32 v12, v12, v13")
    e("v_lshrrev_b32 v14, 2, v0")
    e("v_mul_u32_u24 v14, 80, v14")
    e("v_and_b32 v15, 3, v0")
    e("v_lshl_add_u32 v14, v15, 2, v14")
    e(f"s_mul_i32 s{sT1}, s3, 1280")
    e(f"v_add_u32 v14, s{sT1}, v14")
    for G in range(4):
        e(f"ds_write_b32 v14, v{vR+G} offset:{L_PL+16*G}")
    quadrow_reduce(12, "v_add_f32", 13)
    e("v_mov_b32 v11, v12")
    e("v_lshlrev_b32 v14, 3, v0")
    e(f"s_lshl_b32 s{sT1}, s3, 3")
    e(f"v_add_u32 v14, s{sT1}, v14")
    e("s_mov_b64 exec, 0x1111")
    e(f"ds_write_b64 v14, v[10:11] offset:{L_ML}")
    e("s_mov_b64 exec, -1")
    e("s_waitcnt lgkmcnt(0)")
    e("s_barrier")
    stamp(5)
    e("s_barrier")
    stamp(6)
    cm("publish o: thread tau = wave*64+l (waves 0..3): p'=l&3, i''=(l>>2)&3, h=l>>4, grp=wave")
    e("v_lshrrev_b32 v10, 4, v0")
    e("v_lshlrev_b32 v10, 7, v10")
    e("v_and_b32 v11, 3, v0")
    e("v_lshl_add_u32 v10, v11, 5, v10")
    e("v_bfe_u32 v11, v0, 2, 2")
    e("v_lshl_add_u32 v10, v11, 3, v10")
    e(f"s_lshl_b32 s{sT1}, s3, 9")
    e(f"v_add_u32 v10, s{sT1}, v10")
    for vw in range(4):
        e(f"ds_read_b64 v[{vP0+2*vw}:{vP0+2*vw+1}], v10 offset:{L_OP+vw*2048}")
    e(f"s_lshl_b32 s{sT1}, s{sCL}, 4")
    e(f"s_add_u32 s{sT1}, s{sT1}, s6")
    e(f"s_lshl_b32 s{sT1}, s{sT1}, 12")
    e(f"s_lshl_b32 s{sT2}, s3, 8")
    e(f"s_add_u32 s{sT1}, s{sT1}, s{sT2}")
    e(f"s_add_u32 s{sT1}, s{sT1}, {WS_O}")
    e(f"s_add_u32 s{sA}, s{sWS}, s{sT1}")
    e(f"s_addc_u32 s{sA+1}, s{sWS+1}, 0")
    e("v_lshrrev_b32 v11, 4, v0")
    e("v_lshlrev_b32 v11, 10, v11")
    e("v_and_b32 v12, 15, v0")
    e("v_lshl_add_u32 v11, v12, 4, v11")
    e(f"v_mov_b32 v13, s{sTAG}")
    e(f"v_mov_b32 v15, s{sTAG}")
    e("s_waitcnt lgkmcnt(0)")
    e(f"v_add_f32 v12, v{vP0}, v{vP0+2}")
    e(f"v_add_f32 v14, v{vP0+1}, v{vP0+3}")
    e(f"v_add_f32 v{vP0+4}, v{vP0+4}, v{vP0+6}")
    e(f"v_add_f32 v{vP0+5}, v{vP0+5}, v{vP0+7}")
    e(f"v_add_f32 v12, v12, v{vP0+4}")
    e(f"v_add_f32 v14, v14, v{vP0+5}")
    e(f"global_store_dwordx4 v11, v[12:15], s[{sA}:{sA+1}] sc1")
    e("s_branch L_tail")

    lab("L_vpath")
    e("v_lshlrev_b32 v5, 4, v0")
    e("s_waitcnt lgkmcnt(0)")
    e("s_cmp_eq_u32 s4, 0")
    e(f"s_cselect_b64 s[{sV}:{sV+1}], s[12:13], s[22:23]")
    e(f"s_cselect_b64 s[{sWO}:{sWO+1}], s[16:17], s[26:27]")
    e(f"s_lshl_b32 s{sT3}, s4, 8")
    e(f"s_load_dword s{sEP}, s[{sWS}:{sWS+1}], s{sT3}")
    e(f"s_add_u32 s{sV}, s{sV}, s{sT0}")
    e(f"s_addc_u32 s{sV+1}, s{sV+1}, 0")
    def v_loads():
        for t in range(16):
            if t == 8:
                e(f"s_add_u32 s{sV}, s{sV}, 8192")
                e(f"s_addc_u32 s{sV+1}, s{sV+1}, 0")
            e(f"global_load_dwordx4 v[{vVV+4*t}:{vVV+4*t+3}], v5, s[{sV}:{sV+1}] offset:{(t%8)*1024-4096}{NT}")
        wo_loads()
    if not o.vlate:
        v_loads()
    masks()
    e("s_waitcnt lgkmcnt(0)")
    e(f"s_add_u32 s{sTAG}, s{sEP}, 0x9e3779b9")
    e("s_barrier")
    cm("publish q (wave 4 only)")
    e("s_cmp_eq_u32 s3, 4")
    e("s_cbranch_scc0 L_noqpub")
    e("v_lshrrev_b32 v10, 5, v0")
    e("v_lshlrev_b32 v10, 10, v10")
    e("v_bfe_u32 v11, v0, 2, 2")
    e("v_lshl_add_u32 v10, v11, 8, v10")
    e("v_bfe_u32 v11, v0, 4, 1")
    e("v_lshl_add_u32 v10, v11, 6, v10")
    e("v_and_b32 v11, 3, v0")
    e("v_lshl_add_u32 v10, v11, 3, v10")
    base = 80
    for kw in range(4):
        e(f"ds_read_b64 v[{base+4*kw}:{base+4*kw+1}], v10 offset:{L_QP+kw*2048}")
        e(f"ds_read_b64 v[{base+4*kw+2}:{base+4*kw+3}], v10 offset:{L_QP+kw*2048+160}")
    e(f"s_lshl_b32 s{sT1}, s{sCL}, 14")
    e(f"s_lshl_b32 s{sT2}, s{sLO}, 12")
    e(f"s_add_u32 s{sT1}, s{sT1}, s{sT2}")
    e(f"s_lshl_b32 s{sT2}, s{sHI}, 9")
    e(f"s_add_u32 s{sT1}, s{sT1}, s{sT2}")
    e(f"s_add_u32 s{sT1}, s{sT1}, {WS_Q}")
    e(f"s_add_u32 s{sA}, s{sWS}, s{sT1}")
    e(f"s_addc_u32 s{sA+1}, s{sWS+1}, 0")
    e("v_lshrrev_b32 v11, 5, v0")
    e("v_lshlrev_b32 v11, 13, v11")
    e("v_and_b32 v12, 31, v0")
    e("v_lshl_add_u32 v11, v12, 4, v11")
    e(f"v_mov_b32 v13, s{sTAG}")
    e(f"v_mov_b32 v15, s{sTAG}")
    e("s_waitcnt lgkmcnt(0)")
    for i in range(0, 16, 4):
        e(f"v_add_f32 v{base+i}, v{base+i}, v{base+i+2}")
        e(f"v_add_f32 v{base+i+1}, v{base+i+1}, v{base+i+3}")
    e(f"v_add_f32 v{base}, v{base}, v{base+4}")
    e(f"v_add_f32 v{base+1}, v{base+1}, v{base+5}")
    e(f"v_add_f32 v{base+8}, v{base+8}, v{base+12}")
    e(f"v_add_f32 v{base+9}, v{base+9}, v{base+13}")
    e(f"v_add_f32 v12, v{base}, v{base+8}")
    e(f"v_add_f32 v14, v{base+1}, v{base+9}")
    e(f"global_store_dwordx4 v11, v[12:15], s[{sA}:{sA+1}] sc1")
    lab("L_noqpub")
    if o.vlate:
        v_loads()
    stamp(1)
    e("v_and_b32 v10, 1, v0")
    e("v_lshlrev_b32 v10, 4, v10")
    e("v_mov_b32 v11, 0xffff")
    e("v_lshlrev_b32 v11, v10, v11")
    e("v_and_b32 v10, 2, v0")
    e("v_cmp_eq_u32 vcc, 0, v10")
    e("s_nop 1")
    e("v_cndmask_b32 v6, 0, v11, vcc")
    e("v_cndmask_b32 v7, v11, 0, vcc") if False else None
    e("v_xor_b32 v7, v6, v11")
    e("v_lshrrev_b32 v8, 2, v0")
    e("v_mul_u32_u24 v8, 80, v8")
    e(f"s_and_b32 s{sT1}, s3, 3")
    e(f"s_mul_i32 s{sT2}, s{sT1}, 1280")
    e(f"v_add_u32 v8, s{sT2}, v8")
    e("v_bfe_u32 v9, v0, 2, 2")
    e("v_lshlrev_b32 v9, 5, v9")
    for i in range(8):
        e(f"v_mov_b32 v{vACC+i}, 0")
    e("s_barrier")
    e("s_barrier")
    stamp(5)
    for G in range(4):
        e(f"ds_read_b128 v[{vPV+4*G}:{vPV+4*G+3}], v8 offset:{L_PL+16*G}")
    e(f"ds_read_b128 v[136:139], v9 offset:{L_ML}")
    e(f"ds_read_b128 v[140:143], v9 offset:{L_ML+16}")
    e(f"s_lshl_b32 s{sT1}, s{sT1}, 3")
    e(f"v_add_u32 v9, s{sT1}, v9")
    e(f"ds_read_b32 v144, v9 offset:{L_ML}")
    e("s_waitcnt lgkmcnt(3)")
    for t in range(16):
        e(f"v_and_b32 v{vX+2*t}, v{vPV+t}, v6")
        e(f"v_and_b32 v{vX+2*t+1}, v{vPV+t}, v7")
    e("s_waitcnt lgkmcnt(0)")
    e("v_max3_f32 v145, v136, v138, v140")
    e("v_max_f32 v145, v145, v142")
    e("v_sub_f32 v136, v136, v145")
    e("v_sub_f32 v138, v138, v145")
    e("v_sub_f32 v140, v140, v145")
    e("v_sub_f32 v142, v142, v145")
    e("v_sub_f32 v144, v144, v145")
    e("v_exp_f32 v136, v136")
    e("v_exp_f32 v138, v138")
    e("v_exp_f32 v140, v140")
    e("v_exp_f32 v142, v142")
    e("v_exp_f32 v144, v144")
    e("s_nop 0")
    e("v_mul_f32 v146, v136, v137")
    e("v_fmac_f32 v146, v138, v139")
    e("v_fmac_f32 v146, v140, v141")
    e("v_fmac_f32 v146, v142, v143")
    cm("publish (M,L): wave 4, lanes 0,4,8,12")
    e("s_cmp_eq_u32 s3, 4")
    e("s_cbranch_scc0 L_nomlpub")
    e(f"s_lshl_b32 s{sT1}, s{sCL}, 4")
    e(f"s_add_u32 s{sT1}, s{sT1}, s6")
    e(f"s_lshl_b32 s{sT1}, s{sT1}, 6")
    e(f"s_add_u32 s{sT1}, s{sT1}, {WS_ML}")
    e(f"s_add_u32 s{sA}, s{sWS}, s{sT1}")
    e(f"s_addc_u32 s{sA+1}, s{sWS+1}, 0")
    e("v_lshlrev_b32 v11, 2, v0")
    e("v_mov_b32 v12, v145")
    e(f"v_mov_b32 v13, s{sTAG}")
    e("v_mov_b32 v14, v146")
    e(f"v_mov_b32 v15, s{sTAG}")
    e("s_mov_b64 exec, 0x1111")
    e(f"global_store_dwordx4 v11, v[12:15], s[{sA}:{sA+1}] sc1")
    e("s_mov_b64 exec, -1")
    lab("L_nomlpub")
    cm("PV")
    for t in range(16):
        n = (15 - t) + 4
        e(f"s_waitcnt vmcnt({n})")
        for u in range(2):
            e(f"v_mfma_f32_16x16x16_bf16 v[{vACC+4*u}:{vACC+4*u+3}], v[{vVV+4*t+2*u}:{vVV+4*t+2*u+1}], v[{vX+2*t}:{vX+2*t+1}], v[{vACC+4*u}:{vACC+4*u+3}]")
    stamp(2)
    e("s_nop 7")
    for i in range(4):
        for u in range(2):
            e(f"v_mul_f32 v{136+2*i+u}, v{vACC+4*u+i}, v144")
    e("v_lshlrev_b32 v10, 5, v0")
    e(f"s_and_b32 s{sT1}, s3, 3")
    e(f"s_lshl_b32 s{sT1}, s{sT1}, 11")
    e(f"v_add_u32 v10, s{sT1}, v10")
    e(f"ds_write_b128 v10, v[136:139] offset:{L_OP}")
    e(f"ds_write_b128 v10, v[140:143] offset:{L_OP+16}")
    e("s_waitcnt lgkmcnt(0)")
    e("s_barrier")
    stamp(6)

    lab("L_tail")
    cm("hop 2 poll: lane (s=l&7, b=(l>>3)&1, c=l>>4)")
    e(f"s_lshl_b32 s{sT1}, s{sCL}, 16")
    e(f"s_lshl_b32 s{sT2}, s{sHI}, 9")
    e(f"s_add_u32 s{sT1}, s{sT1}, s{sT2}")
    e(f"s_lshl_b32 s{sT2}, s3, 6")
    e(f"s_add_u32 s{sT1}, s{sT1}, s{sT2}")
    e(f"s_add_u32 s{sT1}, s{sT1}, {WS_O}")
    e(f"s_add_u32 s{sA}, s{sWS}, s{sT1}")
    e(f"s_addc_u32 s{sA+1}, s{sWS+1}, 0")
    e("v_and_b32 v10, 15, v0")
    e("v_lshlrev_b32 v11, 12, v10")
    e("v_lshrrev_b32 v12, 4, v0")
    e("v_lshl_add_u32 v11, v12, 4, v11")
    e(f"s_lshl_b32 s{sT1}, s{sCL}, 10")
    e(f"s_lshr_b32 s{sT2}, s{sHI}, 1")
    e(f"s_lshl_b32 s{sT2}, s{sT2}, 4")
    e(f"s_add_u32 s{sT1}, s{sT1}, s{sT2}")
    e(f"s_add_u32 s{sT1}, s{sT1}, {WS_ML}")
    e(f"s_add_u32 s{sA2}, s{sWS}, s{sT1}")
    e(f"s_addc_u32 s{sA2+1}, s{sWS+1}, 0")
    e("v_lshlrev_b32 v10, 6, v10")
    e(f"s_mov_b32 s{sCNT}, {o.spin}")
    lab("L_pollo")
    e(f"global_load_dwordx4 v[{vP0}:{vP0+3}], v11, s[{sA}:{sA+1}] sc1")
    e(f"global_load_dwordx4 v[{vP0+4}:{vP0+7}], v10, s[{sA2}:{sA2+1}] sc1")
    e("s_waitcnt vmcnt(0)")
    tagcheck([vP0+1, vP0+3, vP0+5, vP0+7])
    e("s_cbranch_scc1 L_goto")
    e(f"s_sub_u32 s{sCNT}, s{sCNT}, 1")
    e(f"s_cmp_lg_u32 s{sCNT}, 0")
    e("s_cbranch_scc1 L_pollo")
    lab("L_goto")
    stamp(7)
    o0, o1, vMm, vLl = vP0, vP0+2, vP0+4, vP0+6
    def red8(regs, op):
        for pat in ["quad_perm:[1,0,3,2]", "quad_perm:[2,3,0,1]", "row_half_mirror"]:
            if len(regs) < 3: e(f"s_nop {2-len(regs)+0}") if len(regs) < 3 else None
            for r in regs:
                e(f"{op}_dpp v{r}, v{r}, v{r} {pat} row_mask:0xf bank_mask:0xf")
    e(f"v_mov_b32 v12, v{vMm}")
    e("s_nop 1")
    for pat in ["quad_perm:[1,0,3,2]", "quad_perm:[2,3,0,1]", "row_half_mirror"]:
        e(f"v_max_f32_dpp v12, v12, v12 {pat} row_mask:0xf bank_mask:0xf")
        e("s_nop 1")
    e(f"v_sub_f32 v12, v{vMm}, v12")
    e("v_exp_f32 v12, v12")
    e("s_nop 0")
    e(f"v_mul_f32 v{o0}, v{o0}, v12")
    e(f"v_mul_f32 v{o1}, v{o1}, v12")
    e(f"v_mul_f32 v{vLl}, v{vLl}, v12")
    e("s_nop 0")
    red8([o0, o1, vLl], "v_add_f32")
    e(f"v_rcp_f32 v{vLl}, v{vLl}")
    e("s_nop 0")
    e(f"v_mul_f32 v{o0}, v{o0}, v{vLl}")
    e(f"v_mul_f32 v{o1}, v{o1}, v{vLl}")
    e(f"v_cvt_pk_bf16_f32 v{o0}, v{o0}, v{o0}")
    e(f"v_cvt_pk_bf16_f32 v{o1}, v{o1}, v{o1}")
    vB0, vB1 = 120, 124
    for r in range(4):
        e(f"v_and_b32 v{vB0+r}, v{o0}, v{vM+r}")
    for r in range(4):
        e(f"v_and_b32 v{vB1+r}, v{o1}, v{vM+r}")
    vD0 = 128
    e("s_nop 1")
    for rg in range(2):
        for hf in range(2):
            i = rg*2+hf
            bb = vB0 if rg == 0 else vB1
            c = "0" if rg == 0 else f"v[{vD0+4*hf}:{vD0+4*hf+3}]"
            e(f"v_mfma_f32_16x16x32_bf16 v[{vD0+4*hf}:{vD0+4*hf+3}], v[{vWO+4*i}:{vWO+4*i+3}], v[{bb}:{bb+3}], {c}")
    e(f"s_lshl_b32 s{sT1}, s3, 11")
    e("v_lshlrev_b32 v10, 2, v0")
    e(f"v_add_u32 v10, s{sT1}, v10")
    e("s_nop 7")
    for hf in range(2):
        e(f"ds_write2st64_b32 v10, v{vD0+4*hf}, v{vD0+4*hf+1} offset0:{L_FP//256+4*hf} offset1:{L_FP//256+4*hf+1}")
        e(f"ds_write2st64_b32 v10, v{vD0+4*hf+2}, v{vD0+4*hf+3} offset0:{L_FP//256+4*hf+2} offset1:{L_FP//256+4*hf+3}")
    e("s_waitcnt lgkmcnt(0)")
    e("s_barrier")
    stamp(8)
    e("s_cmp_ge_u32 s3, 4")
    e("s_cbranch_scc1 L_fin")
    e(f"s_lshl_b32 s{sT1}, s3, 9")
    e("v_lshlrev_b32 v10, 3, v0")
    e(f"v_add_u32 v10, s{sT1}, v10")
    for wv in range(8):
        e(f"ds_read_b64 v[{16+2*wv}:{16+2*wv+1}], v10 offset:{L_FP+wv*2048}")
    e(f"s_lshl_b32 s{sT1}, s4, 19")
    e(f"s_lshl_b32 s{sT2}, s{sLO}, 18")
    e(f"s_add_u32 s{sT1}, s{sT1}, s{sT2}")
    e(f"s_lshl_b32 s{sT2}, s3, 16")
    e(f"s_add_u32 s{sT1}, s{sT1}, s{sT2}")
    e(f"s_lshl_b32 s{sT2}, s5, 9")
    e(f"s_add_u32 s{sT1}, s{sT1}, s{sT2}")
    e(f"s_lshl_b32 s{sT2}, s{sHI}, 6")
    e(f"s_add_u32 s{sT1}, s{sT1}, s{sT2}")
    e(f"s_add_u32 s{sT1}, s{sT1}, {WS_F}")
    e(f"s_add_u32 s{sA}, s{sWS}, s{sT1}")
    e(f"s_addc_u32 s{sA+1}, s{sWS+1}, 0")
    e("v_lshrrev_b32 v11, 2, v0")
    e("v_lshlrev_b32 v11, 12, v11")
    e("v_and_b32 v12, 3, v0")
    e("v_lshl_add_u32 v11, v12, 4, v11")
    e(f"v_mov_b32 v13, s{sTAG}")
    e(f"v_mov_b32 v15, s{sTAG}")
    e("s_waitcnt lgkmcnt(0)")
    for i in range(0, 16, 4):
        e(f"v_add_f32 v{16+i}, v{16+i}, v{16+i+2}")
        e(f"v_add_f32 v{16+i+1}, v{16+i+1}, v{16+i+3}")
    e("v_add_f32 v16, v16, v20")
    e("v_add_f32 v17, v17, v21")
    e("v_add_f32 v24, v24, v28")
    e("v_add_f32 v25, v25, v29")
    e("v_add_f32 v12, v16, v24")
    e("v_add_f32 v14, v17, v25")
    e(f"global_store_dwordx4 v11, v[12:15], s[{sA}:{sA+1}] sc1")
    e("s_cmp_eq_u32 s3, 0")
    e("s_cbranch_scc0 L_fin")
    cm("hop 3 poll (wave 0): cw = wg & 127")
    e(f"s_and_b32 s{sT1}, s2, 0xff")
    e(f"s_lshl_b32 s{sT1}, s{sT1}, 12")
    e(f"s_add_u32 s{sT1}, s{sT1}, {WS_F}")
    e(f"s_add_u32 s{sA}, s{sWS}, s{sT1}")
    e(f"s_addc_u32 s{sA+1}, s{sWS+1}, 0")
    e("v_lshlrev_b32 v11, 4, v0")
    e(f"s_mov_b32 s{sCNT}, {o.spin}")
    lab("L_pollf")
    for q in range(4):
        e(f"global_load_dwordx4 v[{16+4*q}:{16+4*q+3}], v11, s[{sA}:{sA+1}] offset:{q*1024} sc1")
    e("s_waitcnt vmcnt(0)")
    tagcheck([17, 19, 21, 23, 25, 27, 29, 31])
    e("s_cbranch_scc1 L_gotf")
    e(f"s_sub_u32 s{sCNT}, s{sCNT}, 1")
    e(f"s_cmp_lg_u32 s{sCNT}, 0")
    e("s_cbranch_scc1 L_pollf")
    lab("L_gotf")
    stamp(9)
    e("v_add_f32 v16, v16, v20")
    e("v_add_f32 v18, v18, v22")
    e("v_add_f32 v24, v24, v28")
    e("v_add_f32 v26, v26, v30")
    e("v_add_f32 v16, v16, v24")
    e("v_add_f32 v18, v18, v26")
    e("s_nop 1")
    for pat in ["row_ror:4", "row_ror:8"]:
        e(f"v_add_f32_dpp v16, v16, v16 {pat} row_mask:0xf bank_mask:0xf")
        e(f"v_add_f32_dpp v18, v18, v18 {pat} row_mask:0xf bank_mask:0xf")
        e("s_nop 1")
    for sw in ["v_permlane16_swap_b32", "v_permlane32_swap_b32"]:
        e("v_mov_b32 v20, v16")
        e("v_mov_b32 v22, v18")
        e("s_nop 1")
        e(f"{sw} v16, v20")
        e(f"{sw} v18, v22")
        e("s_nop 1")
        e("v_add_f32 v16, v16, v20")
        e("v_add_f32 v18, v18, v22")
    e("v_cvt_pk_bf16_f32 v16, v16, v18")
    e(f"s_and_b32 s{sT1}, s2, 1")
    e(f"s_lshl_b32 s{sT1}, s{sT1}, 11")
    e(f"s_lshl_b32 s{sT2}, s4, 10")
    e(f"s_add_u32 s{sT1}, s{sT1}, s{sT2}")
    e(f"s_bfe_u32 s{sT2}, s2, 0x20005")
    e(f"s_lshl_b32 s{sT2}, s{sT2}, 8")
    e(f"s_add_u32 s{sT1}, s{sT1}, s{sT2}")
    e(f"s_bfe_u32 s{sT2}, s2, 0x20001")
    e(f"s_lshl_b32 s{sT2}, s{sT2}, 6")
    e(f"s_add_u32 s{sT1}, s{sT1}, s{sT2}")
    e(f"s_bfe_u32 s{sT2}, s2, 0x20003")
    e(f"s_lshl_b32 s{sT2}, s{sT2}, 4")
    e(f"s_add_u32 s{sT1}, s{sT1}, s{sT2}")
    e(f"s_add_u32 s{sA}, s{sOUT}, s{sT1}")
    e(f"s_addc_u32 s{sA+1}, s{sOUT+1}, 0")
    e("v_lshlrev_b32 v11, 2, v0")
    e("s_mov_b64 exec, 0xf")
    e(f"global_store_dword v11, v16, s[{sA}:{sA+1}]")
    cm("epoch update by cw==0")
    e(f"s_and_b32 s{sT1}, s2, 127")
    e(f"s_cmp_eq_u32 s{sT1}, 0")
    e("s_cbranch_scc0 L_fin")
    e(f"s_lshl_b32 s{sT1}, s4, 8")
    e(f"v_mov_b32 v11, s{sT1}")
    e(f"v_mov_b32 v12, s{sTAG}")
    e("s_mov_b64 exec, 1")
    e(f"global_store_dword v11, v12, s[{sWS}:{sWS+1}]")
    lab("L_fin")
    if o.prof:
        stamp(10)
        e("s_waitcnt lgkmcnt(0)")
        e("s_mov_b64 exec, 1")
        e(f"s_lshl_b32 s{sT1}, s2, 3")
        e(f"s_add_u32 s{sT1}, s{sT1}, s3")
        e(f"s_lshl_b32 s{sT1}, s{sT1}, 7")
        e(f"s_add_u32 s{sT1}, s{sT1}, {WS_PROF}")
        e(f"v_mov_b32 v11, s{sT1}")
        for i in range(11):
            e(f"v_mov_b32 v12, s{sST+2*i}")
            e(f"global_store_dword v11, v12, s[{sWS}:{sWS+1}] offset:{4*i}")
            e("s_nop 1")
    lab("L_end")
    e("s_endpgm")
    L.append('.section .rodata,"a"')
    L.append(".p2align 6")
    L.append(f".amdhsa_kernel {NAME}_kernel")
    L.append(f"  .amdhsa_next_free_vgpr {NV}")
    L.append("  .amdhsa_next_free_sgpr 96")
    L.append(f"  .amdhsa_accum_offset {NV}")
    L.append("  .amdhsa_group_segment_fixed_size 0")
    L.append("  .amdhsa_kernarg_size 104")
    L.append("  .amdhsa_user_sgpr_count 2")
    L.append("  .amdhsa_user_sgpr_kernarg_segment_ptr 1")
    L.append("  .amdhsa_system_sgpr_workgroup_id_x 1")
    L.append(".end_amdhsa_kernel")
    return "\n".join(x for x in L if x is not None) + "\n"

if __name__ == "__main__":
    o = Opt()
    out = sys.argv[1]
    for a in sys.argv[2:]:
        k, v = a.split("=")
        cur = getattr(o, k)
        setattr(o, k, type(cur)(int(v)) if isinstance(cur, (bool, int)) else v)
    open(out, "w").write(gen(o))
```

```python
import sys
NAME = "concat_heads__sliding_block_cached__sliding_block_cached__decode"

class Opt:
    prof = 0
    nt = 1
    spin = 200000
    wk = 16
    wv = 16
    kdelay = 1
    touch = 1
    warm = 0

def gen(o):
    L = []
    def e(s): L.append("    " + s)
    def lab(s): L.append(s + ":")
    def cm(s): L.append("    ; " + s)
    NT = " nt" if o.nt else ""
    WS_EP = 0; WS_Q = 0x1000; WS_ML = WS_Q + 0x40000; WS_O = 0x80000; WS_F = 0x180000; WS_PROF = 0x800000
    L_QP = 0; L_OP = 0; L_QL = 8192; L_PL = 9216; L_ML = 14336; L_CT = 14592; L_FP = 16384; LDS = 32768
    sX, sK, sV, sWQ, sWO = 8, 10, 12, 14, 16
    sOUT, sDBG, sWS = 28, 30, 32
    sEP = 34; sTAG = 35; sB, sS = 36, 37; sHI, sLO = 38, 39
    sT0, sT1, sT2, sT3 = 40, 41, 42, 43
    sA = 44; sA2 = 46; sM1, sM2, sM3 = 48, 50, 52; sC = 54; sCNT = 56
    sSEL_LO, sSEL_HI = 57, 58; sC1 = 59; sCL = 60; sKW = 61; sPC = 62
    sST = 64
    NST = 16
    def stamp(i):
        if o.prof: e(f"s_memrealtime s[{sST+2*i}:{sST+2*i+1}]")
    def stampcnt(i):
        if o.prof: e(f"s_sub_u32 s{sST+2*i}, {o.spin}, s{sCNT}")
    vM = 1
    vKK = 16; vD = 80; vS = 112; vQ = 128; vR = 132; vP0 = 136; vWO = 144
    vWQ = 16; vVV = 16; vX = 80; vPV = 112; vACC = 128; vXX = 136; vBB = 144; vQA = 152
    NV = 184

    def lds_signal(idx):
        e("s_waitcnt lgkmcnt(0)")
        e(f"v_mov_b32 v14, {L_CT + 4*idx}")
        e("v_mov_b32 v15, 1")
        e("s_mov_b64 exec, 1")
        e("ds_add_u32 v14, v15")
        e("s_mov_b64 exec, -1")
    nw = [0]
    def lds_wait(idx, target):
        n = nw[0]; nw[0] += 1
        e(f"v_mov_b32 v14, {L_CT + 4*idx}")
        lab(f"L_lw{n}")
        e("ds_read_b32 v15, v14")
        e("s_waitcnt lgkmcnt(0)")
        e("v_readfirstlane_b32 s63, v15")
        e(f"s_cmp_lt_u32 s63, {target}")
        e(f"s_cbranch_scc1 L_lw{n}")
    def tagcheck(regs):
        e(f"v_cmp_eq_u32 vcc, s{sTAG}, v{regs[0]}")
        for r in regs[1:]:
            e(f"v_cmp_eq_u32 s[{sC}:{sC+1}], s{sTAG}, v{r}")
            e(f"s_and_b64 vcc, vcc, s[{sC}:{sC+1}]")
        e("s_cmp_eq_u64 vcc, exec")
    def masks():
        e("v_and_b32 v10, 1, v0")
        e("v_lshlrev_b32 v10, 4, v10")
        e("v_mov_b32 v11, 0xffff")
        e("v_lshlrev_b32 v11, v10, v11")
        e("v_bfe_u32 v10, v0, 1, 2")
        for r in range(4):
            e(f"v_cmp_eq_u32 vcc, {r}, v10")
            e("s_nop 1")
            e(f"v_cndmask_b32 v{vM+r}, 0, v11, vcc")
    def addr64(dst, base, off):
        e(f"s_add_u32 s{dst}, s{base}, s{off}")
        e(f"s_addc_u32 s{dst+1}, s{base+1}, 0")

    L.append(f"; @launch grid=(256,1,1) block=(512,1,1) lds={LDS}")
    L.append('.amdgcn_target "amdgcn-amd-amdhsa--gfx950"')
    L.append(".text")
    L.append(f".globl {NAME}_kernel")
    L.append(".p2align 8")
    L.append(f".type {NAME}_kernel,@function")
    lab(f"{NAME}_kernel")
    e("s_cmp_ge_u32 s2, 0x100")
    e("s_cbranch_scc1 L_end")
    e("s_load_dwordx16 s[8:23], s[0:1], 0")
    e("s_load_dwordx8 s[24:31], s[0:1], 64")
    e("s_load_dwordx2 s[32:33], s[0:1], 96")
    stamp(0)
    e("v_lshrrev_b32 v5, 6, v0")
    e("v_and_b32 v0, 63, v0")
    e("s_lshr_b32 s4, s2, 7")
    e("v_readfirstlane_b32 s3, v5")
    e("s_and_b32 s5, s2, 7")
    e("s_bfe_u32 s6, s2, 0x40003")
    e(f"s_lshr_b32 s{sB}, s6, 3")
    e(f"s_and_b32 s{sS}, s6, 7")
    e(f"s_lshr_b32 s{sHI}, s6, 1")
    e(f"s_and_b32 s{sLO}, s6, 1")
    e(f"s_lshl_b32 s{sCL}, s4, 3")
    e(f"s_add_u32 s{sCL}, s{sCL}, s5")
    e(f"s_and_b32 s{sKW}, s3, 3")
    e(f"s_lshl_b32 s{sT0}, s{sB}, 3")
    e(f"s_add_u32 s{sT0}, s{sT0}, s5")
    e(f"s_lshl_b32 s{sT0}, s{sT0}, 21")
    e(f"s_lshl_b32 s{sT1}, s{sS}, 16")
    e(f"s_add_u32 s{sT0}, s{sT0}, s{sT1}")
    e(f"s_lshl_b32 s{sT1}, s{sKW}, 14")
    e(f"s_add_u32 s{sT0}, s{sT0}, s{sT1}")
    e(f"s_add_u32 s{sT0}, s{sT0}, {6144*256 + 4096}")
    e("s_cmp_lt_u32 s3, 4")
    e("s_cbranch_scc1 L_kpath")

    e("v_lshrrev_b32 v6, 3, v0")
    e("v_and_b32 v7, 7, v0")
    e("v_lshlrev_b32 v5, 16, v6")
    e("v_lshl_add_u32 v5, v7, 4, v5")
    e("v_lshlrev_b32 v6, 4, v6")
    e(f"s_lshl_b32 s{sT1}, s{sLO}, 8")
    e(f"s_lshl_b32 s{sT2}, s{sKW}, 6")
    e(f"s_add_u32 s{sT1}, s{sT1}, s{sT2}")
    e(f"s_lshl_b32 s{sT2}, s{sT1}, 13")
    e(f"s_lshl_b32 s{sT3}, s5, 10")
    e(f"s_add_u32 s{sT2}, s{sT2}, s{sT3}")
    e(f"s_lshl_b32 s{sT3}, s{sHI}, 7")
    e(f"s_add_u32 s{sT2}, s{sT2}, s{sT3}")
    e(f"s_lshl_b32 s{sT1}, s{sT1}, 1")
    e("s_waitcnt lgkmcnt(0)")
    stamp(8)
    e("s_cmp_eq_u32 s4, 0")
    e(f"s_cselect_b64 s[{sWQ}:{sWQ+1}], s[14:15], s[24:25]")
    e(f"s_cselect_b64 s[{sX}:{sX+1}], s[8:9], s[18:19]")
    e(f"s_cselect_b64 s[{sV}:{sV+1}], s[12:13], s[22:23]")
    addr64(sA, sWQ, sT2)
    for t in range(8):
        e(f"global_load_dwordx4 v[{vWQ+4*t}:{vWQ+4*t+3}], v5, s[{sA}:{sA+1}]{NT}")
        if t < 7:
            e(f"s_add_u32 s{sA}, s{sA}, 8192")
            e(f"s_addc_u32 s{sA+1}, s{sA+1}, 0")
    stamp(9)
    addr64(sX, sX, sT1)
    e(f"global_load_dwordx4 v[{vXX}:{vXX+3}], v6, s[{sX}:{sX+1}]")
    e(f"global_load_dwordx4 v[{vXX+4}:{vXX+7}], v6, s[{sX}:{sX+1}] offset:1024")
    if o.kdelay: e("s_barrier")
    else: e("s_barrier")
    stamp(1)
    e(f"s_lshl_b32 s{sT3}, s4, 8")
    e(f"s_load_dword s{sEP}, s[{sWS}:{sWS+1}], s{sT3}")
    addr64(sV, sV, sT0)
    masks()
    e(f"s_mov_b32 s{sSEL_LO}, 0x01000100")
    e(f"s_mov_b32 s{sSEL_HI}, 0x03020302")
    for i in range(8):
        e(f"v_mov_b32 v{vQA+i}, 0")
    e("s_waitcnt vmcnt(0)")
    stamp(2)
    def bbuild(dst, src, sel, tmp):
        e(f"v_perm_b32 v{tmp}, v{src}, v{src}, s{sel}")
        for r in range(4):
            e(f"v_and_b32 v{dst+r}, v{tmp}, v{vM+r}")
    for t in range(8):
        sel = sSEL_HI if (t & 1) else sSEL_LO
        bbuild(vBB, vXX + (t >> 1), sel, 10)
        bbuild(vBB+4, vXX + 4 + (t >> 1), sel, 11)
        e(f"v_mfma_f32_16x16x32_bf16 v[{vQA}:{vQA+3}], v[{vWQ+4*t}:{vWQ+4*t+3}], v[{vBB}:{vBB+3}], v[{vQA}:{vQA+3}]")
        e("s_nop 0")
        e(f"v_mfma_f32_16x16x32_bf16 v[{vQA+4}:{vQA+7}], v[{vWQ+4*t}:{vWQ+4*t+3}], v[{vBB+4}:{vBB+7}], v[{vQA+4}:{vQA+7}]")
    e(f"s_lshl_b32 s{sT1}, s{sKW}, 11")
    e(f"v_lshlrev_b32 v10, 2, v0")
    e(f"v_add_u32 v10, s{sT1}, v10")
    e("s_nop 6")
    for b in range(2):
        e(f"ds_write2st64_b32 v10, v{vQA+4*b}, v{vQA+4*b+1} offset0:{4*b} offset1:{4*b+1}")
        e(f"ds_write2st64_b32 v10, v{vQA+4*b+2}, v{vQA+4*b+3} offset0:{4*b+2} offset1:{4*b+3}")
    lds_signal(1)
    e(f"s_add_u32 s{sTAG}, s{sEP}, 0x9e3779b9")
    cm("publish q (wave 4 only)")
    e("s_cmp_eq_u32 s3, 4")
    e("s_cbranch_scc0 L_noqpub")
    e("v_lshrrev_b32 v10, 5, v0")
    e("v_lshlrev_b32 v10, 10, v10")
    e("v_bfe_u32 v11, v0, 2, 2")
    e("v_lshl_add_u32 v10, v11, 8, v10")
    e("v_bfe_u32 v11, v0, 4, 1")
    e("v_lshl_add_u32 v10, v11, 6, v10")
    e("v_and_b32 v11, 3, v0")
    e("v_lshl_add_u32 v10, v11, 3, v10")
    e(f"s_lshl_b32 s{sT1}, s{sCL}, 14")
    e(f"s_lshl_b32 s{sT2}, s{sLO}, 12")
    e(f"s_add_u32 s{sT1}, s{sT1}, s{sT2}")
    e(f"s_lshl_b32 s{sT2}, s{sHI}, 9")
    e(f"s_add_u32 s{sT1}, s{sT1}, s{sT2}")
    e(f"s_add_u32 s{sT1}, s{sT1}, {WS_Q}")
    addr64(sA, sWS, sT1)
    e("v_lshrrev_b32 v11, 5, v0")
    e("v_lshlrev_b32 v11, 13, v11")
    e("v_and_b32 v12, 31, v0")
    e("v_lshl_add_u32 v11, v12, 4, v11")
    lds_wait(1, 4)
    base = 80
    for kw in range(4):
        e(f"ds_read_b64 v[{base+4*kw}:{base+4*kw+1}], v10 offset:{L_QP+kw*2048}")
        e(f"ds_read_b64 v[{base+4*kw+2}:{base+4*kw+3}], v10 offset:{L_QP+kw*2048+160}")
    e(f"v_mov_b32 v13, s{sTAG}")
    e(f"v_mov_b32 v15, s{sTAG}")
    e("s_waitcnt lgkmcnt(0)")
    for i in range(0, 16, 4):
        e(f"v_add_f32 v{base+i}, v{base+i}, v{base+i+2}")
        e(f"v_add_f32 v{base+i+1}, v{base+i+1}, v{base+i+3}")
    e(f"v_add_f32 v{base}, v{base}, v{base+4}")
    e(f"v_add_f32 v{base+1}, v{base+1}, v{base+5}")
    e(f"v_add_f32 v{base+8}, v{base+8}, v{base+12}")
    e(f"v_add_f32 v{base+9}, v{base+9}, v{base+13}")
    e(f"v_add_f32 v12, v{base}, v{base+8}")
    e(f"v_add_f32 v14, v{base+1}, v{base+9}")
    e(f"global_store_dwordx4 v11, v[12:15], s[{sA}:{sA+1}] sc1")
    lab("L_noqpub")
    stamp(3)
    e("v_lshlrev_b32 v5, 4, v0")
    for t in range(16):
        if t == 8:
            e(f"s_add_u32 s{sV}, s{sV}, 8192")
            e(f"s_addc_u32 s{sV+1}, s{sV+1}, 0")
        if t >= o.wv: e(f"s_waitcnt vmcnt({o.wv-1})")
        e(f"global_load_dwordx4 v[{vVV+4*t}:{vVV+4*t+3}], v5, s[{sV}:{sV+1}] offset:{(t%8)*1024-4096}{NT}")
    stamp(4)
    e("v_and_b32 v10, 1, v0")
    e("v_lshlrev_b32 v10, 4, v10")
    e("v_mov_b32 v11, 0xffff")
    e("v_lshlrev_b32 v11, v10, v11")
    e("v_and_b32 v10, 2, v0")
    e("v_cmp_eq_u32 vcc, 0, v10")
    e("v_lshrrev_b32 v8, 2, v0")
    e("v_mul_u32_u24 v8, 80, v8")
    e("v_cndmask_b32 v6, 0, v11, vcc")
    e("v_xor_b32 v7, v6, v11")
    e(f"s_mul_i32 s{sT2}, s{sKW}, 1280")
    e(f"v_add_u32 v8, s{sT2}, v8")
    e("v_bfe_u32 v9, v0, 2, 2")
    e("v_lshlrev_b32 v9, 5, v9")
    for i in range(8):
        e(f"v_mov_b32 v{vACC+i}, 0")
    lds_wait(4, 4)
    stamp(5)
    for G in range(4):
        e(f"ds_read_b128 v[{vPV+4*G}:{vPV+4*G+3}], v8 offset:{L_PL+16*G}")
    e(f"ds_read_b128 v[136:139], v9 offset:{L_ML}")
    e(f"ds_read_b128 v[140:143], v9 offset:{L_ML+16}")
    e(f"s_lshl_b32 s{sT1}, s{sKW}, 3")
    e(f"v_add_u32 v9, s{sT1}, v9")
    e(f"ds_read_b32 v144, v9 offset:{L_ML}")
    e("s_waitcnt lgkmcnt(3)")
    for t in range(16):
        e(f"v_and_b32 v{vX+2*t}, v{vPV+t}, v6")
        e(f"v_and_b32 v{vX+2*t+1}, v{vPV+t}, v7")
    e("s_waitcnt lgkmcnt(0)")
    e("v_max3_f32 v145, v136, v138, v140")
    e("v_max_f32 v145, v145, v142")
    e("v_sub_f32 v144, v144, v145")
    e("v_exp_f32 v144, v144")
    cm("PV")
    for t in range(16):
        e(f"s_waitcnt vmcnt({15-t})")
        for u in range(2):
            e(f"v_mfma_f32_16x16x16_bf16 v[{vACC+4*u}:{vACC+4*u+3}], v[{vVV+4*t+2*u}:{vVV+4*t+2*u+1}], v[{vX+2*t}:{vX+2*t+1}], v[{vACC+4*u}:{vACC+4*u+3}]")
    stamp(6)
    e("v_lshlrev_b32 v10, 5, v0")
    e(f"s_lshl_b32 s{sT1}, s{sKW}, 11")
    e(f"v_add_u32 v10, s{sT1}, v10")
    e("s_nop 5")
    for i in range(4):
        for u in range(2):
            e(f"v_mul_f32 v{136+2*i+u}, v{vACC+4*u+i}, v144")
    e(f"ds_write_b128 v10, v[136:139] offset:{L_OP}")
    e(f"ds_write_b128 v10, v[140:143] offset:{L_OP+16}")
    lds_signal(5)
    stamp(7)
    e("s_branch L_fin")

    lab("L_kpath")
    e("v_bfe_u32 v8, v0, 2, 2")
    e("v_lshlrev_b32 v8, 8, v8")
    e("v_lshrrev_b32 v9, 4, v0")
    e("v_lshl_add_u32 v8, v9, 6, v8")
    e("v_and_b32 v9, 3, v0")
    e("v_lshl_add_u32 v8, v9, 4, v8")
    cm("zero LDS counters (wave 0)")
    e("v_lshlrev_b32 v10, 2, v0")
    e("v_mov_b32 v11, 0")
    e(f"ds_write_b32 v10, v11 offset:{L_CT}")
    e("s_waitcnt lgkmcnt(0)")
    e("s_cmp_eq_u32 s4, 0")
    e(f"s_cselect_b64 s[{sK}:{sK+1}], s[10:11], s[20:21]")
    e(f"s_cselect_b64 s[{sWO}:{sWO+1}], s[16:17], s[26:27]")
    addr64(sK, sK, sT0)
    e("s_barrier")
    if o.touch:
        e("v_mov_b32 v10, 0")
        e(f"v_mov_b32 v11, {WS_F + 0x80000}")
        e(f"global_load_dword v180, v10, s[{sOUT}:{sOUT+1}]")
        e(f"global_load_dword v181, v11, s[{sWS}:{sWS+1}]")
    for t in range(16):
        if t == 8:
            e(f"s_add_u32 s{sK}, s{sK}, 8192")
            e(f"s_addc_u32 s{sK+1}, s{sK+1}, 0")
        if t >= o.wk: e(f"s_waitcnt vmcnt({o.wk-1})")
        e(f"global_load_dwordx4 v[{vKK+4*t}:{vKK+4*t+3}], v8, s[{sK}:{sK+1}] offset:{(t%8)*1024-4096}{NT}")
    stamp(1)
    e(f"s_lshl_b32 s{sT3}, s4, 8")
    e(f"s_load_dword s{sEP}, s[{sWS}:{sWS+1}], s{sT3}")
    masks()
    e("v_and_b32 v10, 3, v0")
    e(f"v_cmp_eq_u32 s[{sM1}:{sM1+1}], 1, v10")
    e(f"v_cmp_eq_u32 s[{sM2}:{sM2+1}], 2, v10")
    e(f"v_cmp_eq_u32 s[{sM3}:{sM3+1}], 3, v10")
    e(f"s_lshl_b32 s{sT1}, s{sCL}, 1")
    e(f"s_add_u32 s{sT1}, s{sT1}, s{sB}")
    e(f"s_lshl_b32 s{sT1}, s{sT1}, 13")
    e(f"s_lshl_b32 s{sT2}, s3, 10")
    e(f"s_add_u32 s{sT1}, s{sT1}, s{sT2}")
    e(f"s_add_u32 s{sT1}, s{sT1}, {WS_Q+4096}")
    addr64(sA, sWS, sT1)
    e("v_lshlrev_b32 v12, 4, v0")
    e(f"s_mov_b32 s{sCNT}, {o.spin}")
    e("s_waitcnt lgkmcnt(0)")
    e(f"s_add_u32 s{sTAG}, s{sEP}, 0x9e3779b9")
    lab("L_pollq")
    e(f"global_load_dwordx4 v[{vP0}:{vP0+3}], v12, s[{sA}:{sA+1}] offset:-4096 sc1")
    e(f"global_load_dwordx4 v[{vP0+4}:{vP0+7}], v12, s[{sA}:{sA+1}] sc1")
    e("s_waitcnt vmcnt(0)")
    tagcheck([vP0+1, vP0+3, vP0+5, vP0+7])
    e("s_cbranch_scc1 L_gotq")
    e(f"s_sub_u32 s{sCNT}, s{sCNT}, 1")
    e(f"s_cmp_lg_u32 s{sCNT}, 0")
    e("s_cbranch_scc1 L_pollq")
    lab("L_gotq")
    stamp(2)
    stampcnt(11)
    e(f"v_add_f32 v{vP0}, v{vP0}, v{vP0+4}")
    e(f"v_add_f32 v{vP0+2}, v{vP0+2}, v{vP0+6}")
    e(f"s_lshl_b32 s{sT1}, s3, 8")
    e(f"v_lshlrev_b32 v10, 2, v0")
    e(f"v_cvt_pk_bf16_f32 v11, v{vP0}, v{vP0+2}")
    e(f"v_add_u32 v10, s{sT1}, v10")
    e(f"ds_write_b32 v10, v11 offset:{L_QL}")
    lds_signal(2)
    e(f"v_add_u32 v10, {L_QL}, v8")
    lds_wait(2, 4)
    e(f"ds_read_b128 v[{vQ}:{vQ+3}], v10")
    e("s_waitcnt lgkmcnt(0)")
    stamp(3)
    def dreg(G, a): return vD + (G & 1)*16 + a*4
    def mf(G, a):
        t = 4*G + a; d = dreg(G, a)
        e(f"v_mfma_f32_16x16x32_bf16 v[{d}:{d+3}], v[{vKK+4*t}:{vKK+4*t+3}], v[{vQ}:{vQ+3}], 0")
    def dpp(G, step):
        for a in range(4):
            d = dreg(G, a) + step; sdst = vS + 4*G + a
            qp = f"quad_perm:[{step},{step},{step},{step}] row_mask:0xf bank_mask:0xf"
            if step == 0: e(f"v_mov_b32_dpp v{sdst}, v{d} {qp}")
            else: e(f"v_add_f32_dpp v{sdst}, v{d}, v{sdst} {qp}")
    for a in range(4): mf(0, a)
    for G in range(1, 4):
        for a in range(4):
            mf(G, a)
            if a == 0: e("s_nop 4")
            dpp(G-1, a)
    e("s_nop 4")
    for st in range(4): dpp(3, st)
    for G in range(4):
        e(f"v_cndmask_b32 v{vR+G}, v{vS+4*G}, v{vS+4*G+1}, s[{sM1}:{sM1+1}]")
    for G in range(4):
        e(f"v_cndmask_b32 v{vR+G}, v{vR+G}, v{vS+4*G+2}, s[{sM2}:{sM2+1}]")
    for G in range(4):
        e(f"v_cndmask_b32 v{vR+G}, v{vR+G}, v{vS+4*G+3}, s[{sM3}:{sM3+1}]")
    def quadrow_reduce(v, op, t1):
        e("s_nop 1")
        e(f"{op}_dpp v{v}, v{v}, v{v} quad_perm:[1,0,3,2] row_mask:0xf bank_mask:0xf")
        e("s_nop 1")
        e(f"{op}_dpp v{v}, v{v}, v{v} quad_perm:[2,3,0,1] row_mask:0xf bank_mask:0xf")
        e("s_nop 0")
        e(f"v_mov_b32 v{t1}, v{v}")
        e("s_nop 1")
        e(f"v_permlane16_swap_b32 v{v}, v{t1}")
        e("s_nop 1")
        e(f"{op} v{v}, v{v}, v{t1}")
        e(f"v_mov_b32 v{t1}, v{v}")
        e("s_nop 1")
        e(f"v_permlane32_swap_b32 v{v}, v{t1}")
        e("s_nop 1")
        e(f"{op} v{v}, v{v}, v{t1}")
    e(f"v_max3_f32 v10, v{vR}, v{vR+1}, v{vR+2}")
    e(f"v_max_f32 v10, v10, v{vR+3}")
    quadrow_reduce(10, "v_max_f32", 11)
    e(f"s_mov_b32 s{sC1}, 0x3e0293ee")
    e(f"v_mul_f32 v10, s{sC1}, v10")
    for G in range(4):
        e(f"v_fma_f32 v{vR+G}, v{vR+G}, s{sC1}, -v10")
    for G in range(4):
        e(f"v_exp_f32 v{vR+G}, v{vR+G}")
    e("v_lshrrev_b32 v14, 2, v0")
    e("v_mul_u32_u24 v14, 80, v14")
    e(f"v_add_f32 v12, v{vR}, v{vR+1}")
    e(f"v_add_f32 v13, v{vR+2}, v{vR+3}")
    for G in range(4):
        e(f"v_cvt_pk_bf16_f32 v{vR+G}, v{vR+G}, v{vR+G}")
    e(f"v_add_f32 v12, v12, v13")
    e("v_and_b32 v15, 3, v0")
    e("v_lshl_add_u32 v14, v15, 2, v14")
    e(f"s_mul_i32 s{sT1}, s3, 1280")
    e(f"v_add_u32 v14, s{sT1}, v14")
    for G in range(4):
        e(f"ds_write_b32 v14, v{vR+G} offset:{L_PL+16*G}")
    quadrow_reduce(12, "v_add_f32", 13)
    e("v_mov_b32 v11, v12")
    e("v_lshlrev_b32 v14, 3, v0")
    e(f"s_lshl_b32 s{sT1}, s3, 3")
    e(f"v_add_u32 v14, s{sT1}, v14")
    e("s_mov_b64 exec, 0x1111")
    e(f"ds_write_b64 v14, v[10:11] offset:{L_ML}")
    e("s_mov_b64 exec, -1")
    lds_signal(4)
    stamp(4)
    cm("wo loads: wave k rows 64rb + 16k + 4rg + c (rg 0..3), 2 col halves")
    e(f"s_lshl_b32 s{sT1}, s5, 19")
    e(f"s_lshl_b32 s{sT2}, s{sHI}, 16")
    e(f"s_add_u32 s{sT1}, s{sT1}, s{sT2}")
    e(f"s_lshl_b32 s{sT2}, s3, 14")
    e(f"s_add_u32 s{sT1}, s{sT1}, s{sT2}")
    e(f"s_lshl_b32 s{sT2}, s{sLO}, 9")
    e(f"s_add_u32 s{sT1}, s{sT1}, s{sT2}")
    e(f"s_add_u32 s{sT1}, s{sT1}, 4096")
    addr64(sA2, sWO, sT1)
    e("v_lshrrev_b32 v13, 4, v0")
    e("v_lshlrev_b32 v13, 10, v13")
    e("v_and_b32 v14, 15, v0")
    e("v_lshl_add_u32 v13, v14, 4, v13")
    for rg in range(4):
        if rg == 2:
            e(f"s_add_u32 s{sA2}, s{sA2}, 8192")
            e(f"s_addc_u32 s{sA2+1}, s{sA2+1}, 0")
        for hf in range(2):
            i = rg*2+hf
            e(f"global_load_dwordx4 v[{vWO+4*i}:{vWO+4*i+3}], v13, s[{sA2}:{sA2+1}] offset:{(rg&1)*4096-4096+hf*256}{NT}")
    cm("publish (M,L) from wave 0 after all P ready")
    e("s_cmp_eq_u32 s3, 0")
    e("s_cbranch_scc0 L_nomlpub")
    e("v_bfe_u32 v9, v0, 2, 2")
    e("v_lshlrev_b32 v9, 5, v9")
    e(f"s_lshl_b32 s{sT1}, s{sCL}, 4")
    e(f"s_add_u32 s{sT1}, s{sT1}, s6")
    e(f"s_lshl_b32 s{sT1}, s{sT1}, 6")
    e(f"s_add_u32 s{sT1}, s{sT1}, {WS_ML}")
    addr64(sA, sWS, sT1)
    lds_wait(4, 4)
    e(f"ds_read_b128 v[80:83], v9 offset:{L_ML}")
    e(f"ds_read_b128 v[84:87], v9 offset:{L_ML+16}")
    e("v_lshlrev_b32 v11, 2, v0")
    e("s_waitcnt lgkmcnt(0)")
    e("v_max3_f32 v12, v80, v82, v84")
    e("v_max_f32 v12, v12, v86")
    for r in (80, 82, 84, 86): e(f"v_sub_f32 v{r}, v{r}, v12")
    for r in (80, 82, 84, 86): e(f"v_exp_f32 v{r}, v{r}")
    e(f"v_mov_b32 v13, s{sTAG}")
    e("v_mul_f32 v14, v80, v81")
    e("v_fmac_f32 v14, v82, v83")
    e("v_fmac_f32 v14, v84, v85")
    e("v_fmac_f32 v14, v86, v87")
    e(f"v_mov_b32 v15, s{sTAG}")
    e("s_mov_b64 exec, 0x1111")
    e(f"global_store_dwordx4 v11, v[12:15], s[{sA}:{sA+1}] sc1")
    e("s_mov_b64 exec, -1")
    lab("L_nomlpub")
    cm("publish o: wave=grp; p'=l&3, i''=(l>>2)&3, h=l>>4")
    e("v_lshrrev_b32 v10, 4, v0")
    e("v_lshlrev_b32 v10, 7, v10")
    e("v_and_b32 v11, 3, v0")
    e("v_lshl_add_u32 v10, v11, 5, v10")
    e("v_bfe_u32 v11, v0, 2, 2")
    e("v_lshl_add_u32 v10, v11, 3, v10")
    e(f"s_lshl_b32 s{sT1}, s3, 9")
    e(f"v_add_u32 v10, s{sT1}, v10")
    e(f"s_lshl_b32 s{sT1}, s{sCL}, 4")
    e(f"s_add_u32 s{sT1}, s{sT1}, s6")
    e(f"s_lshl_b32 s{sT1}, s{sT1}, 12")
    e(f"s_lshl_b32 s{sT2}, s3, 8")
    e(f"s_add_u32 s{sT1}, s{sT1}, s{sT2}")
    e(f"s_add_u32 s{sT1}, s{sT1}, {WS_O}")
    addr64(sA, sWS, sT1)
    e("v_lshrrev_b32 v11, 4, v0")
    e("v_lshlrev_b32 v11, 10, v11")
    e("v_and_b32 v12, 15, v0")
    e("v_lshl_add_u32 v11, v12, 4, v11")
    lds_wait(5, 4)
    stamp(5)
    for vw in range(4):
        e(f"ds_read_b64 v[{vP0+2*vw}:{vP0+2*vw+1}], v10 offset:{L_OP+vw*2048}")
    e(f"v_mov_b32 v13, s{sTAG}")
    e(f"v_mov_b32 v15, s{sTAG}")
    e("s_waitcnt lgkmcnt(0)")
    e(f"v_add_f32 v12, v{vP0}, v{vP0+2}")
    e(f"v_add_f32 v14, v{vP0+1}, v{vP0+3}")
    e(f"v_add_f32 v{vP0+4}, v{vP0+4}, v{vP0+6}")
    e(f"v_add_f32 v{vP0+5}, v{vP0+5}, v{vP0+7}")
    e(f"v_add_f32 v12, v12, v{vP0+4}")
    e(f"v_add_f32 v14, v14, v{vP0+5}")
    e(f"global_store_dwordx4 v11, v[12:15], s[{sA}:{sA+1}] sc1")
    if o.prof:
        e("s_waitcnt vmcnt(1)")
        stamp(14)
        e("s_waitcnt vmcnt(0)")
        stamp(15)
    cm("hop 2 poll: lane (s=l&7, b=(l>>3)&1, c=l>>4); wave k covers r8 = rb*8 + 2k + {0,1}")
    e(f"s_lshl_b32 s{sT1}, s{sCL}, 16")
    e(f"s_lshl_b32 s{sT2}, s{sHI}, 9")
    e(f"s_add_u32 s{sT1}, s{sT1}, s{sT2}")
    e(f"s_lshl_b32 s{sT2}, s3, 7")
    e(f"s_add_u32 s{sT1}, s{sT1}, s{sT2}")
    e(f"s_add_u32 s{sT1}, s{sT1}, {WS_O}")
    addr64(sA, sWS, sT1)
    e("v_and_b32 v10, 15, v0")
    e("v_lshlrev_b32 v11, 12, v10")
    e("v_lshrrev_b32 v12, 4, v0")
    e("v_lshl_add_u32 v11, v12, 4, v11")
    e(f"s_lshl_b32 s{sT1}, s{sCL}, 10")
    e(f"s_lshr_b32 s{sT2}, s{sHI}, 1")
    e(f"s_lshl_b32 s{sT2}, s{sT2}, 4")
    e(f"s_add_u32 s{sT1}, s{sT1}, s{sT2}")
    e(f"s_add_u32 s{sT1}, s{sT1}, {WS_ML}")
    addr64(sA2, sWS, sT1)
    e("v_lshlrev_b32 v10, 6, v10")
    e(f"s_mov_b32 s{sCNT}, {o.spin}")
    vP = 80
    lab("L_pollo")
    e(f"global_load_dwordx4 v[{vP}:{vP+3}], v11, s[{sA}:{sA+1}] sc1")
    e(f"global_load_dwordx4 v[{vP+4}:{vP+7}], v11, s[{sA}:{sA+1}] offset:64 sc1")
    e(f"global_load_dwordx4 v[{vP+8}:{vP+11}], v10, s[{sA2}:{sA2+1}] sc1")
    e("s_waitcnt vmcnt(0)")
    tagcheck([vP+1, vP+3, vP+5, vP+7, vP+9, vP+11])
    e("s_cbranch_scc1 L_goto")
    e(f"s_sub_u32 s{sCNT}, s{sCNT}, 1")
    e(f"s_cmp_lg_u32 s{sCNT}, 0")
    e("s_cbranch_scc1 L_pollo")
    lab("L_goto")
    stamp(6)
    stampcnt(12)
    os_ = [vP, vP+2, vP+4, vP+6]; vMm, vLl = vP+8, vP+10
    e(f"v_mov_b32 v12, v{vMm}")
    e("s_nop 1")
    for pat in ["quad_perm:[1,0,3,2]", "quad_perm:[2,3,0,1]", "row_half_mirror"]:
        e(f"v_max_f32_dpp v12, v12, v12 {pat} row_mask:0xf bank_mask:0xf")
        e("s_nop 1")
    e(f"v_sub_f32 v12, v{vMm}, v12")
    e("v_exp_f32 v12, v12")
    e("s_nop 0")
    e(f"v_mul_f32 v{vLl}, v{vLl}, v12")
    for r in os_: e(f"v_mul_f32 v{r}, v{r}, v12")
    for pat in ["quad_perm:[1,0,3,2]", "quad_perm:[2,3,0,1]", "row_half_mirror"]:
        for r in [vLl] + os_:
            e(f"v_add_f32_dpp v{r}, v{r}, v{r} {pat} row_mask:0xf bank_mask:0xf")
    e(f"v_rcp_f32 v{vLl}, v{vLl}")
    e("s_nop 0")
    for r in os_: e(f"v_mul_f32 v{r}, v{r}, v{vLl}")
    for r in os_: e(f"v_cvt_pk_bf16_f32 v{r}, v{r}, v{r}")
    vBq = 96
    for q in range(4):
        for r in range(4):
            e(f"v_and_b32 v{vBq+4*q+r}, v{os_[q]}, v{vM+r}")
    vD0 = 112
    e("s_nop 1")
    for rg in range(4):
        for hf in range(2):
            i = rg*2+hf
            c = "0" if rg == 0 else f"v[{vD0+4*hf}:{vD0+4*hf+3}]"
            e(f"v_mfma_f32_16x16x32_bf16 v[{vD0+4*hf}:{vD0+4*hf+3}], v[{vWO+4*i}:{vWO+4*i+3}], v[{vBq+4*rg}:{vBq+4*rg+3}], {c}")
    e(f"s_lshl_b32 s{sT1}, s3, 11")
    e("v_lshlrev_b32 v10, 2, v0")
    e(f"v_add_u32 v10, s{sT1}, v10")
    e("s_nop 6")
    for hf in range(2):
        e(f"ds_write2st64_b32 v10, v{vD0+4*hf}, v{vD0+4*hf+1} offset0:{L_FP//256+4*hf} offset1:{L_FP//256+4*hf+1}")
        e(f"ds_write2st64_b32 v10, v{vD0+4*hf+2}, v{vD0+4*hf+3} offset0:{L_FP//256+4*hf+2} offset1:{L_FP//256+4*hf+3}")
    lds_signal(6)
    e(f"s_lshl_b32 s{sT1}, s3, 9")
    e("v_lshlrev_b32 v10, 3, v0")
    e(f"v_add_u32 v10, s{sT1}, v10")
    e(f"s_lshl_b32 s{sT1}, s4, 19")
    e(f"s_lshl_b32 s{sT2}, s{sLO}, 18")
    e(f"s_add_u32 s{sT1}, s{sT1}, s{sT2}")
    e(f"s_lshl_b32 s{sT2}, s3, 16")
    e(f"s_add_u32 s{sT1}, s{sT1}, s{sT2}")
    e(f"s_lshl_b32 s{sT2}, s5, 9")
    e(f"s_add_u32 s{sT1}, s{sT1}, s{sT2}")
    e(f"s_lshl_b32 s{sT2}, s{sHI}, 6")
    e(f"s_add_u32 s{sT1}, s{sT1}, s{sT2}")
    e(f"s_add_u32 s{sT1}, s{sT1}, {WS_F}")
    addr64(sA, sWS, sT1)
    e("v_lshrrev_b32 v11, 2, v0")
    e("v_lshlrev_b32 v11, 12, v11")
    e("v_and_b32 v12, 3, v0")
    e("v_lshl_add_u32 v11, v12, 4, v11")
    lds_wait(6, 4)
    stamp(7)
    for wv in range(4):
        e(f"ds_read_b64 v[{16+2*wv}:{16+2*wv+1}], v10 offset:{L_FP+wv*2048}")
    e(f"v_mov_b32 v13, s{sTAG}")
    e(f"v_mov_b32 v15, s{sTAG}")
    e("s_waitcnt lgkmcnt(0)")
    e("v_add_f32 v16, v16, v18")
    e("v_add_f32 v17, v17, v19")
    e("v_add_f32 v20, v20, v22")
    e("v_add_f32 v21, v21, v23")
    e("v_add_f32 v12, v16, v20")
    e("v_add_f32 v14, v17, v21")
    e(f"global_store_dwordx4 v11, v[12:15], s[{sA}:{sA+1}] sc1")
    e("s_cmp_eq_u32 s3, 0")
    e("s_cbranch_scc0 L_fin")
    cm("hop 3 poll (wave 0)")
    e(f"s_lshl_b32 s{sT1}, s2, 12")
    e(f"s_add_u32 s{sT1}, s{sT1}, {WS_F}")
    addr64(sA, sWS, sT1)
    e("v_lshlrev_b32 v11, 4, v0")
    e(f"s_mov_b32 s{sCNT}, {o.spin}")
    stamp(8)
    lab("L_pollf")
    for q in range(4):
        e(f"global_load_dwordx4 v[{16+4*q}:{16+4*q+3}], v11, s[{sA}:{sA+1}] offset:{q*1024} sc1")
    e("s_waitcnt vmcnt(0)")
    tagcheck([17, 19, 21, 23, 25, 27, 29, 31])
    e("s_cbranch_scc1 L_gotf")
    e(f"s_sub_u32 s{sCNT}, s{sCNT}, 1")
    e(f"s_cmp_lg_u32 s{sCNT}, 0")
    e("s_cbranch_scc1 L_pollf")
    lab("L_gotf")
    stamp(9)
    stampcnt(13)
    e("v_add_f32 v16, v16, v20")
    e("v_add_f32 v18, v18, v22")
    e("v_add_f32 v24, v24, v28")
    e("v_add_f32 v26, v26, v30")
    e("v_add_f32 v16, v16, v24")
    e("v_add_f32 v18, v18, v26")
    e("s_nop 1")
    for pat in ["row_ror:4", "row_ror:8"]:
        e(f"v_add_f32_dpp v16, v16, v16 {pat} row_mask:0xf bank_mask:0xf")
        e(f"v_add_f32_dpp v18, v18, v18 {pat} row_mask:0xf bank_mask:0xf")
        e("s_nop 1")
    for sw in ["v_permlane16_swap_b32", "v_permlane32_swap_b32"]:
        e("v_mov_b32 v20, v16")
        e("v_mov_b32 v22, v18")
        e("s_nop 1")
        e(f"{sw} v16, v20")
        e(f"{sw} v18, v22")
        e("s_nop 1")
        e("v_add_f32 v16, v16, v20")
        e("v_add_f32 v18, v18, v22")
    e("v_cvt_pk_bf16_f32 v16, v16, v18")
    e(f"s_and_b32 s{sT1}, s2, 1")
    e(f"s_lshl_b32 s{sT1}, s{sT1}, 11")
    e(f"s_lshl_b32 s{sT2}, s4, 10")
    e(f"s_add_u32 s{sT1}, s{sT1}, s{sT2}")
    e(f"s_bfe_u32 s{sT2}, s2, 0x20005")
    e(f"s_lshl_b32 s{sT2}, s{sT2}, 8")
    e(f"s_add_u32 s{sT1}, s{sT1}, s{sT2}")
    e(f"s_bfe_u32 s{sT2}, s2, 0x20001")
    e(f"s_lshl_b32 s{sT2}, s{sT2}, 6")
    e(f"s_add_u32 s{sT1}, s{sT1}, s{sT2}")
    e(f"s_bfe_u32 s{sT2}, s2, 0x20003")
    e(f"s_lshl_b32 s{sT2}, s{sT2}, 4")
    e(f"s_add_u32 s{sT1}, s{sT1}, s{sT2}")
    addr64(sA, sOUT, sT1)
    e("v_lshlrev_b32 v11, 2, v0")
    e("s_mov_b64 exec, 0xf")
    e(f"global_store_dword v11, v16, s[{sA}:{sA+1}]")
    e(f"s_and_b32 s{sT1}, s2, 127")
    e(f"s_cmp_eq_u32 s{sT1}, 0")
    e("s_cbranch_scc0 L_fin")
    e(f"s_lshl_b32 s{sT1}, s4, 8")
    e(f"v_mov_b32 v11, s{sT1}")
    e(f"v_mov_b32 v12, s{sTAG}")
    e("s_mov_b64 exec, 1")
    e(f"global_store_dword v11, v12, s[{sWS}:{sWS+1}]")
    lab("L_fin")
    if o.prof:
        stamp(10)
        e("s_waitcnt lgkmcnt(0)")
        e("s_mov_b64 exec, 1")
        e(f"s_lshl_b32 s{sT1}, s2, 3")
        e(f"s_add_u32 s{sT1}, s{sT1}, s3")
        e(f"s_lshl_b32 s{sT1}, s{sT1}, 7")
        e(f"s_add_u32 s{sT1}, s{sT1}, {WS_PROF}")
        e(f"v_mov_b32 v11, s{sT1}")
        for i in range(NST):
            e(f"v_mov_b32 v12, s{sST+2*i}")
            e(f"global_store_dword v11, v12, s[{sWS}:{sWS+1}] offset:{4*i}")
            e("s_nop 1")
    lab("L_end")
    e("s_endpgm")
    L.append('.section .rodata,"a"')
    L.append(".p2align 6")
    L.append(f".amdhsa_kernel {NAME}_kernel")
    L.append(f"  .amdhsa_next_free_vgpr {NV}")
    L.append("  .amdhsa_next_free_sgpr 100")
    L.append(f"  .amdhsa_accum_offset {NV}")
    L.append("  .amdhsa_group_segment_fixed_size 0")
    L.append("  .amdhsa_kernarg_size 104")
    L.append("  .amdhsa_user_sgpr_count 2")
    L.append("  .amdhsa_user_sgpr_kernarg_segment_ptr 1")
    L.append("  .amdhsa_system_sgpr_workgroup_id_x 1")
    L.append(".end_amdhsa_kernel")
    return "\n".join(L) + "\n"

if __name__ == "__main__":
    o = Opt()
    out = sys.argv[1]
    for a in sys.argv[2:]:
        k, v = a.split("=")
        assert hasattr(o, k), k
        setattr(o, k, int(v))
    open(out, "w").write(gen(o))
```

```python
import sys
NAME = "concat_heads__sliding_block_cached__sliding_block_cached__decode"

class Opt:
    prof = 0
    nt = 1
    spin = 200000
    wk = 16
    wv = 16
    kdelay = 1
    touch = 1
    warm = 0

def gen(o):
    L = []
    def e(s): L.append("    " + s)
    def lab(s): L.append(s + ":")
    def cm(s): L.append("    ; " + s)
    NT = " nt" if o.nt else ""
    WS_EP = 0; WS_Q = 0x1000; WS_ML = WS_Q + 0x40000; WS_O = 0x80000; WS_F = 0x180000; WS_PROF = 0x800000
    L_QP = 0; L_OP = 0; L_QL = 8192; L_PL = 9216; L_ML = 14336; L_CT = 14592; L_FP = 16384; LDS = 32768
    sX, sK, sV, sWQ, sWO = 8, 10, 12, 14, 16
    sOUT, sDBG, sWS = 28, 30, 32
    sEP = 34; sTAG = 35; sB, sS = 36, 37; sHI, sLO = 38, 39
    sT0, sT1, sT2, sT3 = 40, 41, 42, 43
    sA = 44; sA2 = 46; sM1, sM2, sM3 = 48, 50, 52; sC = 54; sCNT = 56
    sSEL_LO, sSEL_HI = 57, 58; sC1 = 59; sCL = 60; sKW = 61; sPC = 62
    sST = 64
    NST = 16
    def stamp(i):
        if o.prof: e(f"s_memrealtime s[{sST+2*i}:{sST+2*i+1}]")
    def stampcnt(i):
        if o.prof: e(f"s_sub_u32 s{sST+2*i}, {o.spin}, s{sCNT}")
    vM = 1
    vKK = 16; vD = 80; vS = 112; vQ = 128; vR = 132; vP0 = 136; vWO = 144
    vWQ = 16; vVV = 16; vX = 80; vPV = 112; vACC = 128; vXX = 136; vBB = 144; vQA = 152
    NV = 184

    def lds_signal(idx):
        e("s_waitcnt lgkmcnt(0)")
        e(f"v_mov_b32 v14, {L_CT + 4*idx}")
        e("v_mov_b32 v15, 1")
        e("s_mov_b64 exec, 1")
        e("ds_add_u32 v14, v15")
        e("s_mov_b64 exec, -1")
    nw = [0]
    def lds_wait(idx, target):
        n = nw[0]; nw[0] += 1
        e(f"v_mov_b32 v14, {L_CT + 4*idx}")
        lab(f"L_lw{n}")
        e("ds_read_b32 v15, v14")
        e("s_waitcnt lgkmcnt(0)")
        e("v_readfirstlane_b32 s63, v15")
        e(f"s_cmp_lt_u32 s63, {target}")
        e(f"s_cbranch_scc1 L_lw{n}")
    def tagcheck(regs):
        e(f"v_cmp_eq_u32 vcc, s{sTAG}, v{regs[0]}")
        for r in regs[1:]:
            e(f"v_cmp_eq_u32 s[{sC}:{sC+1}], s{sTAG}, v{r}")
            e(f"s_and_b64 vcc, vcc, s[{sC}:{sC+1}]")
        e("s_cmp_eq_u64 vcc, exec")
    def masks():
        e("v_and_b32 v10, 1, v0")
        e("v_lshlrev_b32 v10, 4, v10")
        e("v_mov_b32 v11, 0xffff")
        e("v_lshlrev_b32 v11, v10, v11")
        e("v_bfe_u32 v10, v0, 1, 2")
        for r in range(4):
            e(f"v_cmp_eq_u32 vcc, {r}, v10")
            e("s_nop 1")
            e(f"v_cndmask_b32 v{vM+r}, 0, v11, vcc")
    def addr64(dst, base, off):
        e(f"s_add_u32 s{dst}, s{base}, s{off}")
        e(f"s_addc_u32 s{dst+1}, s{base+1}, 0")

    L.append(f"; @launch grid=(256,1,1) block=(512,1,1) lds={LDS}")
    L.append('.amdgcn_target "amdgcn-amd-amdhsa--gfx950"')
    L.append(".text")
    L.append(f".globl {NAME}_kernel")
    L.append(".p2align 8")
    L.append(f".type {NAME}_kernel,@function")
    lab(f"{NAME}_kernel")
    e("s_cmp_ge_u32 s2, 0x100")
    e("s_cbranch_scc1 L_end")
    e("s_load_dwordx16 s[8:23], s[0:1], 0")
    e("s_load_dwordx8 s[24:31], s[0:1], 64")
    e("s_load_dwordx2 s[32:33], s[0:1], 96")
    stamp(0)
    e("v_lshrrev_b32 v5, 6, v0")
    e("v_and_b32 v0, 63, v0")
    e("s_lshr_b32 s4, s2, 7")
    e("v_readfirstlane_b32 s3, v5")
    e("s_and_b32 s5, s2, 7")
    e("s_bfe_u32 s6, s2, 0x40003")
    e(f"s_lshr_b32 s{sB}, s6, 3")
    e(f"s_and_b32 s{sS}, s6, 7")
    e(f"s_lshr_b32 s{sHI}, s6, 1")
    e(f"s_and_b32 s{sLO}, s6, 1")
    e(f"s_lshl_b32 s{sCL}, s4, 3")
    e(f"s_add_u32 s{sCL}, s{sCL}, s5")
    e(f"s_and_b32 s{sKW}, s3, 3")
    e(f"s_lshl_b32 s{sT0}, s{sB}, 3")
    e(f"s_add_u32 s{sT0}, s{sT0}, s5")
    e(f"s_lshl_b32 s{sT0}, s{sT0}, 21")
    e(f"s_lshl_b32 s{sT1}, s{sS}, 16")
    e(f"s_add_u32 s{sT0}, s{sT0}, s{sT1}")
    e(f"s_lshl_b32 s{sT1}, s{sKW}, 14")
    e(f"s_add_u32 s{sT0}, s{sT0}, s{sT1}")
    e(f"s_add_u32 s{sT0}, s{sT0}, {6144*256 + 4096}")
    e("s_cmp_lt_u32 s3, 4")
    e("s_cbranch_scc1 L_kpath")

    e("v_lshrrev_b32 v6, 3, v0")
    e("v_and_b32 v7, 7, v0")
    e("v_lshlrev_b32 v5, 16, v6")
    e("v_lshl_add_u32 v5, v7, 4, v5")
    e("v_lshlrev_b32 v6, 4, v6")
    e(f"s_lshl_b32 s{sT1}, s{sLO}, 8")
    e(f"s_lshl_b32 s{sT2}, s{sKW}, 6")
    e(f"s_add_u32 s{sT1}, s{sT1}, s{sT2}")
    e(f"s_lshl_b32 s{sT2}, s{sT1}, 13")
    e(f"s_lshl_b32 s{sT3}, s5, 10")
    e(f"s_add_u32 s{sT2}, s{sT2}, s{sT3}")
    e(f"s_lshl_b32 s{sT3}, s{sHI}, 7")
    e(f"s_add_u32 s{sT2}, s{sT2}, s{sT3}")
    e(f"s_lshl_b32 s{sT1}, s{sT1}, 1")
    e("s_waitcnt lgkmcnt(0)")
    stamp(8)
    e("s_cmp_eq_u32 s4, 0")
    e(f"s_cselect_b64 s[{sWQ}:{sWQ+1}], s[14:15], s[24:25]")
    e(f"s_cselect_b64 s[{sX}:{sX+1}], s[8:9], s[18:19]")
    e(f"s_cselect_b64 s[{sV}:{sV+1}], s[12:13], s[22:23]")
    addr64(sA, sWQ, sT2)
    for t in range(8):
        e(f"global_load_dwordx4 v[{vWQ+4*t}:{vWQ+4*t+3}], v5, s[{sA}:{sA+1}]{NT}")
        if t < 7:
            e(f"s_add_u32 s{sA}, s{sA}, 8192")
            e(f"s_addc_u32 s{sA+1}, s{sA+1}, 0")
    stamp(9)
    addr64(sX, sX, sT1)
    e(f"global_load_dwordx4 v[{vXX}:{vXX+3}], v6, s[{sX}:{sX+1}]")
    e(f"global_load_dwordx4 v[{vXX+4}:{vXX+7}], v6, s[{sX}:{sX+1}] offset:1024")
    if o.kdelay: e("s_barrier")
    else: e("s_barrier")
    stamp(1)
    e(f"s_lshl_b32 s{sT3}, s4, 8")
    e(f"s_load_dword s{sEP}, s[{sWS}:{sWS+1}], s{sT3}")
    addr64(sV, sV, sT0)
    masks()
    e(f"s_mov_b32 s{sSEL_LO}, 0x01000100")
    e(f"s_mov_b32 s{sSEL_HI}, 0x03020302")
    for i in range(8):
        e(f"v_mov_b32 v{vQA+i}, 0")
    e("s_waitcnt vmcnt(0)")
    stamp(2)
    def bbuild(dst, src, sel, tmp):
        e(f"v_perm_b32 v{tmp}, v{src}, v{src}, s{sel}")
        for r in range(4):
            e(f"v_and_b32 v{dst+r}, v{tmp}, v{vM+r}")
    for t in range(8):
        sel = sSEL_HI if (t & 1) else sSEL_LO
        bbuild(vBB, vXX + (t >> 1), sel, 10)
        bbuild(vBB+4, vXX + 4 + (t >> 1), sel, 11)
        e(f"v_mfma_f32_16x16x32_bf16 v[{vQA}:{vQA+3}], v[{vWQ+4*t}:{vWQ+4*t+3}], v[{vBB}:{vBB+3}], v[{vQA}:{vQA+3}]")
        e("s_nop 0")
        e(f"v_mfma_f32_16x16x32_bf16 v[{vQA+4}:{vQA+7}], v[{vWQ+4*t}:{vWQ+4*t+3}], v[{vBB+4}:{vBB+7}], v[{vQA+4}:{vQA+7}]")
    e(f"s_lshl_b32 s{sT1}, s{sKW}, 11")
    e(f"v_lshlrev_b32 v10, 2, v0")
    e(f"v_add_u32 v10, s{sT1}, v10")
    e("s_nop 6")
    for b in range(2):
        e(f"ds_write2st64_b32 v10, v{vQA+4*b}, v{vQA+4*b+1} offset0:{4*b} offset1:{4*b+1}")
        e(f"ds_write2st64_b32 v10, v{vQA+4*b+2}, v{vQA+4*b+3} offset0:{4*b+2} offset1:{4*b+3}")
    lds_signal(1)
    e(f"s_add_u32 s{sTAG}, s{sEP}, 0x9e3779b9")
    cm("publish q (wave 4 only)")
    e("s_cmp_eq_u32 s3, 4")
    e("s_cbranch_scc0 L_noqpub")
    e("v_lshrrev_b32 v10, 5, v0")
    e("v_lshlrev_b32 v10, 10, v10")
    e("v_bfe_u32 v11, v0, 2, 2")
    e("v_lshl_add_u32 v10, v11, 8, v10")
    e("v_bfe_u32 v11, v0, 4, 1")
    e("v_lshl_add_u32 v10, v11, 6, v10")
    e("v_and_b32 v11, 3, v0")
    e("v_lshl_add_u32 v10, v11, 3, v10")
    e(f"s_lshl_b32 s{sT1}, s{sCL}, 14")
    e(f"s_lshl_b32 s{sT2}, s{sLO}, 12")
    e(f"s_add_u32 s{sT1}, s{sT1}, s{sT2}")
    e(f"s_lshl_b32 s{sT2}, s{sHI}, 9")
    e(f"s_add_u32 s{sT1}, s{sT1}, s{sT2}")
    e(f"s_add_u32 s{sT1}, s{sT1}, {WS_Q}")
    addr64(sA, sWS, sT1)
    e("v_lshrrev_b32 v11, 5, v0")
    e("v_lshlrev_b32 v11, 13, v11")
    e("v_and_b32 v12, 31, v0")
    e("v_lshl_add_u32 v11, v12, 4, v11")
    lds_wait(1, 4)
    base = 80
    for kw in range(4):
        e(f"ds_read_b64 v[{base+4*kw}:{base+4*kw+1}], v10 offset:{L_QP+kw*2048}")
        e(f"ds_read_b64 v[{base+4*kw+2}:{base+4*kw+3}], v10 offset:{L_QP+kw*2048+160}")
    e(f"v_mov_b32 v13, s{sTAG}")
    e(f"v_mov_b32 v15, s{sTAG}")
    e("s_waitcnt lgkmcnt(0)")
    for i in range(0, 16, 4):
        e(f"v_add_f32 v{base+i}, v{base+i}, v{base+i+2}")
        e(f"v_add_f32 v{base+i+1}, v{base+i+1}, v{base+i+3}")
    e(f"v_add_f32 v{base}, v{base}, v{base+4}")
    e(f"v_add_f32 v{base+1}, v{base+1}, v{base+5}")
    e(f"v_add_f32 v{base+8}, v{base+8}, v{base+12}")
    e(f"v_add_f32 v{base+9}, v{base+9}, v{base+13}")
    e(f"v_add_f32 v12, v{base}, v{base+8}")
    e(f"v_add_f32 v14, v{base+1}, v{base+9}")
    e(f"global_store_dwordx4 v11, v[12:15], s[{sA}:{sA+1}] sc1")
    lab("L_noqpub")
    stamp(3)
    e("v_lshlrev_b32 v5, 4, v0")
    for t in range(16):
        if t == 8:
            e(f"s_add_u32 s{sV}, s{sV}, 8192")
            e(f"s_addc_u32 s{sV+1}, s{sV+1}, 0")
        if t >= o.wv: e(f"s_waitcnt vmcnt({o.wv-1})")
        e(f"global_load_dwordx4 v[{vVV+4*t}:{vVV+4*t+3}], v5, s[{sV}:{sV+1}] offset:{(t%8)*1024-4096}{NT}")
    stamp(4)
    e("v_and_b32 v10, 1, v0")
    e("v_lshlrev_b32 v10, 4, v10")
    e("v_mov_b32 v11, 0xffff")
    e("v_lshlrev_b32 v11, v10, v11")
    e("v_and_b32 v10, 2, v0")
    e("v_cmp_eq_u32 vcc, 0, v10")
    e("v_lshrrev_b32 v8, 2, v0")
    e("v_mul_u32_u24 v8, 80, v8")
    e("v_cndmask_b32 v6, 0, v11, vcc")
    e("v_xor_b32 v7, v6, v11")
    e(f"s_mul_i32 s{sT2}, s{sKW}, 1280")
    e(f"v_add_u32 v8, s{sT2}, v8")
    e("v_bfe_u32 v9, v0, 2, 2")
    e("v_lshlrev_b32 v9, 5, v9")
    for i in range(8):
        e(f"v_mov_b32 v{vACC+i}, 0")
    lds_wait(4, 4)
    stamp(5)
    for G in range(4):
        e(f"ds_read_b128 v[{vPV+4*G}:{vPV+4*G+3}], v8 offset:{L_PL+16*G}")
    e(f"ds_read_b128 v[136:139], v9 offset:{L_ML}")
    e(f"ds_read_b128 v[140:143], v9 offset:{L_ML+16}")
    e(f"s_lshl_b32 s{sT1}, s{sKW}, 3")
    e(f"v_add_u32 v9, s{sT1}, v9")
    e(f"ds_read_b32 v144, v9 offset:{L_ML}")
    e("s_waitcnt lgkmcnt(3)")
    for t in range(16):
        e(f"v_and_b32 v{vX+2*t}, v{vPV+t}, v6")
        e(f"v_and_b32 v{vX+2*t+1}, v{vPV+t}, v7")
    e("s_waitcnt lgkmcnt(0)")
    e("v_max3_f32 v145, v136, v138, v140")
    e("v_max_f32 v145, v145, v142")
    e("v_sub_f32 v144, v144, v145")
    e("v_exp_f32 v144, v144")
    cm("PV")
    for t in range(16):
        e(f"s_waitcnt vmcnt({15-t})")
        for u in range(2):
            e(f"v_mfma_f32_16x16x16_bf16 v[{vACC+4*u}:{vACC+4*u+3}], v[{vVV+4*t+2*u}:{vVV+4*t+2*u+1}], v[{vX+2*t}:{vX+2*t+1}], v[{vACC+4*u}:{vACC+4*u+3}]")
    stamp(6)
    e("v_lshlrev_b32 v10, 5, v0")
    e(f"s_lshl_b32 s{sT1}, s{sKW}, 11")
    e(f"v_add_u32 v10, s{sT1}, v10")
    e("s_nop 5")
    for i in range(4):
        for u in range(2):
            e(f"v_mul_f32 v{136+2*i+u}, v{vACC+4*u+i}, v144")
    e(f"ds_write_b128 v10, v[136:139] offset:{L_OP}")
    e(f"ds_write_b128 v10, v[140:143] offset:{L_OP+16}")
    lds_signal(5)
    stamp(7)
    e("s_branch L_fin")

    lab("L_kpath")
    e("v_bfe_u32 v8, v0, 2, 2")
    e("v_lshlrev_b32 v8, 8, v8")
    e("v_lshrrev_b32 v9, 4, v0")
    e("v_lshl_add_u32 v8, v9, 6, v8")
    e("v_and_b32 v9, 3, v0")
    e("v_lshl_add_u32 v8, v9, 4, v8")
    cm("zero LDS counters (wave 0)")
    e("v_lshlrev_b32 v10, 2, v0")
    e("v_mov_b32 v11, 0")
    e(f"ds_write_b32 v10, v11 offset:{L_CT}")
    e("s_waitcnt lgkmcnt(0)")
    e("s_cmp_eq_u32 s4, 0")
    e(f"s_cselect_b64 s[{sK}:{sK+1}], s[10:11], s[20:21]")
    e(f"s_cselect_b64 s[{sWO}:{sWO+1}], s[16:17], s[26:27]")
    addr64(sK, sK, sT0)
    e("s_barrier")
    if o.touch:
        e("v_mov_b32 v10, 0")
        e(f"v_mov_b32 v11, {WS_F + 0x80000}")
        e(f"global_load_dword v180, v10, s[{sOUT}:{sOUT+1}]")
        e(f"global_load_dword v181, v11, s[{sWS}:{sWS+1}]")
    for t in range(16):
        if t == 8:
            e(f"s_add_u32 s{sK}, s{sK}, 8192")
            e(f"s_addc_u32 s{sK+1}, s{sK+1}, 0")
        if t >= o.wk: e(f"s_waitcnt vmcnt({o.wk-1})")
        e(f"global_load_dwordx4 v[{vKK+4*t}:{vKK+4*t+3}], v8, s[{sK}:{sK+1}] offset:{(t%8)*1024-4096}{NT}")
    stamp(1)
    e(f"s_lshl_b32 s{sT3}, s4, 8")
    e(f"s_load_dword s{sEP}, s[{sWS}:{sWS+1}], s{sT3}")
    masks()
    e("v_and_b32 v10, 3, v0")
    e(f"v_cmp_eq_u32 s[{sM1}:{sM1+1}], 1, v10")
    e(f"v_cmp_eq_u32 s[{sM2}:{sM2+1}], 2, v10")
    e(f"v_cmp_eq_u32 s[{sM3}:{sM3+1}], 3, v10")
    e(f"s_lshl_b32 s{sT1}, s{sCL}, 1")
    e(f"s_add_u32 s{sT1}, s{sT1}, s{sB}")
    e(f"s_lshl_b32 s{sT1}, s{sT1}, 13")
    e(f"s_lshl_b32 s{sT2}, s3, 10")
    e(f"s_add_u32 s{sT1}, s{sT1}, s{sT2}")
    e(f"s_add_u32 s{sT1}, s{sT1}, {WS_Q+4096}")
    addr64(sA, sWS, sT1)
    e("v_lshlrev_b32 v12, 4, v0")
    e(f"s_mov_b32 s{sCNT}, {o.spin}")
    e("s_waitcnt lgkmcnt(0)")
    e(f"s_add_u32 s{sTAG}, s{sEP}, 0x9e3779b9")
    lab("L_pollq")
    e(f"global_load_dwordx4 v[{vP0}:{vP0+3}], v12, s[{sA}:{sA+1}] offset:-4096 sc1")
    e(f"global_load_dwordx4 v[{vP0+4}:{vP0+7}], v12, s[{sA}:{sA+1}] sc1")
    e("s_waitcnt vmcnt(0)")
    tagcheck([vP0+1, vP0+3, vP0+5, vP0+7])
    e("s_cbranch_scc1 L_gotq")
    e(f"s_sub_u32 s{sCNT}, s{sCNT}, 1")
    e(f"s_cmp_lg_u32 s{sCNT}, 0")
    e("s_cbranch_scc1 L_pollq")
    lab("L_gotq")
    stamp(2)
    stampcnt(11)
    e(f"v_add_f32 v{vP0}, v{vP0}, v{vP0+4}")
    e(f"v_add_f32 v{vP0+2}, v{vP0+2}, v{vP0+6}")
    e(f"s_lshl_b32 s{sT1}, s3, 8")
    e(f"v_lshlrev_b32 v10, 2, v0")
    e(f"v_cvt_pk_bf16_f32 v11, v{vP0}, v{vP0+2}")
    e(f"v_add_u32 v10, s{sT1}, v10")
    e(f"ds_write_b32 v10, v11 offset:{L_QL}")
    lds_signal(2)
    e(f"v_add_u32 v10, {L_QL}, v8")
    lds_wait(2, 4)
    e(f"ds_read_b128 v[{vQ}:{vQ+3}], v10")
    e("s_waitcnt lgkmcnt(0)")
    stamp(3)
    def dreg(G, a): return vD + (G & 1)*16 + a*4
    def mf(G, a):
        t = 4*G + a; d = dreg(G, a)
        e(f"v_mfma_f32_16x16x32_bf16 v[{d}:{d+3}], v[{vKK+4*t}:{vKK+4*t+3}], v[{vQ}:{vQ+3}], 0")
    def dpp(G, step):
        for a in range(4):
            d = dreg(G, a) + step; sdst = vS + 4*G + a
            qp = f"quad_perm:[{step},{step},{step},{step}] row_mask:0xf bank_mask:0xf"
            if step == 0: e(f"v_mov_b32_dpp v{sdst}, v{d} {qp}")
            else: e(f"v_add_f32_dpp v{sdst}, v{d}, v{sdst} {qp}")
    for a in range(4): mf(0, a)
    for G in range(1, 4):
        for a in range(4):
            mf(G, a)
            if a == 0: e("s_nop 4")
            dpp(G-1, a)
    e("s_nop 4")
    for st in range(4): dpp(3, st)
    for G in range(4):
        e(f"v_cndmask_b32 v{vR+G}, v{vS+4*G}, v{vS+4*G+1}, s[{sM1}:{sM1+1}]")
    for G in range(4):
        e(f"v_cndmask_b32 v{vR+G}, v{vR+G}, v{vS+4*G+2}, s[{sM2}:{sM2+1}]")
    for G in range(4):
        e(f"v_cndmask_b32 v{vR+G}, v{vR+G}, v{vS+4*G+3}, s[{sM3}:{sM3+1}]")
    def quadrow_reduce(v, op, t1):
        e("s_nop 1")
        e(f"{op}_dpp v{v}, v{v}, v{v} quad_perm:[1,0,3,2] row_mask:0xf bank_mask:0xf")
        e("s_nop 1")
        e(f"{op}_dpp v{v}, v{v}, v{v} quad_perm:[2,3,0,1] row_mask:0xf bank_mask:0xf")
        e("s_nop 0")
        e(f"v_mov_b32 v{t1}, v{v}")
        e("s_nop 1")
        e(f"v_permlane16_swap_b32 v{v}, v{t1}")
        e("s_nop 1")
        e(f"{op} v{v}, v{v}, v{t1}")
        e(f"v_mov_b32 v{t1}, v{v}")
        e("s_nop 1")
        e(f"v_permlane32_swap_b32 v{v}, v{t1}")
        e("s_nop 1")
        e(f"{op} v{v}, v{v}, v{t1}")
    e(f"v_max3_f32 v10, v{vR}, v{vR+1}, v{vR+2}")
    e(f"v_max_f32 v10, v10, v{vR+3}")
    quadrow_reduce(10, "v_max_f32", 11)
    e(f"s_mov_b32 s{sC1}, 0x3e0293ee")
    e(f"v_mul_f32 v10, s{sC1}, v10")
    for G in range(4):
        e(f"v_fma_f32 v{vR+G}, v{vR+G}, s{sC1}, -v10")
    for G in range(4):
        e(f"v_exp_f32 v{vR+G}, v{vR+G}")
    e("v_lshrrev_b32 v14, 2, v0")
    e("v_mul_u32_u24 v14, 80, v14")
    e(f"v_add_f32 v12, v{vR}, v{vR+1}")
    e(f"v_add_f32 v13, v{vR+2}, v{vR+3}")
    for G in range(4):
        e(f"v_cvt_pk_bf16_f32 v{vR+G}, v{vR+G}, v{vR+G}")
    e(f"v_add_f32 v12, v12, v13")
    e("v_and_b32 v15, 3, v0")
    e("v_lshl_add_u32 v14, v15, 2, v14")
    e(f"s_mul_i32 s{sT1}, s3, 1280")
    e(f"v_add_u32 v14, s{sT1}, v14")
    for G in range(4):
        e(f"ds_write_b32 v14, v{vR+G} offset:{L_PL+16*G}")
    quadrow_reduce(12, "v_add_f32", 13)
    e("v_mov_b32 v11, v12")
    e("v_lshlrev_b32 v14, 3, v0")
    e(f"s_lshl_b32 s{sT1}, s3, 3")
    e(f"v_add_u32 v14, s{sT1}, v14")
    e("s_mov_b64 exec, 0x1111")
    e(f"ds_write_b64 v14, v[10:11] offset:{L_ML}")
    e("s_mov_b64 exec, -1")
    lds_signal(4)
    stamp(4)
    cm("wo loads: wave k rows 64rb + 16k + 4rg + c (rg 0..3), 2 col halves")
    e(f"s_lshl_b32 s{sT1}, s5, 19")
    e(f"s_lshl_b32 s{sT2}, s{sHI}, 16")
    e(f"s_add_u32 s{sT1}, s{sT1}, s{sT2}")
    e(f"s_lshl_b32 s{sT2}, s3, 14")
    e(f"s_add_u32 s{sT1}, s{sT1}, s{sT2}")
    e(f"s_lshl_b32 s{sT2}, s{sLO}, 9")
    e(f"s_add_u32 s{sT1}, s{sT1}, s{sT2}")
    e(f"s_add_u32 s{sT1}, s{sT1}, 4096")
    addr64(sA2, sWO, sT1)
    e("v_lshrrev_b32 v13, 4, v0")
    e("v_lshlrev_b32 v13, 10, v13")
    e("v_and_b32 v14, 15, v0")
    e("v_lshl_add_u32 v13, v14, 4, v13")
    for rg in range(4):
        if rg == 2:
            e(f"s_add_u32 s{sA2}, s{sA2}, 8192")
            e(f"s_addc_u32 s{sA2+1}, s{sA2+1}, 0")
        for hf in range(2):
            i = rg*2+hf
            e(f"global_load_dwordx4 v[{vWO+4*i}:{vWO+4*i+3}], v13, s[{sA2}:{sA2+1}] offset:{(rg&1)*4096-4096+hf*256}{NT}")
    cm("publish (M,L) from wave 0 after all P ready")
    e("s_cmp_eq_u32 s3, 0")
    e("s_cbranch_scc0 L_nomlpub")
    e("v_bfe_u32 v9, v0, 2, 2")
    e("v_lshlrev_b32 v9, 5, v9")
    e(f"s_lshl_b32 s{sT1}, s{sCL}, 4")
    e(f"s_add_u32 s{sT1}, s{sT1}, s6")
    e(f"s_lshl_b32 s{sT1}, s{sT1}, 6")
    e(f"s_add_u32 s{sT1}, s{sT1}, {WS_ML}")
    addr64(sA, sWS, sT1)
    lds_wait(4, 4)
    e(f"ds_read_b128 v[80:83], v9 offset:{L_ML}")
    e(f"ds_read_b128 v[84:87], v9 offset:{L_ML+16}")
    e("v_lshlrev_b32 v11, 2, v0")
    e("s_waitcnt lgkmcnt(0)")
    e("v_max3_f32 v12, v80, v82, v84")
    e("v_max_f32 v12, v12, v86")
    for r in (80, 82, 84, 86): e(f"v_sub_f32 v{r}, v{r}, v12")
    for r in (80, 82, 84, 86): e(f"v_exp_f32 v{r}, v{r}")
    e(f"v_mov_b32 v13, s{sTAG}")
    e("v_mul_f32 v14, v80, v81")
    e("v_fmac_f32 v14, v82, v83")
    e("v_fmac_f32 v14, v84, v85")
    e("v_fmac_f32 v14, v86, v87")
    e(f"v_mov_b32 v15, s{sTAG}")
    e("s_mov_b64 exec, 0x1111")
    e(f"global_store_dwordx4 v11, v[12:15], s[{sA}:{sA+1}] sc1")
    e("s_mov_b64 exec, -1")
    lab("L_nomlpub")
    cm("publish o: wave=grp; p'=l&3, i''=(l>>2)&3, h=l>>4")
    e("v_lshrrev_b32 v10, 4, v0")
    e("v_lshlrev_b32 v10, 7, v10")
    e("v_and_b32 v11, 3, v0")
    e("v_lshl_add_u32 v10, v11, 5, v10")
    e("v_bfe_u32 v11, v0, 2, 2")
    e("v_lshl_add_u32 v10, v11, 3, v10")
    e(f"s_lshl_b32 s{sT1}, s3, 9")
    e(f"v_add_u32 v10, s{sT1}, v10")
    e(f"s_lshl_b32 s{sT1}, s{sCL}, 4")
    e(f"s_add_u32 s{sT1}, s{sT1}, s6")
    e(f"s_lshl_b32 s{sT1}, s{sT1}, 12")
    e(f"s_lshl_b32 s{sT2}, s3, 8")
    e(f"s_add_u32 s{sT1}, s{sT1}, s{sT2}")
    e(f"s_add_u32 s{sT1}, s{sT1}, {WS_O}")
    addr64(sA, sWS, sT1)
    e("v_lshrrev_b32 v11, 4, v0")
    e("v_lshlrev_b32 v11, 10, v11")
    e("v_and_b32 v12, 15, v0")
    e("v_lshl_add_u32 v11, v12, 4, v11")
    lds_wait(5, 4)
    stamp(5)
    for vw in range(4):
        e(f"ds_read_b64 v[{vP0+2*vw}:{vP0+2*vw+1}], v10 offset:{L_OP+vw*2048}")
    e(f"v_mov_b32 v13, s{sTAG}")
    e(f"v_mov_b32 v15, s{sTAG}")
    e("s_waitcnt lgkmcnt(0)")
    e(f"v_add_f32 v12, v{vP0}, v{vP0+2}")
    e(f"v_add_f32 v14, v{vP0+1}, v{vP0+3}")
    e(f"v_add_f32 v{vP0+4}, v{vP0+4}, v{vP0+6}")
    e(f"v_add_f32 v{vP0+5}, v{vP0+5}, v{vP0+7}")
    e(f"v_add_f32 v12, v12, v{vP0+4}")
    e(f"v_add_f32 v14, v14, v{vP0+5}")
    e(f"global_store_dwordx4 v11, v[12:15], s[{sA}:{sA+1}] sc1")
    if o.prof:
        e("s_waitcnt vmcnt(1)")
        stamp(14)
        e("s_waitcnt vmcnt(0)")
        stamp(15)
    cm("hop 2 poll: lane (s=l&7, b=(l>>3)&1, c=l>>4); wave k covers r8 = rb*8 + 2k + {0,1}")
    e(f"s_lshl_b32 s{sT1}, s{sCL}, 16")
    e(f"s_lshl_b32 s{sT2}, s{sHI}, 9")
    e(f"s_add_u32 s{sT1}, s{sT1}, s{sT2}")
    e(f"s_lshl_b32 s{sT2}, s3, 7")
    e(f"s_add_u32 s{sT1}, s{sT1}, s{sT2}")
    e(f"s_add_u32 s{sT1}, s{sT1}, {WS_O}")
    addr64(sA, sWS, sT1)
    e("v_and_b32 v10, 15, v0")
    e("v_lshlrev_b32 v11, 12, v10")
    e("v_lshrrev_b32 v12, 4, v0")
    e("v_lshl_add_u32 v11, v12, 4, v11")
    e(f"s_lshl_b32 s{sT1}, s{sCL}, 10")
    e(f"s_lshr_b32 s{sT2}, s{sHI}, 1")
    e(f"s_lshl_b32 s{sT2}, s{sT2}, 4")
    e(f"s_add_u32 s{sT1}, s{sT1}, s{sT2}")
    e(f"s_add_u32 s{sT1}, s{sT1}, {WS_ML}")
    addr64(sA2, sWS, sT1)
    e("v_lshlrev_b32 v10, 6, v10")
    e(f"s_mov_b32 s{sCNT}, {o.spin}")
    vP = 80
    lab("L_pollo")
    e(f"global_load_dwordx4 v[{vP}:{vP+3}], v11, s[{sA}:{sA+1}] sc1")
    e(f"global_load_dwordx4 v[{vP+4}:{vP+7}], v11, s[{sA}:{sA+1}] offset:64 sc1")
    e(f"global_load_dwordx4 v[{vP+8}:{vP+11}], v10, s[{sA2}:{sA2+1}] sc1")
    e("s_waitcnt vmcnt(0)")
    tagcheck([vP+1, vP+3, vP+5, vP+7, vP+9, vP+11])
    e("s_cbranch_scc1 L_goto")
    e(f"s_sub_u32 s{sCNT}, s{sCNT}, 1")
    e(f"s_cmp_lg_u32 s{sCNT}, 0")
    e("s_cbranch_scc1 L_pollo")
    lab("L_goto")
    stamp(6)
    stampcnt(12)
    os_ = [vP, vP+2, vP+4, vP+6]; vMm, vLl = vP+8, vP+10
    e(f"v_mov_b32 v12, v{vMm}")
    e("s_nop 1")
    for pat in ["quad_perm:[1,0,3,2]", "quad_perm:[2,3,0,1]", "row_half_mirror"]:
        e(f"v_max_f32_dpp v12, v12, v12 {pat} row_mask:0xf bank_mask:0xf")
        e("s_nop 1")
    e(f"v_sub_f32 v12, v{vMm}, v12")
    e("v_exp_f32 v12, v12")
    e("s_nop 0")
    e(f"v_mul_f32 v{vLl}, v{vLl}, v12")
    for r in os_: e(f"v_mul_f32 v{r}, v{r}, v12")
    for pat in ["quad_perm:[1,0,3,2]", "quad_perm:[2,3,0,1]", "row_half_mirror"]:
        for r in [vLl] + os_:
            e(f"v_add_f32_dpp v{r}, v{r}, v{r} {pat} row_mask:0xf bank_mask:0xf")
    e(f"v_rcp_f32 v{vLl}, v{vLl}")
    e("s_nop 0")
    for r in os_: e(f"v_mul_f32 v{r}, v{r}, v{vLl}")
    for r in os_: e(f"v_cvt_pk_bf16_f32 v{r}, v{r}, v{r}")
    vBq = 96
    for q in range(4):
        for r in range(4):
            e(f"v_and_b32 v{vBq+4*q+r}, v{os_[q]}, v{vM+r}")
    vD0 = 112
    e("s_nop 1")
    for rg in range(4):
        for hf in range(2):
            i = rg*2+hf
            c = "0" if rg == 0 else f"v[{vD0+4*hf}:{vD0+4*hf+3}]"
            e(f"v_mfma_f32_16x16x32_bf16 v[{vD0+4*hf}:{vD0+4*hf+3}], v[{vWO+4*i}:{vWO+4*i+3}], v[{vBq+4*rg}:{vBq+4*rg+3}], {c}")
    e(f"s_lshl_b32 s{sT1}, s3, 11")
    e("v_lshlrev_b32 v10, 2, v0")
    e(f"v_add_u32 v10, s{sT1}, v10")
    e("s_nop 6")
    for hf in range(2):
        e(f"ds_write2st64_b32 v10, v{vD0+4*hf}, v{vD0+4*hf+1} offset0:{L_FP//256+4*hf} offset1:{L_FP//256+4*hf+1}")
        e(f"ds_write2st64_b32 v10, v{vD0+4*hf+2}, v{vD0+4*hf+3} offset0:{L_FP//256+4*hf+2} offset1:{L_FP//256+4*hf+3}")
    lds_signal(6)
    e(f"s_lshl_b32 s{sT1}, s3, 9")
    e("v_lshlrev_b32 v10, 3, v0")
    e(f"v_add_u32 v10, s{sT1}, v10")
    e(f"s_lshl_b32 s{sT1}, s4, 19")
    e(f"s_lshl_b32 s{sT2}, s{sLO}, 18")
    e(f"s_add_u32 s{sT1}, s{sT1}, s{sT2}")
    e(f"s_lshl_b32 s{sT2}, s3, 16")
    e(f"s_add_u32 s{sT1}, s{sT1}, s{sT2}")
    e(f"s_lshl_b32 s{sT2}, s5, 9")
    e(f"s_add_u32 s{sT1}, s{sT1}, s{sT2}")
    e(f"s_lshl_b32 s{sT2}, s{sHI}, 6")
    e(f"s_add_u32 s{sT1}, s{sT1}, s{sT2}")
    e(f"s_add_u32 s{sT1}, s{sT1}, {WS_F}")
    addr64(sA, sWS, sT1)
    e("v_lshrrev_b32 v11, 2, v0")
    e("v_lshlrev_b32 v11, 12, v11")
    e("v_and_b32 v12, 3, v0")
    e("v_lshl_add_u32 v11, v12, 4, v11")
    lds_wait(6, 4)
    stamp(7)
    for wv in range(4):
        e(f"ds_read_b64 v[{16+2*wv}:{16+2*wv+1}], v10 offset:{L_FP+wv*2048}")
    e(f"v_mov_b32 v13, s{sTAG}")
    e(f"v_mov_b32 v15, s{sTAG}")
    e("s_waitcnt lgkmcnt(0)")
    e("v_add_f32 v16, v16, v18")
    e("v_add_f32 v17, v17, v19")
    e("v_add_f32 v20, v20, v22")
    e("v_add_f32 v21, v21, v23")
    e("v_add_f32 v12, v16, v20")
    e("v_add_f32 v14, v17, v21")
    e(f"global_store_dwordx4 v11, v[12:15], s[{sA}:{sA+1}] sc1")
    e("s_cmp_eq_u32 s3, 0")
    e("s_cbranch_scc0 L_fin")
    cm("hop 3 poll (wave 0)")
    e(f"s_lshl_b32 s{sT1}, s2, 12")
    e(f"s_add_u32 s{sT1}, s{sT1}, {WS_F}")
    addr64(sA, sWS, sT1)
    e("v_lshlrev_b32 v11, 4, v0")
    e(f"s_mov_b32 s{sCNT}, {o.spin}")
    stamp(8)
    lab("L_pollf")
    for q in range(4):
        e(f"global_load_dwordx4 v[{16+4*q}:{16+4*q+3}], v11, s[{sA}:{sA+1}] offset:{q*1024} sc1")
    e("s_waitcnt vmcnt(0)")
    tagcheck([17, 19, 21, 23, 25, 27, 29, 31])
    e("s_cbranch_scc1 L_gotf")
    e(f"s_sub_u32 s{sCNT}, s{sCNT}, 1")
    e(f"s_cmp_lg_u32 s{sCNT}, 0")
    e("s_cbranch_scc1 L_pollf")
    lab("L_gotf")
    stamp(9)
    stampcnt(13)
    e("v_add_f32 v16, v16, v20")
    e("v_add_f32 v18, v18, v22")
    e("v_add_f32 v24, v24, v28")
    e("v_add_f32 v26, v26, v30")
    e("v_add_f32 v16, v16, v24")
    e("v_add_f32 v18, v18, v26")
    e("s_nop 1")
    for pat in ["row_ror:4", "row_ror:8"]:
        e(f"v_add_f32_dpp v16, v16, v16 {pat} row_mask:0xf bank_mask:0xf")
        e(f"v_add_f32_dpp v18, v18, v18 {pat} row_mask:0xf bank_mask:0xf")
        e("s_nop 1")
    for sw in ["v_permlane16_swap_b32", "v_permlane32_swap_b32"]:
        e("v_mov_b32 v20, v16")
        e("v_mov_b32 v22, v18")
        e("s_nop 1")
        e(f"{sw} v16, v20")
        e(f"{sw} v18, v22")
        e("s_nop 1")
        e("v_add_f32 v16, v16, v20")
        e("v_add_f32 v18, v18, v22")
    e("v_cvt_pk_bf16_f32 v16, v16, v18")
    e(f"s_and_b32 s{sT1}, s2, 1")
    e(f"s_lshl_b32 s{sT1}, s{sT1}, 11")
    e(f"s_lshl_b32 s{sT2}, s4, 10")
    e(f"s_add_u32 s{sT1}, s{sT1}, s{sT2}")
    e(f"s_bfe_u32 s{sT2}, s2, 0x20005")
    e(f"s_lshl_b32 s{sT2}, s{sT2}, 8")
    e(f"s_add_u32 s{sT1}, s{sT1}, s{sT2}")
    e(f"s_bfe_u32 s{sT2}, s2, 0x20001")
    e(f"s_lshl_b32 s{sT2}, s{sT2}, 6")
    e(f"s_add_u32 s{sT1}, s{sT1}, s{sT2}")
    e(f"s_bfe_u32 s{sT2}, s2, 0x20003")
    e(f"s_lshl_b32 s{sT2}, s{sT2}, 4")
    e(f"s_add_u32 s{sT1}, s{sT1}, s{sT2}")
    addr64(sA, sOUT, sT1)
    e("v_lshlrev_b32 v11, 2, v0")
    e("s_mov_b64 exec, 0xf")
    e(f"global_store_dword v11, v16, s[{sA}:{sA+1}]")
    e(f"s_and_b32 s{sT1}, s2, 127")
    e(f"s_cmp_eq_u32 s{sT1}, 0")
    e("s_cbranch_scc0 L_fin")
    e(f"s_lshl_b32 s{sT1}, s4, 8")
    e(f"v_mov_b32 v11, s{sT1}")
    e(f"v_mov_b32 v12, s{sTAG}")
    e("s_mov_b64 exec, 1")
    e(f"global_store_dword v11, v12, s[{sWS}:{sWS+1}]")
    lab("L_fin")
    if o.prof == 2:
        stamp(10)
        e("s_waitcnt lgkmcnt(0)")
        e("s_mov_b64 exec, 1")
        e("v_mov_b32 v11, 0")
        def am(slot, st, neg=False):
            if neg: e(f"s_not_b32 s{sT1}, s{sST+2*st}"); e(f"v_mov_b32 v12, s{sT1}")
            else: e(f"v_mov_b32 v12, s{sST+2*st}")
            e(f"global_atomic_umax v11, v12, s[{sDBG}:{sDBG+1}] offset:{4*slot}")
            e("s_nop 1")
        am(0, 0, True); am(1, 0); am(13, 10)
        e("s_cmp_lt_u32 s3, 4")
        e("s_cbranch_scc1 L_dk")
        am(2, 8); am(3, 2); am(4, 3); am(7, 6); am(14, 8, True); am(15, 2, True)
        e("s_branch L_end")
        lab("L_dk")
        am(5, 2); am(6, 4); am(8, 14); am(9, 15); am(10, 6); am(11, 7)
        e("s_cmp_eq_u32 s3, 0")
        e("s_cbranch_scc0 L_end")
        am(12, 9)
    elif o.prof:
        stamp(10)
        e("s_waitcnt lgkmcnt(0)")
        e("s_mov_b64 exec, 1")
        e(f"s_lshl_b32 s{sT1}, s2, 3")
        e(f"s_add_u32 s{sT1}, s{sT1}, s3")
        e(f"s_lshl_b32 s{sT1}, s{sT1}, 7")
        e(f"s_add_u32 s{sT1}, s{sT1}, {WS_PROF}")
        e(f"v_mov_b32 v11, s{sT1}")
        for i in range(NST):
            e(f"v_mov_b32 v12, s{sST+2*i}")
            e(f"global_store_dword v11, v12, s[{sWS}:{sWS+1}] offset:{4*i}")
            e("s_nop 1")
    lab("L_end")
    e("s_endpgm")
    L.append('.section .rodata,"a"')
    L.append(".p2align 6")
    L.append(f".amdhsa_kernel {NAME}_kernel")
    L.append(f"  .amdhsa_next_free_vgpr {NV}")
    L.append("  .amdhsa_next_free_sgpr 100")
    L.append(f"  .amdhsa_accum_offset {NV}")
    L.append("  .amdhsa_group_segment_fixed_size 0")
    L.append("  .amdhsa_kernarg_size 104")
    L.append("  .amdhsa_user_sgpr_count 2")
    L.append("  .amdhsa_user_sgpr_kernarg_segment_ptr 1")
    L.append("  .amdhsa_system_sgpr_workgroup_id_x 1")
    L.append(".end_amdhsa_kernel")
    return "\n".join(L) + "\n"

if __name__ == "__main__":
    o = Opt()
    out = sys.argv[1]
    for a in sys.argv[2:]:
        k, v = a.split("=")
        assert hasattr(o, k), k
        setattr(o, k, int(v))
    open(out, "w").write(gen(o))
```

```python
import sys
NAME = "concat_heads__sliding_block_cached__sliding_block_cached__decode"

class Opt:
    prof = 0
    nt = 1
    spin = 200000
    wk = 16
    wv = 16
    kdelay = 1
    touch = 1
    warm = 0

def gen(o):
    L = []
    def e(s): L.append("    " + s)
    def lab(s): L.append(s + ":")
    def cm(s): L.append("    ; " + s)
    NT = " nt" if o.nt else ""
    WS_EP = 0; WS_Q = 0x1000; WS_ML = WS_Q + 0x40000; WS_O = 0x80000; WS_F = 0x180000; WS_PROF = 0x800000
    L_QP = 0; L_OP = 0; L_QL = 8192; L_PL = 9216; L_ML = 14336; L_CT = 14592; L_FP = 16384; LDS = 32768
    sX, sK, sV, sWQ, sWO = 8, 10, 12, 14, 16
    sOUT, sDBG, sWS = 28, 30, 32
    sEP = 34; sTAG = 35; sB, sS = 36, 37; sHI, sLO = 38, 39
    sT0, sT1, sT2, sT3 = 40, 41, 42, 43
    sA = 44; sA2 = 46; sM1, sM2, sM3 = 48, 50, 52; sC = 54; sCNT = 56
    sSEL_LO, sSEL_HI = 57, 58; sC1 = 59; sCL = 60; sKW = 61; sPC = 62
    sST = 64
    NST = 16
    def stamp(i):
        if o.prof: e(f"s_memrealtime s[{sST+2*i}:{sST+2*i+1}]")
    def stampcnt(i):
        if o.prof: e(f"s_sub_u32 s{sST+2*i}, {o.spin}, s{sCNT}")
    vM = 1
    vKK = 16; vD = 80; vS = 112; vQ = 128; vR = 132; vP0 = 136; vWO = 144
    vWQ = 16; vVV = 16; vX = 80; vPV = 112; vACC = 128; vXX = 136; vBB = 144; vQA = 152
    NV = 184

    def lds_signal(idx):
        e("s_waitcnt lgkmcnt(0)")
        e(f"v_mov_b32 v14, {L_CT + 4*idx}")
        e("v_mov_b32 v15, 1")
        e("s_mov_b64 exec, 1")
        e("ds_add_u32 v14, v15")
        e("s_mov_b64 exec, -1")
    nw = [0]
    def lds_wait(idx, target):
        n = nw[0]; nw[0] += 1
        e(f"v_mov_b32 v14, {L_CT + 4*idx}")
        lab(f"L_lw{n}")
        e("ds_read_b32 v15, v14")
        e("s_waitcnt lgkmcnt(0)")
        e("v_readfirstlane_b32 s63, v15")
        e(f"s_cmp_lt_u32 s63, {target}")
        e(f"s_cbranch_scc1 L_lw{n}")
    def tagcheck(regs):
        e(f"v_cmp_eq_u32 vcc, s{sTAG}, v{regs[0]}")
        for r in regs[1:]:
            e(f"v_cmp_eq_u32 s[{sC}:{sC+1}], s{sTAG}, v{r}")
            e(f"s_and_b64 vcc, vcc, s[{sC}:{sC+1}]")
        e("s_cmp_eq_u64 vcc, exec")
    def masks():
        e("v_and_b32 v10, 1, v0")
        e("v_lshlrev_b32 v10, 4, v10")
        e("v_mov_b32 v11, 0xffff")
        e("v_lshlrev_b32 v11, v10, v11")
        e("v_bfe_u32 v10, v0, 1, 2")
        for r in range(4):
            e(f"v_cmp_eq_u32 vcc, {r}, v10")
            e("s_nop 1")
            e(f"v_cndmask_b32 v{vM+r}, 0, v11, vcc")
    def addr64(dst, base, off):
        e(f"s_add_u32 s{dst}, s{base}, s{off}")
        e(f"s_addc_u32 s{dst+1}, s{base+1}, 0")

    L.append(f"; @launch grid=(256,1,1) block=(512,1,1) lds={LDS}")
    L.append('.amdgcn_target "amdgcn-amd-amdhsa--gfx950"')
    L.append(".text")
    L.append(f".globl {NAME}_kernel")
    L.append(".p2align 8")
    L.append(f".type {NAME}_kernel,@function")
    lab(f"{NAME}_kernel")
    e("s_cmp_ge_u32 s2, 0x100")
    e("s_cbranch_scc1 L_end")
    e("s_load_dwordx16 s[8:23], s[0:1], 0")
    e("s_load_dwordx8 s[24:31], s[0:1], 64")
    e("s_load_dwordx2 s[32:33], s[0:1], 96")
    stamp(0)
    e("v_lshrrev_b32 v5, 6, v0")
    e("v_and_b32 v0, 63, v0")
    e("s_lshr_b32 s4, s2, 7")
    e("v_readfirstlane_b32 s3, v5")
    e("s_and_b32 s5, s2, 7")
    e("s_bfe_u32 s6, s2, 0x40003")
    e(f"s_lshr_b32 s{sB}, s6, 3")
    e(f"s_and_b32 s{sS}, s6, 7")
    e(f"s_lshr_b32 s{sHI}, s6, 1")
    e(f"s_and_b32 s{sLO}, s6, 1")
    e(f"s_lshl_b32 s{sCL}, s4, 3")
    e(f"s_add_u32 s{sCL}, s{sCL}, s5")
    e(f"s_and_b32 s{sKW}, s3, 3")
    e(f"s_lshl_b32 s{sT0}, s{sB}, 3")
    e(f"s_add_u32 s{sT0}, s{sT0}, s5")
    e(f"s_lshl_b32 s{sT0}, s{sT0}, 21")
    e(f"s_lshl_b32 s{sT1}, s{sS}, 16")
    e(f"s_add_u32 s{sT0}, s{sT0}, s{sT1}")
    e(f"s_lshl_b32 s{sT1}, s{sKW}, 14")
    e(f"s_add_u32 s{sT0}, s{sT0}, s{sT1}")
    e(f"s_add_u32 s{sT0}, s{sT0}, {6144*256 + 4096}")
    e("s_cmp_lt_u32 s3, 4")
    e("s_cbranch_scc1 L_kpath")

    e("v_lshrrev_b32 v6, 3, v0")
    e("v_and_b32 v7, 7, v0")
    e("v_lshlrev_b32 v5, 16, v6")
    e("v_lshl_add_u32 v5, v7, 4, v5")
    e("v_lshlrev_b32 v6, 4, v6")
    e(f"s_lshl_b32 s{sT1}, s{sLO}, 8")
    e(f"s_lshl_b32 s{sT2}, s{sKW}, 6")
    e(f"s_add_u32 s{sT1}, s{sT1}, s{sT2}")
    e(f"s_lshl_b32 s{sT2}, s{sT1}, 13")
    e(f"s_lshl_b32 s{sT3}, s5, 10")
    e(f"s_add_u32 s{sT2}, s{sT2}, s{sT3}")
    e(f"s_lshl_b32 s{sT3}, s{sHI}, 7")
    e(f"s_add_u32 s{sT2}, s{sT2}, s{sT3}")
    e(f"s_lshl_b32 s{sT1}, s{sT1}, 1")
    e("s_waitcnt lgkmcnt(0)")
    stamp(8)
    e("s_cmp_eq_u32 s4, 0")
    e(f"s_cselect_b64 s[{sWQ}:{sWQ+1}], s[14:15], s[24:25]")
    e(f"s_cselect_b64 s[{sX}:{sX+1}], s[8:9], s[18:19]")
    e(f"s_cselect_b64 s[{sV}:{sV+1}], s[12:13], s[22:23]")
    addr64(sA, sWQ, sT2)
    for t in range(8):
        e(f"global_load_dwordx4 v[{vWQ+4*t}:{vWQ+4*t+3}], v5, s[{sA}:{sA+1}]{NT}")
        if t < 7:
            e(f"s_add_u32 s{sA}, s{sA}, 8192")
            e(f"s_addc_u32 s{sA+1}, s{sA+1}, 0")
    stamp(9)
    addr64(sX, sX, sT1)
    e(f"global_load_dwordx4 v[{vXX}:{vXX+3}], v6, s[{sX}:{sX+1}]")
    e(f"global_load_dwordx4 v[{vXX+4}:{vXX+7}], v6, s[{sX}:{sX+1}] offset:1024")
    if o.kdelay: e("s_barrier")
    else: e("s_barrier")
    stamp(1)
    e(f"s_lshl_b32 s{sT3}, s4, 8")
    e(f"s_load_dword s{sEP}, s[{sWS}:{sWS+1}], s{sT3}")
    addr64(sV, sV, sT0)
    masks()
    e(f"s_mov_b32 s{sSEL_LO}, 0x01000100")
    e(f"s_mov_b32 s{sSEL_HI}, 0x03020302")
    for i in range(8):
        e(f"v_mov_b32 v{vQA+i}, 0")
    e("s_waitcnt vmcnt(0)")
    stamp(2)
    def bbuild(dst, src, sel, tmp):
        e(f"v_perm_b32 v{tmp}, v{src}, v{src}, s{sel}")
        for r in range(4):
            e(f"v_and_b32 v{dst+r}, v{tmp}, v{vM+r}")
    for t in range(8):
        sel = sSEL_HI if (t & 1) else sSEL_LO
        bbuild(vBB, vXX + (t >> 1), sel, 10)
        bbuild(vBB+4, vXX + 4 + (t >> 1), sel, 11)
        e(f"v_mfma_f32_16x16x32_bf16 v[{vQA}:{vQA+3}], v[{vWQ+4*t}:{vWQ+4*t+3}], v[{vBB}:{vBB+3}], v[{vQA}:{vQA+3}]")
        e("s_nop 0")
        e(f"v_mfma_f32_16x16x32_bf16 v[{vQA+4}:{vQA+7}], v[{vWQ+4*t}:{vWQ+4*t+3}], v[{vBB+4}:{vBB+7}], v[{vQA+4}:{vQA+7}]")
    e(f"s_lshl_b32 s{sT1}, s{sKW}, 11")
    e(f"v_lshlrev_b32 v10, 2, v0")
    e(f"v_add_u32 v10, s{sT1}, v10")
    e("s_nop 6")
    for b in range(2):
        e(f"ds_write2st64_b32 v10, v{vQA+4*b}, v{vQA+4*b+1} offset0:{4*b} offset1:{4*b+1}")
        e(f"ds_write2st64_b32 v10, v{vQA+4*b+2}, v{vQA+4*b+3} offset0:{4*b+2} offset1:{4*b+3}")
    lds_signal(1)
    e(f"s_add_u32 s{sTAG}, s{sEP}, 0x9e3779b9")
    cm("publish q (wave 4 only)")
    e("s_cmp_eq_u32 s3, 4")
    e("s_cbranch_scc0 L_noqpub")
    e("v_lshrrev_b32 v10, 5, v0")
    e("v_lshlrev_b32 v10, 10, v10")
    e("v_bfe_u32 v11, v0, 2, 2")
    e("v_lshl_add_u32 v10, v11, 8, v10")
    e("v_bfe_u32 v11, v0, 4, 1")
    e("v_lshl_add_u32 v10, v11, 6, v10")
    e("v_and_b32 v11, 3, v0")
    e("v_lshl_add_u32 v10, v11, 3, v10")
    e(f"s_lshl_b32 s{sT1}, s{sCL}, 14")
    e(f"s_lshl_b32 s{sT2}, s{sLO}, 12")
    e(f"s_add_u32 s{sT1}, s{sT1}, s{sT2}")
    e(f"s_lshl_b32 s{sT2}, s{sHI}, 9")
    e(f"s_add_u32 s{sT1}, s{sT1}, s{sT2}")
    e(f"s_add_u32 s{sT1}, s{sT1}, {WS_Q}")
    addr64(sA, sWS, sT1)
    e("v_lshrrev_b32 v11, 5, v0")
    e("v_lshlrev_b32 v11, 13, v11")
    e("v_and_b32 v12, 31, v0")
    e("v_lshl_add_u32 v11, v12, 4, v11")
    lds_wait(1, 4)
    base = 80
    for kw in range(4):
        e(f"ds_read_b64 v[{base+4*kw}:{base+4*kw+1}], v10 offset:{L_QP+kw*2048}")
        e(f"ds_read_b64 v[{base+4*kw+2}:{base+4*kw+3}], v10 offset:{L_QP+kw*2048+160}")
    e(f"v_mov_b32 v13, s{sTAG}")
    e(f"v_mov_b32 v15, s{sTAG}")
    e("s_waitcnt lgkmcnt(0)")
    for i in range(0, 16, 4):
        e(f"v_add_f32 v{base+i}, v{base+i}, v{base+i+2}")
        e(f"v_add_f32 v{base+i+1}, v{base+i+1}, v{base+i+3}")
    e(f"v_add_f32 v{base}, v{base}, v{base+4}")
    e(f"v_add_f32 v{base+1}, v{base+1}, v{base+5}")
    e(f"v_add_f32 v{base+8}, v{base+8}, v{base+12}")
    e(f"v_add_f32 v{base+9}, v{base+9}, v{base+13}")
    e(f"v_add_f32 v12, v{base}, v{base+8}")
    e(f"v_add_f32 v14, v{base+1}, v{base+9}")
    e(f"global_store_dwordx4 v11, v[12:15], s[{sA}:{sA+1}] sc1")
    lab("L_noqpub")
    stamp(3)
    e("v_lshlrev_b32 v5, 4, v0")
    for t in range(16):
        if t == 8:
            e(f"s_add_u32 s{sV}, s{sV}, 8192")
            e(f"s_addc_u32 s{sV+1}, s{sV+1}, 0")
        if t >= o.wv: e(f"s_waitcnt vmcnt({o.wv-1})")
        e(f"global_load_dwordx4 v[{vVV+4*t}:{vVV+4*t+3}], v5, s[{sV}:{sV+1}] offset:{(t%8)*1024-4096}{NT}")
    stamp(4)
    e("v_and_b32 v10, 1, v0")
    e("v_lshlrev_b32 v10, 4, v10")
    e("v_mov_b32 v11, 0xffff")
    e("v_lshlrev_b32 v11, v10, v11")
    e("v_and_b32 v10, 2, v0")
    e("v_cmp_eq_u32 vcc, 0, v10")
    e("v_lshrrev_b32 v8, 2, v0")
    e("v_mul_u32_u24 v8, 80, v8")
    e("v_cndmask_b32 v6, 0, v11, vcc")
    e("v_xor_b32 v7, v6, v11")
    e(f"s_mul_i32 s{sT2}, s{sKW}, 1280")
    e(f"v_add_u32 v8, s{sT2}, v8")
    e("v_bfe_u32 v9, v0, 2, 2")
    e("v_lshlrev_b32 v9, 5, v9")
    for i in range(8):
        e(f"v_mov_b32 v{vACC+i}, 0")
    lds_wait(4, 4)
    stamp(5)
    for G in range(4):
        e(f"ds_read_b128 v[{vPV+4*G}:{vPV+4*G+3}], v8 offset:{L_PL+16*G}")
    e(f"ds_read_b128 v[136:139], v9 offset:{L_ML}")
    e(f"ds_read_b128 v[140:143], v9 offset:{L_ML+16}")
    e(f"s_lshl_b32 s{sT1}, s{sKW}, 3")
    e(f"v_add_u32 v9, s{sT1}, v9")
    e(f"ds_read_b32 v144, v9 offset:{L_ML}")
    e("s_waitcnt lgkmcnt(3)")
    for t in range(16):
        e(f"v_and_b32 v{vX+2*t}, v{vPV+t}, v6")
        e(f"v_and_b32 v{vX+2*t+1}, v{vPV+t}, v7")
    e("s_waitcnt lgkmcnt(0)")
    e("v_max3_f32 v145, v136, v138, v140")
    e("v_max_f32 v145, v145, v142")
    e("v_sub_f32 v144, v144, v145")
    e("v_exp_f32 v144, v144")
    cm("PV")
    for t in range(16):
        e(f"s_waitcnt vmcnt({15-t})")
        for u in range(2):
            e(f"v_mfma_f32_16x16x16_bf16 v[{vACC+4*u}:{vACC+4*u+3}], v[{vVV+4*t+2*u}:{vVV+4*t+2*u+1}], v[{vX+2*t}:{vX+2*t+1}], v[{vACC+4*u}:{vACC+4*u+3}]")
    stamp(6)
    e("v_lshlrev_b32 v10, 5, v0")
    e(f"s_lshl_b32 s{sT1}, s{sKW}, 11")
    e(f"v_add_u32 v10, s{sT1}, v10")
    e("s_nop 5")
    for i in range(4):
        for u in range(2):
            e(f"v_mul_f32 v{136+2*i+u}, v{vACC+4*u+i}, v144")
    e(f"ds_write_b128 v10, v[136:139] offset:{L_OP}")
    e(f"ds_write_b128 v10, v[140:143] offset:{L_OP+16}")
    lds_signal(5)
    stamp(7)
    e("s_branch L_fin")

    lab("L_kpath")
    e("v_bfe_u32 v8, v0, 2, 2")
    e("v_lshlrev_b32 v8, 8, v8")
    e("v_lshrrev_b32 v9, 4, v0")
    e("v_lshl_add_u32 v8, v9, 6, v8")
    e("v_and_b32 v9, 3, v0")
    e("v_lshl_add_u32 v8, v9, 4, v8")
    cm("zero LDS counters (wave 0)")
    e("v_lshlrev_b32 v10, 2, v0")
    e("v_mov_b32 v11, 0")
    e(f"ds_write_b32 v10, v11 offset:{L_CT}")
    e("s_waitcnt lgkmcnt(0)")
    e("s_cmp_eq_u32 s4, 0")
    e(f"s_cselect_b64 s[{sK}:{sK+1}], s[10:11], s[20:21]")
    e(f"s_cselect_b64 s[{sWO}:{sWO+1}], s[16:17], s[26:27]")
    addr64(sK, sK, sT0)
    e("s_barrier")
    if o.touch:
        e("v_mov_b32 v10, 0")
        e(f"v_mov_b32 v11, {WS_F + 0x80000}")
        e(f"global_load_dword v180, v10, s[{sOUT}:{sOUT+1}]")
        e(f"global_load_dword v181, v11, s[{sWS}:{sWS+1}]")
    for t in range(16):
        if t == 8:
            e(f"s_add_u32 s{sK}, s{sK}, 8192")
            e(f"s_addc_u32 s{sK+1}, s{sK+1}, 0")
        if t >= o.wk: e(f"s_waitcnt vmcnt({o.wk-1})")
        e(f"global_load_dwordx4 v[{vKK+4*t}:{vKK+4*t+3}], v8, s[{sK}:{sK+1}] offset:{(t%8)*1024-4096}{NT}")
    stamp(1)
    e(f"s_lshl_b32 s{sT3}, s4, 8")
    e(f"s_load_dword s{sEP}, s[{sWS}:{sWS+1}], s{sT3}")
    masks()
    e("v_and_b32 v10, 3, v0")
    e(f"v_cmp_eq_u32 s[{sM1}:{sM1+1}], 1, v10")
    e(f"v_cmp_eq_u32 s[{sM2}:{sM2+1}], 2, v10")
    e(f"v_cmp_eq_u32 s[{sM3}:{sM3+1}], 3, v10")
    e(f"s_lshl_b32 s{sT1}, s{sCL}, 1")
    e(f"s_add_u32 s{sT1}, s{sT1}, s{sB}")
    e(f"s_lshl_b32 s{sT1}, s{sT1}, 13")
    e(f"s_lshl_b32 s{sT2}, s3, 10")
    e(f"s_add_u32 s{sT1}, s{sT1}, s{sT2}")
    e(f"s_add_u32 s{sT1}, s{sT1}, {WS_Q+4096}")
    addr64(sA, sWS, sT1)
    e("v_lshlrev_b32 v12, 4, v0")
    e(f"s_mov_b32 s{sCNT}, {o.spin}")
    e("s_waitcnt lgkmcnt(0)")
    e(f"s_add_u32 s{sTAG}, s{sEP}, 0x9e3779b9")
    lab("L_pollq")
    e(f"global_load_dwordx4 v[{vP0}:{vP0+3}], v12, s[{sA}:{sA+1}] offset:-4096 sc1")
    e(f"global_load_dwordx4 v[{vP0+4}:{vP0+7}], v12, s[{sA}:{sA+1}] sc1")
    e("s_waitcnt vmcnt(0)")
    tagcheck([vP0+1, vP0+3, vP0+5, vP0+7])
    e("s_cbranch_scc1 L_gotq")
    e(f"s_sub_u32 s{sCNT}, s{sCNT}, 1")
    e(f"s_cmp_lg_u32 s{sCNT}, 0")
    e("s_cbranch_scc1 L_pollq")
    lab("L_gotq")
    stamp(2)
    stampcnt(11)
    e(f"v_add_f32 v{vP0}, v{vP0}, v{vP0+4}")
    e(f"v_add_f32 v{vP0+2}, v{vP0+2}, v{vP0+6}")
    e(f"s_lshl_b32 s{sT1}, s3, 8")
    e(f"v_lshlrev_b32 v10, 2, v0")
    e(f"v_cvt_pk_bf16_f32 v11, v{vP0}, v{vP0+2}")
    e(f"v_add_u32 v10, s{sT1}, v10")
    e(f"ds_write_b32 v10, v11 offset:{L_QL}")
    lds_signal(2)
    e(f"v_add_u32 v10, {L_QL}, v8")
    lds_wait(2, 4)
    e(f"ds_read_b128 v[{vQ}:{vQ+3}], v10")
    e("s_waitcnt lgkmcnt(0)")
    stamp(3)
    def dreg(G, a): return vD + (G & 1)*16 + a*4
    def mf(G, a):
        t = 4*G + a; d = dreg(G, a)
        e(f"v_mfma_f32_16x16x32_bf16 v[{d}:{d+3}], v[{vKK+4*t}:{vKK+4*t+3}], v[{vQ}:{vQ+3}], 0")
    def dpp(G, step):
        for a in range(4):
            d = dreg(G, a) + step; sdst = vS + 4*G + a
            qp = f"quad_perm:[{step},{step},{step},{step}] row_mask:0xf bank_mask:0xf"
            if step == 0: e(f"v_mov_b32_dpp v{sdst}, v{d} {qp}")
            else: e(f"v_add_f32_dpp v{sdst}, v{d}, v{sdst} {qp}")
    for a in range(4): mf(0, a)
    for G in range(1, 4):
        for a in range(4):
            mf(G, a)
            if a == 0: e("s_nop 4")
            dpp(G-1, a)
    e("s_nop 4")
    for st in range(4): dpp(3, st)
    for G in range(4):
        e(f"v_cndmask_b32 v{vR+G}, v{vS+4*G}, v{vS+4*G+1}, s[{sM1}:{sM1+1}]")
    for G in range(4):
        e(f"v_cndmask_b32 v{vR+G}, v{vR+G}, v{vS+4*G+2}, s[{sM2}:{sM2+1}]")
    for G in range(4):
        e(f"v_cndmask_b32 v{vR+G}, v{vR+G}, v{vS+4*G+3}, s[{sM3}:{sM3+1}]")
    def quadrow_reduce(v, op, t1):
        e("s_nop 1")
        e(f"{op}_dpp v{v}, v{v}, v{v} quad_perm:[1,0,3,2] row_mask:0xf bank_mask:0xf")
        e("s_nop 1")
        e(f"{op}_dpp v{v}, v{v}, v{v} quad_perm:[2,3,0,1] row_mask:0xf bank_mask:0xf")
        e("s_nop 0")
        e(f"v_mov_b32 v{t1}, v{v}")
        e("s_nop 1")
        e(f"v_permlane16_swap_b32 v{v}, v{t1}")
        e("s_nop 1")
        e(f"{op} v{v}, v{v}, v{t1}")
        e(f"v_mov_b32 v{t1}, v{v}")
        e("s_nop 1")
        e(f"v_permlane32_swap_b32 v{v}, v{t1}")
        e("s_nop 1")
        e(f"{op} v{v}, v{v}, v{t1}")
    e(f"v_max3_f32 v10, v{vR}, v{vR+1}, v{vR+2}")
    e(f"v_max_f32 v10, v10, v{vR+3}")
    quadrow_reduce(10, "v_max_f32", 11)
    e(f"s_mov_b32 s{sC1}, 0x3e0293ee")
    e(f"v_mul_f32 v10, s{sC1}, v10")
    for G in range(4):
        e(f"v_fma_f32 v{vR+G}, v{vR+G}, s{sC1}, -v10")
    for G in range(4):
        e(f"v_exp_f32 v{vR+G}, v{vR+G}")
    e("v_lshrrev_b32 v14, 2, v0")
    e("v_mul_u32_u24 v14, 80, v14")
    e(f"v_add_f32 v12, v{vR}, v{vR+1}")
    e(f"v_add_f32 v13, v{vR+2}, v{vR+3}")
    for G in range(4):
        e(f"v_cvt_pk_bf16_f32 v{vR+G}, v{vR+G}, v{vR+G}")
    e(f"v_add_f32 v12, v12, v13")
    e("v_and_b32 v15, 3, v0")
    e("v_lshl_add_u32 v14, v15, 2, v14")
    e(f"s_mul_i32 s{sT1}, s3, 1280")
    e(f"v_add_u32 v14, s{sT1}, v14")
    for G in range(4):
        e(f"ds_write_b32 v14, v{vR+G} offset:{L_PL+16*G}")
    quadrow_reduce(12, "v_add_f32", 13)
    e("v_mov_b32 v11, v12")
    e("v_lshlrev_b32 v14, 3, v0")
    e(f"s_lshl_b32 s{sT1}, s3, 3")
    e(f"v_add_u32 v14, s{sT1}, v14")
    e("s_mov_b64 exec, 0x1111")
    e(f"ds_write_b64 v14, v[10:11] offset:{L_ML}")
    e("s_mov_b64 exec, -1")
    lds_signal(4)
    stamp(4)
    cm("wo loads: wave k rows 64rb + 16k + 4rg + c (rg 0..3), 2 col halves")
    e(f"s_lshl_b32 s{sT1}, s5, 19")
    e(f"s_lshl_b32 s{sT2}, s{sHI}, 16")
    e(f"s_add_u32 s{sT1}, s{sT1}, s{sT2}")
    e(f"s_lshl_b32 s{sT2}, s3, 14")
    e(f"s_add_u32 s{sT1}, s{sT1}, s{sT2}")
    e(f"s_lshl_b32 s{sT2}, s{sLO}, 9")
    e(f"s_add_u32 s{sT1}, s{sT1}, s{sT2}")
    e(f"s_add_u32 s{sT1}, s{sT1}, 4096")
    addr64(sA2, sWO, sT1)
    e("v_lshrrev_b32 v13, 4, v0")
    e("v_lshlrev_b32 v13, 10, v13")
    e("v_and_b32 v14, 15, v0")
    e("v_lshl_add_u32 v13, v14, 4, v13")
    for rg in range(4):
        if rg == 2:
            e(f"s_add_u32 s{sA2}, s{sA2}, 8192")
            e(f"s_addc_u32 s{sA2+1}, s{sA2+1}, 0")
        for hf in range(2):
            i = rg*2+hf
            e(f"global_load_dwordx4 v[{vWO+4*i}:{vWO+4*i+3}], v13, s[{sA2}:{sA2+1}] offset:{(rg&1)*4096-4096+hf*256}{NT}")
    cm("publish (M,L) from wave 0 after all P ready")
    e("s_cmp_eq_u32 s3, 0")
    e("s_cbranch_scc0 L_nomlpub")
    e("v_bfe_u32 v9, v0, 2, 2")
    e("v_lshlrev_b32 v9, 5, v9")
    e(f"s_lshl_b32 s{sT1}, s{sCL}, 4")
    e(f"s_add_u32 s{sT1}, s{sT1}, s6")
    e(f"s_lshl_b32 s{sT1}, s{sT1}, 6")
    e(f"s_add_u32 s{sT1}, s{sT1}, {WS_ML}")
    addr64(sA, sWS, sT1)
    lds_wait(4, 4)
    e(f"ds_read_b128 v[80:83], v9 offset:{L_ML}")
    e(f"ds_read_b128 v[84:87], v9 offset:{L_ML+16}")
    e("v_lshlrev_b32 v11, 2, v0")
    e("s_waitcnt lgkmcnt(0)")
    e("v_max3_f32 v12, v80, v82, v84")
    e("v_max_f32 v12, v12, v86")
    for r in (80, 82, 84, 86): e(f"v_sub_f32 v{r}, v{r}, v12")
    for r in (80, 82, 84, 86): e(f"v_exp_f32 v{r}, v{r}")
    e(f"v_mov_b32 v13, s{sTAG}")
    e("v_mul_f32 v14, v80, v81")
    e("v_fmac_f32 v14, v82, v83")
    e("v_fmac_f32 v14, v84, v85")
    e("v_fmac_f32 v14, v86, v87")
    e(f"v_mov_b32 v15, s{sTAG}")
    e("s_mov_b64 exec, 0x1111")
    e(f"global_store_dwordx4 v11, v[12:15], s[{sA}:{sA+1}] sc1")
    e("s_mov_b64 exec, -1")
    lab("L_nomlpub")
    cm("publish o: wave=grp; p'=l&3, i''=(l>>2)&3, h=l>>4")
    e("v_lshrrev_b32 v10, 4, v0")
    e("v_lshlrev_b32 v10, 7, v10")
    e("v_and_b32 v11, 3, v0")
    e("v_lshl_add_u32 v10, v11, 5, v10")
    e("v_bfe_u32 v11, v0, 2, 2")
    e("v_lshl_add_u32 v10, v11, 3, v10")
    e(f"s_lshl_b32 s{sT1}, s3, 9")
    e(f"v_add_u32 v10, s{sT1}, v10")
    e(f"s_lshl_b32 s{sT1}, s{sCL}, 4")
    e(f"s_add_u32 s{sT1}, s{sT1}, s6")
    e(f"s_lshl_b32 s{sT1}, s{sT1}, 12")
    e(f"s_lshl_b32 s{sT2}, s3, 8")
    e(f"s_add_u32 s{sT1}, s{sT1}, s{sT2}")
    e(f"s_add_u32 s{sT1}, s{sT1}, {WS_O}")
    addr64(sA, sWS, sT1)
    e("v_lshrrev_b32 v11, 4, v0")
    e("v_lshlrev_b32 v11, 10, v11")
    e("v_and_b32 v12, 15, v0")
    e("v_lshl_add_u32 v11, v12, 4, v11")
    lds_wait(5, 4)
    stamp(5)
    for vw in range(4):
        e(f"ds_read_b64 v[{vP0+2*vw}:{vP0+2*vw+1}], v10 offset:{L_OP+vw*2048}")
    e(f"v_mov_b32 v13, s{sTAG}")
    e(f"v_mov_b32 v15, s{sTAG}")
    e("s_waitcnt lgkmcnt(0)")
    e(f"v_add_f32 v12, v{vP0}, v{vP0+2}")
    e(f"v_add_f32 v14, v{vP0+1}, v{vP0+3}")
    e(f"v_add_f32 v{vP0+4}, v{vP0+4}, v{vP0+6}")
    e(f"v_add_f32 v{vP0+5}, v{vP0+5}, v{vP0+7}")
    e(f"v_add_f32 v12, v12, v{vP0+4}")
    e(f"v_add_f32 v14, v14, v{vP0+5}")
    e(f"global_store_dwordx4 v11, v[12:15], s[{sA}:{sA+1}] sc1")
    if o.prof:
        e("s_waitcnt vmcnt(1)")
        stamp(14)
        e("s_waitcnt vmcnt(0)")
        stamp(15)
    cm("hop 2 poll: lane (s=l&7, b=(l>>3)&1, c=l>>4); wave k covers r8 = rb*8 + 2k + {0,1}")
    e(f"s_lshl_b32 s{sT1}, s{sCL}, 16")
    e(f"s_lshl_b32 s{sT2}, s{sHI}, 9")
    e(f"s_add_u32 s{sT1}, s{sT1}, s{sT2}")
    e(f"s_lshl_b32 s{sT2}, s3, 7")
    e(f"s_add_u32 s{sT1}, s{sT1}, s{sT2}")
    e(f"s_add_u32 s{sT1}, s{sT1}, {WS_O}")
    addr64(sA, sWS, sT1)
    e("v_and_b32 v10, 15, v0")
    e("v_lshlrev_b32 v11, 12, v10")
    e("v_lshrrev_b32 v12, 4, v0")
    e("v_lshl_add_u32 v11, v12, 4, v11")
    e(f"s_lshl_b32 s{sT1}, s{sCL}, 10")
    e(f"s_lshr_b32 s{sT2}, s{sHI}, 1")
    e(f"s_lshl_b32 s{sT2}, s{sT2}, 4")
    e(f"s_add_u32 s{sT1}, s{sT1}, s{sT2}")
    e(f"s_add_u32 s{sT1}, s{sT1}, {WS_ML}")
    addr64(sA2, sWS, sT1)
    e("v_lshlrev_b32 v10, 6, v10")
    e(f"s_mov_b32 s{sCNT}, {o.spin}")
    vP = 80
    lab("L_pollo")
    e(f"global_load_dwordx4 v[{vP}:{vP+3}], v11, s[{sA}:{sA+1}] sc1")
    e(f"global_load_dwordx4 v[{vP+4}:{vP+7}], v11, s[{sA}:{sA+1}] offset:64 sc1")
    e(f"global_load_dwordx4 v[{vP+8}:{vP+11}], v10, s[{sA2}:{sA2+1}] sc1")
    e("s_waitcnt vmcnt(0)")
    tagcheck([vP+1, vP+3, vP+5, vP+7, vP+9, vP+11])
    e("s_cbranch_scc1 L_goto")
    e(f"s_sub_u32 s{sCNT}, s{sCNT}, 1")
    e(f"s_cmp_lg_u32 s{sCNT}, 0")
    e("s_cbranch_scc1 L_pollo")
    lab("L_goto")
    stamp(6)
    stampcnt(12)
    os_ = [vP, vP+2, vP+4, vP+6]; vMm, vLl = vP+8, vP+10
    e(f"v_mov_b32 v12, v{vMm}")
    e("s_nop 1")
    for pat in ["quad_perm:[1,0,3,2]", "quad_perm:[2,3,0,1]", "row_half_mirror"]:
        e(f"v_max_f32_dpp v12, v12, v12 {pat} row_mask:0xf bank_mask:0xf")
        e("s_nop 1")
    e(f"v_sub_f32 v12, v{vMm}, v12")
    e("v_exp_f32 v12, v12")
    e("s_nop 0")
    e(f"v_mul_f32 v{vLl}, v{vLl}, v12")
    for r in os_: e(f"v_mul_f32 v{r}, v{r}, v12")
    for pat in ["quad_perm:[1,0,3,2]", "quad_perm:[2,3,0,1]", "row_half_mirror"]:
        for r in [vLl] + os_:
            e(f"v_add_f32_dpp v{r}, v{r}, v{r} {pat} row_mask:0xf bank_mask:0xf")
    e(f"v_rcp_f32 v{vLl}, v{vLl}")
    e("s_nop 0")
    for r in os_: e(f"v_mul_f32 v{r}, v{r}, v{vLl}")
    for r in os_: e(f"v_cvt_pk_bf16_f32 v{r}, v{r}, v{r}")
    vBq = 96
    for q in range(4):
        for r in range(4):
            e(f"v_and_b32 v{vBq+4*q+r}, v{os_[q]}, v{vM+r}")
    vD0 = 112
    e("s_nop 1")
    for rg in range(4):
        for hf in range(2):
            i = rg*2+hf
            c = "0" if rg == 0 else f"v[{vD0+4*hf}:{vD0+4*hf+3}]"
            e(f"v_mfma_f32_16x16x32_bf16 v[{vD0+4*hf}:{vD0+4*hf+3}], v[{vWO+4*i}:{vWO+4*i+3}], v[{vBq+4*rg}:{vBq+4*rg+3}], {c}")
    e(f"s_lshl_b32 s{sT1}, s3, 11")
    e("v_lshlrev_b32 v10, 2, v0")
    e(f"v_add_u32 v10, s{sT1}, v10")
    e("s_nop 6")
    for hf in range(2):
        e(f"ds_write2st64_b32 v10, v{vD0+4*hf}, v{vD0+4*hf+1} offset0:{L_FP//256+4*hf} offset1:{L_FP//256+4*hf+1}")
        e(f"ds_write2st64_b32 v10, v{vD0+4*hf+2}, v{vD0+4*hf+3} offset0:{L_FP//256+4*hf+2} offset1:{L_FP//256+4*hf+3}")
    lds_signal(6)
    e(f"s_lshl_b32 s{sT1}, s3, 9")
    e("v_lshlrev_b32 v10, 3, v0")
    e(f"v_add_u32 v10, s{sT1}, v10")
    e(f"s_lshl_b32 s{sT1}, s4, 19")
    e(f"s_lshl_b32 s{sT2}, s{sLO}, 18")
    e(f"s_add_u32 s{sT1}, s{sT1}, s{sT2}")
    e(f"s_lshl_b32 s{sT2}, s3, 16")
    e(f"s_add_u32 s{sT1}, s{sT1}, s{sT2}")
    e(f"s_lshl_b32 s{sT2}, s5, 9")
    e(f"s_add_u32 s{sT1}, s{sT1}, s{sT2}")
    e(f"s_lshl_b32 s{sT2}, s{sHI}, 6")
    e(f"s_add_u32 s{sT1}, s{sT1}, s{sT2}")
    e(f"s_add_u32 s{sT1}, s{sT1}, {WS_F}")
    addr64(sA, sWS, sT1)
    e("v_lshrrev_b32 v11, 2, v0")
    e("v_lshlrev_b32 v11, 12, v11")
    e("v_and_b32 v12, 3, v0")
    e("v_lshl_add_u32 v11, v12, 4, v11")
    lds_wait(6, 4)
    stamp(7)
    for wv in range(4):
        e(f"ds_read_b64 v[{16+2*wv}:{16+2*wv+1}], v10 offset:{L_FP+wv*2048}")
    e(f"v_mov_b32 v13, s{sTAG}")
    e(f"v_mov_b32 v15, s{sTAG}")
    e("s_waitcnt lgkmcnt(0)")
    e("v_add_f32 v16, v16, v18")
    e("v_add_f32 v17, v17, v19")
    e("v_add_f32 v20, v20, v22")
    e("v_add_f32 v21, v21, v23")
    e("v_add_f32 v12, v16, v20")
    e("v_add_f32 v14, v17, v21")
    e(f"global_store_dwordx4 v11, v[12:15], s[{sA}:{sA+1}] sc1")
    e("s_cmp_eq_u32 s3, 0")
    e("s_cbranch_scc0 L_fin")
    cm("hop 3 poll (wave 0)")
    e(f"s_lshl_b32 s{sT1}, s2, 12")
    e(f"s_add_u32 s{sT1}, s{sT1}, {WS_F}")
    addr64(sA, sWS, sT1)
    e("v_lshlrev_b32 v11, 4, v0")
    e(f"s_mov_b32 s{sCNT}, {o.spin}")
    stamp(8)
    lab("L_pollf")
    for q in range(4):
        e(f"global_load_dwordx4 v[{16+4*q}:{16+4*q+3}], v11, s[{sA}:{sA+1}] offset:{q*1024} sc1")
    e("s_waitcnt vmcnt(0)")
    tagcheck([17, 19, 21, 23, 25, 27, 29, 31])
    e("s_cbranch_scc1 L_gotf")
    e(f"s_sub_u32 s{sCNT}, s{sCNT}, 1")
    e(f"s_cmp_lg_u32 s{sCNT}, 0")
    e("s_cbranch_scc1 L_pollf")
    lab("L_gotf")
    stamp(9)
    stampcnt(13)
    e("v_add_f32 v16, v16, v20")
    e("v_add_f32 v18, v18, v22")
    e("v_add_f32 v24, v24, v28")
    e("v_add_f32 v26, v26, v30")
    e("v_add_f32 v16, v16, v24")
    e("v_add_f32 v18, v18, v26")
    e("s_nop 1")
    for pat in ["row_ror:4", "row_ror:8"]:
        e(f"v_add_f32_dpp v16, v16, v16 {pat} row_mask:0xf bank_mask:0xf")
        e(f"v_add_f32_dpp v18, v18, v18 {pat} row_mask:0xf bank_mask:0xf")
        e("s_nop 1")
    for sw in ["v_permlane16_swap_b32", "v_permlane32_swap_b32"]:
        e("v_mov_b32 v20, v16")
        e("v_mov_b32 v22, v18")
        e("s_nop 1")
        e(f"{sw} v16, v20")
        e(f"{sw} v18, v22")
        e("s_nop 1")
        e("v_add_f32 v16, v16, v20")
        e("v_add_f32 v18, v18, v22")
    e("v_cvt_pk_bf16_f32 v16, v16, v18")
    e(f"s_and_b32 s{sT1}, s2, 1")
    e(f"s_lshl_b32 s{sT1}, s{sT1}, 11")
    e(f"s_lshl_b32 s{sT2}, s4, 10")
    e(f"s_add_u32 s{sT1}, s{sT1}, s{sT2}")
    e(f"s_bfe_u32 s{sT2}, s2, 0x20005")
    e(f"s_lshl_b32 s{sT2}, s{sT2}, 8")
    e(f"s_add_u32 s{sT1}, s{sT1}, s{sT2}")
    e(f"s_bfe_u32 s{sT2}, s2, 0x20001")
    e(f"s_lshl_b32 s{sT2}, s{sT2}, 6")
    e(f"s_add_u32 s{sT1}, s{sT1}, s{sT2}")
    e(f"s_bfe_u32 s{sT2}, s2, 0x20003")
    e(f"s_lshl_b32 s{sT2}, s{sT2}, 4")
    e(f"s_add_u32 s{sT1}, s{sT1}, s{sT2}")
    addr64(sA, sOUT, sT1)
    e("v_lshlrev_b32 v11, 2, v0")
    e("s_mov_b64 exec, 0xf")
    e(f"global_store_dword v11, v16, s[{sA}:{sA+1}]")
    e(f"s_and_b32 s{sT1}, s2, 127")
    e(f"s_cmp_eq_u32 s{sT1}, 0")
    e("s_cbranch_scc0 L_fin")
    e(f"s_lshl_b32 s{sT1}, s4, 8")
    e(f"v_mov_b32 v11, s{sT1}")
    e(f"v_mov_b32 v12, s{sTAG}")
    e("s_mov_b64 exec, 1")
    e(f"global_store_dword v11, v12, s[{sWS}:{sWS+1}]")
    lab("L_fin")
    if o.prof == 3:
        stamp(10)
        e("s_waitcnt lgkmcnt(0)")
        e("s_cmp_eq_u32 s2, 0")
        e("s_cbranch_scc0 L_end")
        e("s_mov_b64 exec, 1")
        e("v_mov_b32 v11, 0")
        def am(slot, st):
            e(f"v_mov_b32 v12, s{sST+2*st}")
            e(f"global_store_dword v11, v12, s[{sDBG}:{sDBG+1}] offset:{4*slot}")
            e("s_nop 1")
        e("s_cmp_eq_u32 s3, 4")
        e("s_cbranch_scc0 L_dk")
        am(1, 8); am(2, 2); am(3, 3); am(4, 5); am(5, 6)
        e("s_branch L_end")
        lab("L_dk")
        e("s_cmp_eq_u32 s3, 0")
        e("s_cbranch_scc0 L_end")
        am(0, 0); am(6, 1); am(7, 2); am(8, 4); am(9, 5); am(10, 14); am(11, 15); am(12, 6); am(13, 7); am(14, 9); am(15, 10)
    elif o.prof == 2:
        stamp(10)
        e("s_waitcnt lgkmcnt(0)")
        e("s_mov_b64 exec, 1")
        e("v_mov_b32 v11, 0")
        def am(slot, st, neg=False):
            if neg: e(f"s_not_b32 s{sT1}, s{sST+2*st}"); e(f"v_mov_b32 v12, s{sT1}")
            else: e(f"v_mov_b32 v12, s{sST+2*st}")
            e(f"global_atomic_umax v11, v12, s[{sDBG}:{sDBG+1}] offset:{4*slot}")
            e("s_nop 1")
        am(0, 0, True); am(1, 0); am(13, 10)
        e("s_cmp_lt_u32 s3, 4")
        e("s_cbranch_scc1 L_dk")
        am(2, 8); am(3, 2); am(4, 3); am(7, 6); am(14, 8, True); am(15, 2, True)
        e("s_branch L_end")
        lab("L_dk")
        am(5, 2); am(6, 4); am(8, 14); am(9, 15); am(10, 6); am(11, 7)
        e("s_cmp_eq_u32 s3, 0")
        e("s_cbranch_scc0 L_end")
        am(12, 9)
    elif o.prof:
        stamp(10)
        e("s_waitcnt lgkmcnt(0)")
        e("s_mov_b64 exec, 1")
        e(f"s_lshl_b32 s{sT1}, s2, 3")
        e(f"s_add_u32 s{sT1}, s{sT1}, s3")
        e(f"s_lshl_b32 s{sT1}, s{sT1}, 7")
        e(f"s_add_u32 s{sT1}, s{sT1}, {WS_PROF}")
        e(f"v_mov_b32 v11, s{sT1}")
        for i in range(NST):
            e(f"v_mov_b32 v12, s{sST+2*i}")
            e(f"global_store_dword v11, v12, s[{sWS}:{sWS+1}] offset:{4*i}")
            e("s_nop 1")
    lab("L_end")
    e("s_endpgm")
    L.append('.section .rodata,"a"')
    L.append(".p2align 6")
    L.append(f".amdhsa_kernel {NAME}_kernel")
    L.append(f"  .amdhsa_next_free_vgpr {NV}")
    L.append("  .amdhsa_next_free_sgpr 100")
    L.append(f"  .amdhsa_accum_offset {NV}")
    L.append("  .amdhsa_group_segment_fixed_size 0")
    L.append("  .amdhsa_kernarg_size 104")
    L.append("  .amdhsa_user_sgpr_count 2")
    L.append("  .amdhsa_user_sgpr_kernarg_segment_ptr 1")
    L.append("  .amdhsa_system_sgpr_workgroup_id_x 1")
    L.append(".end_amdhsa_kernel")
    return "\n".join(L) + "\n"

if __name__ == "__main__":
    o = Opt()
    out = sys.argv[1]
    for a in sys.argv[2:]:
        k, v = a.split("=")
        assert hasattr(o, k), k
        setattr(o, k, int(v))
    open(out, "w").write(gen(o))
```

```python
import sys
NAME = "concat_heads__sliding_block_cached__sliding_block_cached__decode"

class Opt:
    prof = 0
    nt = 1
    spin = 200000
    wk = 16
    wv = 16
    kdelay = 1
    touch = 1
    warm = 0

def gen(o):
    L = []
    def e(s): L.append("    " + s)
    def lab(s): L.append(s + ":")
    def cm(s): L.append("    ; " + s)
    NT = " nt" if o.nt else ""
    WS_EP = 0; WS_Q = 0x1000; WS_ML = WS_Q + 0x40000; WS_O = 0x80000; WS_F = 0x180000; WS_PROF = 0x800000
    L_QP = 0; L_OP = 0; L_QL = 8192; L_PL = 9216; L_ML = 14336; L_CT = 14592; L_FP = 16384; LDS = 32768
    sX, sK, sV, sWQ, sWO = 8, 10, 12, 14, 16
    sOUT, sDBG, sWS = 28, 30, 32
    sEP = 34; sTAG = 35; sB, sS = 36, 37; sHI, sLO = 38, 39
    sT0, sT1, sT2, sT3 = 40, 41, 42, 43
    sA = 44; sA2 = 46; sM1, sM2, sM3 = 48, 50, 52; sC = 54; sCNT = 56
    sSEL_LO, sSEL_HI = 57, 58; sC1 = 59; sCL = 60; sKW = 61; sPC = 62
    sST = 64
    NST = 16
    def stamp(i):
        if o.prof: e(f"s_memrealtime s[{sST+2*i}:{sST+2*i+1}]")
    def stampcnt(i):
        if o.prof: e(f"s_sub_u32 s{sST+2*i}, {o.spin}, s{sCNT}")
    vM = 1
    vKK = 16; vD = 80; vS = 112; vQ = 128; vR = 132; vP0 = 136; vWO = 144
    vWQ = 16; vVV = 16; vX = 80; vPV = 112; vACC = 128; vXX = 136; vBB = 144; vQA = 152
    NV = 184

    def lds_signal(idx):
        e("s_waitcnt lgkmcnt(0)")
        e(f"v_mov_b32 v14, {L_CT + 4*idx}")
        e("v_mov_b32 v15, 1")
        e("s_mov_b64 exec, 1")
        e("ds_add_u32 v14, v15")
        e("s_mov_b64 exec, -1")
    nw = [0]
    def lds_wait(idx, target):
        n = nw[0]; nw[0] += 1
        e(f"v_mov_b32 v14, {L_CT + 4*idx}")
        lab(f"L_lw{n}")
        e("ds_read_b32 v15, v14")
        e("s_waitcnt lgkmcnt(0)")
        e("v_readfirstlane_b32 s63, v15")
        e(f"s_cmp_lt_u32 s63, {target}")
        e(f"s_cbranch_scc1 L_lw{n}")
    def tagcheck(regs):
        e(f"v_cmp_eq_u32 vcc, s{sTAG}, v{regs[0]}")
        for r in regs[1:]:
            e(f"v_cmp_eq_u32 s[{sC}:{sC+1}], s{sTAG}, v{r}")
            e(f"s_and_b64 vcc, vcc, s[{sC}:{sC+1}]")
        e("s_cmp_eq_u64 vcc, exec")
    def masks():
        e("v_and_b32 v10, 1, v0")
        e("v_lshlrev_b32 v10, 4, v10")
        e("v_mov_b32 v11, 0xffff")
        e("v_lshlrev_b32 v11, v10, v11")
        e("v_bfe_u32 v10, v0, 1, 2")
        for r in range(4):
            e(f"v_cmp_eq_u32 vcc, {r}, v10")
            e("s_nop 1")
            e(f"v_cndmask_b32 v{vM+r}, 0, v11, vcc")
    def addr64(dst, base, off):
        e(f"s_add_u32 s{dst}, s{base}, s{off}")
        e(f"s_addc_u32 s{dst+1}, s{base+1}, 0")

    L.append(f"; @launch grid=(256,1,1) block=(512,1,1) lds={LDS}")
    L.append('.amdgcn_target "amdgcn-amd-amdhsa--gfx950"')
    L.append(".text")
    L.append(f".globl {NAME}_kernel")
    L.append(".p2align 8")
    L.append(f".type {NAME}_kernel,@function")
    lab(f"{NAME}_kernel")
    e("s_cmp_ge_u32 s2, 0x100")
    e("s_cbranch_scc1 L_end")
    e("s_load_dwordx16 s[8:23], s[0:1], 0")
    e("s_load_dwordx8 s[24:31], s[0:1], 64")
    e("s_load_dwordx2 s[32:33], s[0:1], 96")
    stamp(0)
    e("v_lshrrev_b32 v5, 6, v0")
    e("v_and_b32 v0, 63, v0")
    e("s_lshr_b32 s4, s2, 7")
    e("v_readfirstlane_b32 s3, v5")
    e("s_and_b32 s5, s2, 7")
    e("s_bfe_u32 s6, s2, 0x40003")
    e(f"s_lshr_b32 s{sB}, s6, 3")
    e(f"s_and_b32 s{sS}, s6, 7")
    e(f"s_lshr_b32 s{sHI}, s6, 1")
    e(f"s_and_b32 s{sLO}, s6, 1")
    e(f"s_lshl_b32 s{sCL}, s4, 3")
    e(f"s_add_u32 s{sCL}, s{sCL}, s5")
    e(f"s_and_b32 s{sKW}, s3, 3")
    e(f"s_lshl_b32 s{sT0}, s{sB}, 3")
    e(f"s_add_u32 s{sT0}, s{sT0}, s5")
    e(f"s_lshl_b32 s{sT0}, s{sT0}, 21")
    e(f"s_lshl_b32 s{sT1}, s{sS}, 16")
    e(f"s_add_u32 s{sT0}, s{sT0}, s{sT1}")
    e(f"s_lshl_b32 s{sT1}, s{sKW}, 14")
    e(f"s_add_u32 s{sT0}, s{sT0}, s{sT1}")
    e(f"s_add_u32 s{sT0}, s{sT0}, {6144*256 + 4096}")
    e("s_cmp_lt_u32 s3, 4")
    e("s_cbranch_scc1 L_kpath")

    e("v_lshrrev_b32 v6, 3, v0")
    e("v_and_b32 v7, 7, v0")
    e("v_lshlrev_b32 v5, 16, v6")
    e("v_lshl_add_u32 v5, v7, 4, v5")
    e("v_lshlrev_b32 v6, 4, v6")
    e(f"s_lshl_b32 s{sT1}, s{sLO}, 8")
    e(f"s_lshl_b32 s{sT2}, s{sKW}, 6")
    e(f"s_add_u32 s{sT1}, s{sT1}, s{sT2}")
    e(f"s_lshl_b32 s{sT2}, s{sT1}, 13")
    e(f"s_lshl_b32 s{sT3}, s5, 10")
    e(f"s_add_u32 s{sT2}, s{sT2}, s{sT3}")
    e(f"s_lshl_b32 s{sT3}, s{sHI}, 7")
    e(f"s_add_u32 s{sT2}, s{sT2}, s{sT3}")
    e(f"s_lshl_b32 s{sT1}, s{sT1}, 1")
    e("s_waitcnt lgkmcnt(0)")
    stamp(8)
    e("s_cmp_eq_u32 s4, 0")
    e(f"s_cselect_b64 s[{sWQ}:{sWQ+1}], s[14:15], s[24:25]")
    e(f"s_cselect_b64 s[{sX}:{sX+1}], s[8:9], s[18:19]")
    e(f"s_cselect_b64 s[{sV}:{sV+1}], s[12:13], s[22:23]")
    addr64(sA, sWQ, sT2)
    for t in range(8):
        e(f"global_load_dwordx4 v[{vWQ+4*t}:{vWQ+4*t+3}], v5, s[{sA}:{sA+1}]{NT}")
        if t < 7:
            e(f"s_add_u32 s{sA}, s{sA}, 8192")
            e(f"s_addc_u32 s{sA+1}, s{sA+1}, 0")
    stamp(9)
    addr64(sX, sX, sT1)
    e(f"global_load_dwordx4 v[{vXX}:{vXX+3}], v6, s[{sX}:{sX+1}]")
    e(f"global_load_dwordx4 v[{vXX+4}:{vXX+7}], v6, s[{sX}:{sX+1}] offset:1024")
    if o.kdelay: e("s_barrier")
    else: e("s_barrier")
    stamp(1)
    e(f"s_lshl_b32 s{sT3}, s4, 8")
    e(f"s_load_dword s{sEP}, s[{sWS}:{sWS+1}], s{sT3}")
    addr64(sV, sV, sT0)
    masks()
    e(f"s_mov_b32 s{sSEL_LO}, 0x01000100")
    e(f"s_mov_b32 s{sSEL_HI}, 0x03020302")
    for i in range(8):
        e(f"v_mov_b32 v{vQA+i}, 0")
    e("s_waitcnt vmcnt(0)")
    stamp(2)
    def bbuild(dst, src, sel, tmp):
        e(f"v_perm_b32 v{tmp}, v{src}, v{src}, s{sel}")
        for r in range(4):
            e(f"v_and_b32 v{dst+r}, v{tmp}, v{vM+r}")
    for t in range(8):
        sel = sSEL_HI if (t & 1) else sSEL_LO
        bbuild(vBB, vXX + (t >> 1), sel, 10)
        bbuild(vBB+4, vXX + 4 + (t >> 1), sel, 11)
        e(f"v_mfma_f32_16x16x32_bf16 v[{vQA}:{vQA+3}], v[{vWQ+4*t}:{vWQ+4*t+3}], v[{vBB}:{vBB+3}], v[{vQA}:{vQA+3}]")
        e("s_nop 0")
        e(f"v_mfma_f32_16x16x32_bf16 v[{vQA+4}:{vQA+7}], v[{vWQ+4*t}:{vWQ+4*t+3}], v[{vBB+4}:{vBB+7}], v[{vQA+4}:{vQA+7}]")
    e(f"s_lshl_b32 s{sT1}, s{sKW}, 11")
    e(f"v_lshlrev_b32 v10, 2, v0")
    e(f"v_add_u32 v10, s{sT1}, v10")
    e("s_nop 6")
    for b in range(2):
        e(f"ds_write2st64_b32 v10, v{vQA+4*b}, v{vQA+4*b+1} offset0:{4*b} offset1:{4*b+1}")
        e(f"ds_write2st64_b32 v10, v{vQA+4*b+2}, v{vQA+4*b+3} offset0:{4*b+2} offset1:{4*b+3}")
    lds_signal(1)
    e(f"s_add_u32 s{sTAG}, s{sEP}, 0x9e3779b9")
    cm("publish q (wave 4 only)")
    e("s_cmp_eq_u32 s3, 4")
    e("s_cbranch_scc0 L_noqpub")
    e("v_lshrrev_b32 v10, 5, v0")
    e("v_lshlrev_b32 v10, 10, v10")
    e("v_bfe_u32 v11, v0, 2, 2")
    e("v_lshl_add_u32 v10, v11, 8, v10")
    e("v_bfe_u32 v11, v0, 4, 1")
    e("v_lshl_add_u32 v10, v11, 6, v10")
    e("v_and_b32 v11, 3, v0")
    e("v_lshl_add_u32 v10, v11, 3, v10")
    e(f"s_lshl_b32 s{sT1}, s{sCL}, 14")
    e(f"s_lshl_b32 s{sT2}, s{sLO}, 12")
    e(f"s_add_u32 s{sT1}, s{sT1}, s{sT2}")
    e(f"s_lshl_b32 s{sT2}, s{sHI}, 9")
    e(f"s_add_u32 s{sT1}, s{sT1}, s{sT2}")
    e(f"s_add_u32 s{sT1}, s{sT1}, {WS_Q}")
    addr64(sA, sWS, sT1)
    e("v_lshrrev_b32 v11, 5, v0")
    e("v_lshlrev_b32 v11, 13, v11")
    e("v_and_b32 v12, 31, v0")
    e("v_lshl_add_u32 v11, v12, 4, v11")
    lds_wait(1, 4)
    base = 80
    for kw in range(4):
        e(f"ds_read_b64 v[{base+4*kw}:{base+4*kw+1}], v10 offset:{L_QP+kw*2048}")
        e(f"ds_read_b64 v[{base+4*kw+2}:{base+4*kw+3}], v10 offset:{L_QP+kw*2048+160}")
    e(f"v_mov_b32 v13, s{sTAG}")
    e(f"v_mov_b32 v15, s{sTAG}")
    e("s_waitcnt lgkmcnt(0)")
    for i in range(0, 16, 4):
        e(f"v_add_f32 v{base+i}, v{base+i}, v{base+i+2}")
        e(f"v_add_f32 v{base+i+1}, v{base+i+1}, v{base+i+3}")
    e(f"v_add_f32 v{base}, v{base}, v{base+4}")
    e(f"v_add_f32 v{base+1}, v{base+1}, v{base+5}")
    e(f"v_add_f32 v{base+8}, v{base+8}, v{base+12}")
    e(f"v_add_f32 v{base+9}, v{base+9}, v{base+13}")
    e(f"v_add_f32 v12, v{base}, v{base+8}")
    e(f"v_add_f32 v14, v{base+1}, v{base+9}")
    e(f"global_store_dwordx4 v11, v[12:15], s[{sA}:{sA+1}] sc1")
    lab("L_noqpub")
    stamp(3)
    e("v_lshlrev_b32 v5, 4, v0")
    for t in range(16):
        if t == 8:
            e(f"s_add_u32 s{sV}, s{sV}, 8192")
            e(f"s_addc_u32 s{sV+1}, s{sV+1}, 0")
        if t >= o.wv: e(f"s_waitcnt vmcnt({o.wv-1})")
        e(f"global_load_dwordx4 v[{vVV+4*t}:{vVV+4*t+3}], v5, s[{sV}:{sV+1}] offset:{(t%8)*1024-4096}{NT}")
    stamp(4)
    e("v_and_b32 v10, 1, v0")
    e("v_lshlrev_b32 v10, 4, v10")
    e("v_mov_b32 v11, 0xffff")
    e("v_lshlrev_b32 v11, v10, v11")
    e("v_and_b32 v10, 2, v0")
    e("v_cmp_eq_u32 vcc, 0, v10")
    e("v_lshrrev_b32 v8, 2, v0")
    e("v_mul_u32_u24 v8, 80, v8")
    e("v_cndmask_b32 v6, 0, v11, vcc")
    e("v_xor_b32 v7, v6, v11")
    e(f"s_mul_i32 s{sT2}, s{sKW}, 1280")
    e(f"v_add_u32 v8, s{sT2}, v8")
    e("v_bfe_u32 v9, v0, 2, 2")
    e("v_lshlrev_b32 v9, 5, v9")
    for i in range(8):
        e(f"v_mov_b32 v{vACC+i}, 0")
    lds_wait(4, 4)
    stamp(5)
    for G in range(4):
        e(f"ds_read_b128 v[{vPV+4*G}:{vPV+4*G+3}], v8 offset:{L_PL+16*G}")
    e(f"ds_read_b128 v[136:139], v9 offset:{L_ML}")
    e(f"ds_read_b128 v[140:143], v9 offset:{L_ML+16}")
    e(f"s_lshl_b32 s{sT1}, s{sKW}, 3")
    e(f"v_add_u32 v9, s{sT1}, v9")
    e(f"ds_read_b32 v144, v9 offset:{L_ML}")
    e("s_waitcnt lgkmcnt(3)")
    for t in range(16):
        e(f"v_and_b32 v{vX+2*t}, v{vPV+t}, v6")
        e(f"v_and_b32 v{vX+2*t+1}, v{vPV+t}, v7")
    e("s_waitcnt lgkmcnt(0)")
    e("v_max3_f32 v145, v136, v138, v140")
    e("v_max_f32 v145, v145, v142")
    e("v_sub_f32 v144, v144, v145")
    e("v_exp_f32 v144, v144")
    cm("PV")
    for t in range(16):
        e(f"s_waitcnt vmcnt({15-t})")
        for u in range(2):
            e(f"v_mfma_f32_16x16x16_bf16 v[{vACC+4*u}:{vACC+4*u+3}], v[{vVV+4*t+2*u}:{vVV+4*t+2*u+1}], v[{vX+2*t}:{vX+2*t+1}], v[{vACC+4*u}:{vACC+4*u+3}]")
    stamp(6)
    e("v_lshlrev_b32 v10, 5, v0")
    e(f"s_lshl_b32 s{sT1}, s{sKW}, 11")
    e(f"v_add_u32 v10, s{sT1}, v10")
    e("s_nop 5")
    for i in range(4):
        for u in range(2):
            e(f"v_mul_f32 v{136+2*i+u}, v{vACC+4*u+i}, v144")
    e(f"ds_write_b128 v10, v[136:139] offset:{L_OP}")
    e(f"ds_write_b128 v10, v[140:143] offset:{L_OP+16}")
    lds_signal(5)
    stamp(7)
    e("s_branch L_fin")

    lab("L_kpath")
    e("v_bfe_u32 v8, v0, 2, 2")
    e("v_lshlrev_b32 v8, 8, v8")
    e("v_lshrrev_b32 v9, 4, v0")
    e("v_lshl_add_u32 v8, v9, 6, v8")
    e("v_and_b32 v9, 3, v0")
    e("v_lshl_add_u32 v8, v9, 4, v8")
    cm("zero LDS counters (wave 0)")
    e("v_lshlrev_b32 v10, 2, v0")
    e("v_mov_b32 v11, 0")
    e(f"ds_write_b32 v10, v11 offset:{L_CT}")
    e("s_waitcnt lgkmcnt(0)")
    e("s_cmp_eq_u32 s4, 0")
    e(f"s_cselect_b64 s[{sK}:{sK+1}], s[10:11], s[20:21]")
    e(f"s_cselect_b64 s[{sWO}:{sWO+1}], s[16:17], s[26:27]")
    addr64(sK, sK, sT0)
    e("s_barrier")
    if o.touch:
        e("v_mov_b32 v10, 0")
        e(f"v_mov_b32 v11, {WS_F + 0x80000}")
        e(f"global_load_dword v180, v10, s[{sOUT}:{sOUT+1}]")
        e(f"global_load_dword v181, v11, s[{sWS}:{sWS+1}]")
    for t in range(16):
        if t == 8:
            e(f"s_add_u32 s{sK}, s{sK}, 8192")
            e(f"s_addc_u32 s{sK+1}, s{sK+1}, 0")
        if t >= o.wk: e(f"s_waitcnt vmcnt({o.wk-1})")
        e(f"global_load_dwordx4 v[{vKK+4*t}:{vKK+4*t+3}], v8, s[{sK}:{sK+1}] offset:{(t%8)*1024-4096}{NT}")
    stamp(1)
    e(f"s_lshl_b32 s{sT3}, s4, 8")
    e(f"s_load_dword s{sEP}, s[{sWS}:{sWS+1}], s{sT3}")
    masks()
    e("v_and_b32 v10, 3, v0")
    e(f"v_cmp_eq_u32 s[{sM1}:{sM1+1}], 1, v10")
    e(f"v_cmp_eq_u32 s[{sM2}:{sM2+1}], 2, v10")
    e(f"v_cmp_eq_u32 s[{sM3}:{sM3+1}], 3, v10")
    e(f"s_lshl_b32 s{sT1}, s{sCL}, 1")
    e(f"s_add_u32 s{sT1}, s{sT1}, s{sB}")
    e(f"s_lshl_b32 s{sT1}, s{sT1}, 13")
    e(f"s_lshl_b32 s{sT2}, s3, 10")
    e(f"s_add_u32 s{sT1}, s{sT1}, s{sT2}")
    e(f"s_add_u32 s{sT1}, s{sT1}, {WS_Q+4096}")
    addr64(sA, sWS, sT1)
    e("v_lshlrev_b32 v12, 4, v0")
    e(f"s_mov_b32 s{sCNT}, {o.spin}")
    e("s_waitcnt lgkmcnt(0)")
    e(f"s_add_u32 s{sTAG}, s{sEP}, 0x9e3779b9")
    lab("L_pollq")
    e(f"global_load_dwordx4 v[{vP0}:{vP0+3}], v12, s[{sA}:{sA+1}] offset:-4096 sc1")
    e(f"global_load_dwordx4 v[{vP0+4}:{vP0+7}], v12, s[{sA}:{sA+1}] sc1")
    e("s_waitcnt vmcnt(0)")
    tagcheck([vP0+1, vP0+3, vP0+5, vP0+7])
    e("s_cbranch_scc1 L_gotq")
    e(f"s_sub_u32 s{sCNT}, s{sCNT}, 1")
    e(f"s_cmp_lg_u32 s{sCNT}, 0")
    e("s_cbranch_scc1 L_pollq")
    lab("L_gotq")
    stamp(2)
    stampcnt(11)
    e(f"v_add_f32 v{vP0}, v{vP0}, v{vP0+4}")
    e(f"v_add_f32 v{vP0+2}, v{vP0+2}, v{vP0+6}")
    e(f"s_lshl_b32 s{sT1}, s3, 8")
    e(f"v_lshlrev_b32 v10, 2, v0")
    e(f"v_cvt_pk_bf16_f32 v11, v{vP0}, v{vP0+2}")
    e(f"v_add_u32 v10, s{sT1}, v10")
    e(f"ds_write_b32 v10, v11 offset:{L_QL}")
    lds_signal(2)
    e(f"v_add_u32 v10, {L_QL}, v8")
    lds_wait(2, 4)
    e(f"ds_read_b128 v[{vQ}:{vQ+3}], v10")
    e("s_waitcnt lgkmcnt(0)")
    stamp(3)
    def dreg(G, a): return vD + (G & 1)*16 + a*4
    def mf(G, a):
        t = 4*G + a; d = dreg(G, a)
        e(f"v_mfma_f32_16x16x32_bf16 v[{d}:{d+3}], v[{vKK+4*t}:{vKK+4*t+3}], v[{vQ}:{vQ+3}], 0")
    def dpp(G, step):
        for a in range(4):
            d = dreg(G, a) + step; sdst = vS + 4*G + a
            qp = f"quad_perm:[{step},{step},{step},{step}] row_mask:0xf bank_mask:0xf"
            if step == 0: e(f"v_mov_b32_dpp v{sdst}, v{d} {qp}")
            else: e(f"v_add_f32_dpp v{sdst}, v{d}, v{sdst} {qp}")
    for a in range(4): mf(0, a)
    for G in range(1, 4):
        for a in range(4):
            mf(G, a)
            if a == 0: e("s_nop 4")
            dpp(G-1, a)
    e("s_nop 4")
    for st in range(4): dpp(3, st)
    for G in range(4):
        e(f"v_cndmask_b32 v{vR+G}, v{vS+4*G}, v{vS+4*G+1}, s[{sM1}:{sM1+1}]")
    for G in range(4):
        e(f"v_cndmask_b32 v{vR+G}, v{vR+G}, v{vS+4*G+2}, s[{sM2}:{sM2+1}]")
    for G in range(4):
        e(f"v_cndmask_b32 v{vR+G}, v{vR+G}, v{vS+4*G+3}, s[{sM3}:{sM3+1}]")
    def quadrow_reduce(v, op, t1):
        e("s_nop 1")
        e(f"{op}_dpp v{v}, v{v}, v{v} quad_perm:[1,0,3,2] row_mask:0xf bank_mask:0xf")
        e("s_nop 1")
        e(f"{op}_dpp v{v}, v{v}, v{v} quad_perm:[2,3,0,1] row_mask:0xf bank_mask:0xf")
        e("s_nop 0")
        e(f"v_mov_b32 v{t1}, v{v}")
        e("s_nop 1")
        e(f"v_permlane16_swap_b32 v{v}, v{t1}")
        e("s_nop 1")
        e(f"{op} v{v}, v{v}, v{t1}")
        e(f"v_mov_b32 v{t1}, v{v}")
        e("s_nop 1")
        e(f"v_permlane32_swap_b32 v{v}, v{t1}")
        e("s_nop 1")
        e(f"{op} v{v}, v{v}, v{t1}")
    e(f"v_max3_f32 v10, v{vR}, v{vR+1}, v{vR+2}")
    e(f"v_max_f32 v10, v10, v{vR+3}")
    quadrow_reduce(10, "v_max_f32", 11)
    e(f"s_mov_b32 s{sC1}, 0x3e0293ee")
    e(f"v_mul_f32 v10, s{sC1}, v10")
    for G in range(4):
        e(f"v_fma_f32 v{vR+G}, v{vR+G}, s{sC1}, -v10")
    for G in range(4):
        e(f"v_exp_f32 v{vR+G}, v{vR+G}")
    e("v_lshrrev_b32 v14, 2, v0")
    e("v_mul_u32_u24 v14, 80, v14")
    e(f"v_add_f32 v12, v{vR}, v{vR+1}")
    e(f"v_add_f32 v13, v{vR+2}, v{vR+3}")
    for G in range(4):
        e(f"v_cvt_pk_bf16_f32 v{vR+G}, v{vR+G}, v{vR+G}")
    e(f"v_add_f32 v12, v12, v13")
    e("v_and_b32 v15, 3, v0")
    e("v_lshl_add_u32 v14, v15, 2, v14")
    e(f"s_mul_i32 s{sT1}, s3, 1280")
    e(f"v_add_u32 v14, s{sT1}, v14")
    for G in range(4):
        e(f"ds_write_b32 v14, v{vR+G} offset:{L_PL+16*G}")
    quadrow_reduce(12, "v_add_f32", 13)
    e("v_mov_b32 v11, v12")
    e("v_lshlrev_b32 v14, 3, v0")
    e(f"s_lshl_b32 s{sT1}, s3, 3")
    e(f"v_add_u32 v14, s{sT1}, v14")
    e("s_mov_b64 exec, 0x1111")
    e(f"ds_write_b64 v14, v[10:11] offset:{L_ML}")
    e("s_mov_b64 exec, -1")
    lds_signal(4)
    stamp(4)
    cm("wo loads: wave k rows 64rb + 16k + 4rg + c (rg 0..3), 2 col halves")
    e(f"s_lshl_b32 s{sT1}, s5, 19")
    e(f"s_lshl_b32 s{sT2}, s{sHI}, 16")
    e(f"s_add_u32 s{sT1}, s{sT1}, s{sT2}")
    e(f"s_lshl_b32 s{sT2}, s3, 14")
    e(f"s_add_u32 s{sT1}, s{sT1}, s{sT2}")
    e(f"s_lshl_b32 s{sT2}, s{sLO}, 9")
    e(f"s_add_u32 s{sT1}, s{sT1}, s{sT2}")
    e(f"s_add_u32 s{sT1}, s{sT1}, 4096")
    addr64(sA2, sWO, sT1)
    e("v_lshrrev_b32 v13, 4, v0")
    e("v_lshlrev_b32 v13, 10, v13")
    e("v_and_b32 v14, 15, v0")
    e("v_lshl_add_u32 v13, v14, 4, v13")
    for rg in range(4):
        if rg == 2:
            e(f"s_add_u32 s{sA2}, s{sA2}, 8192")
            e(f"s_addc_u32 s{sA2+1}, s{sA2+1}, 0")
        for hf in range(2):
            i = rg*2+hf
            e(f"global_load_dwordx4 v[{vWO+4*i}:{vWO+4*i+3}], v13, s[{sA2}:{sA2+1}] offset:{(rg&1)*4096-4096+hf*256}{NT}")
    cm("publish (M,L) from wave 0 after all P ready")
    e("s_cmp_eq_u32 s3, 0")
    e("s_cbranch_scc0 L_nomlpub")
    e("v_bfe_u32 v9, v0, 2, 2")
    e("v_lshlrev_b32 v9, 5, v9")
    e(f"s_lshl_b32 s{sT1}, s{sCL}, 4")
    e(f"s_add_u32 s{sT1}, s{sT1}, s6")
    e(f"s_lshl_b32 s{sT1}, s{sT1}, 6")
    e(f"s_add_u32 s{sT1}, s{sT1}, {WS_ML}")
    addr64(sA, sWS, sT1)
    lds_wait(4, 4)
    e(f"ds_read_b128 v[80:83], v9 offset:{L_ML}")
    e(f"ds_read_b128 v[84:87], v9 offset:{L_ML+16}")
    e("v_lshlrev_b32 v11, 2, v0")
    e("s_waitcnt lgkmcnt(0)")
    e("v_max3_f32 v12, v80, v82, v84")
    e("v_max_f32 v12, v12, v86")
    for r in (80, 82, 84, 86): e(f"v_sub_f32 v{r}, v{r}, v12")
    for r in (80, 82, 84, 86): e(f"v_exp_f32 v{r}, v{r}")
    e(f"v_mov_b32 v13, s{sTAG}")
    e("v_mul_f32 v14, v80, v81")
    e("v_fmac_f32 v14, v82, v83")
    e("v_fmac_f32 v14, v84, v85")
    e("v_fmac_f32 v14, v86, v87")
    e(f"v_mov_b32 v15, s{sTAG}")
    e("s_mov_b64 exec, 0x1111")
    e(f"global_store_dwordx4 v11, v[12:15], s[{sA}:{sA+1}] sc1")
    e("s_mov_b64 exec, -1")
    lab("L_nomlpub")
    cm("publish o: wave=grp; p'=l&3, i''=(l>>2)&3, h=l>>4")
    e("v_lshrrev_b32 v10, 4, v0")
    e("v_lshlrev_b32 v10, 7, v10")
    e("v_and_b32 v11, 3, v0")
    e("v_lshl_add_u32 v10, v11, 5, v10")
    e("v_bfe_u32 v11, v0, 2, 2")
    e("v_lshl_add_u32 v10, v11, 3, v10")
    e(f"s_lshl_b32 s{sT1}, s3, 9")
    e(f"v_add_u32 v10, s{sT1}, v10")
    e(f"s_lshl_b32 s{sT1}, s{sCL}, 4")
    e(f"s_add_u32 s{sT1}, s{sT1}, s6")
    e(f"s_lshl_b32 s{sT1}, s{sT1}, 12")
    e(f"s_lshl_b32 s{sT2}, s3, 8")
    e(f"s_add_u32 s{sT1}, s{sT1}, s{sT2}")
    e(f"s_add_u32 s{sT1}, s{sT1}, {WS_O}")
    addr64(sA, sWS, sT1)
    e("v_lshrrev_b32 v11, 4, v0")
    e("v_lshlrev_b32 v11, 10, v11")
    e("v_and_b32 v12, 15, v0")
    e("v_lshl_add_u32 v11, v12, 4, v11")
    lds_wait(5, 4)
    stamp(5)
    for vw in range(4):
        e(f"ds_read_b64 v[{vP0+2*vw}:{vP0+2*vw+1}], v10 offset:{L_OP+vw*2048}")
    e(f"v_mov_b32 v13, s{sTAG}")
    e(f"v_mov_b32 v15, s{sTAG}")
    e("s_waitcnt lgkmcnt(0)")
    e(f"v_add_f32 v12, v{vP0}, v{vP0+2}")
    e(f"v_add_f32 v14, v{vP0+1}, v{vP0+3}")
    e(f"v_add_f32 v{vP0+4}, v{vP0+4}, v{vP0+6}")
    e(f"v_add_f32 v{vP0+5}, v{vP0+5}, v{vP0+7}")
    e(f"v_add_f32 v12, v12, v{vP0+4}")
    e(f"v_add_f32 v14, v14, v{vP0+5}")
    e(f"global_store_dwordx4 v11, v[12:15], s[{sA}:{sA+1}] sc1")
    if o.prof:
        e("s_waitcnt vmcnt(1)")
        stamp(14)
        e("s_waitcnt vmcnt(0)")
        stamp(15)
    cm("hop 2 poll: lane (s=l&7, b=(l>>3)&1, c=l>>4); wave k covers r8 = rb*8 + 2k + {0,1}")
    e(f"s_lshl_b32 s{sT1}, s{sCL}, 16")
    e(f"s_lshl_b32 s{sT2}, s{sHI}, 9")
    e(f"s_add_u32 s{sT1}, s{sT1}, s{sT2}")
    e(f"s_lshl_b32 s{sT2}, s3, 7")
    e(f"s_add_u32 s{sT1}, s{sT1}, s{sT2}")
    e(f"s_add_u32 s{sT1}, s{sT1}, {WS_O}")
    addr64(sA, sWS, sT1)
    e("v_and_b32 v10, 15, v0")
    e("v_lshlrev_b32 v11, 12, v10")
    e("v_lshrrev_b32 v12, 4, v0")
    e("v_lshl_add_u32 v11, v12, 4, v11")
    e(f"s_lshl_b32 s{sT1}, s{sCL}, 10")
    e(f"s_lshr_b32 s{sT2}, s{sHI}, 1")
    e(f"s_lshl_b32 s{sT2}, s{sT2}, 4")
    e(f"s_add_u32 s{sT1}, s{sT1}, s{sT2}")
    e(f"s_add_u32 s{sT1}, s{sT1}, {WS_ML}")
    addr64(sA2, sWS, sT1)
    e("v_lshlrev_b32 v10, 6, v10")
    e(f"s_mov_b32 s{sCNT}, {o.spin}")
    vP = 80
    lab("L_pollo")
    e(f"global_load_dwordx4 v[{vP}:{vP+3}], v11, s[{sA}:{sA+1}] sc1")
    e(f"global_load_dwordx4 v[{vP+4}:{vP+7}], v11, s[{sA}:{sA+1}] offset:64 sc1")
    e(f"global_load_dwordx4 v[{vP+8}:{vP+11}], v10, s[{sA2}:{sA2+1}] sc1")
    e("s_waitcnt vmcnt(0)")
    tagcheck([vP+1, vP+3, vP+5, vP+7, vP+9, vP+11])
    e("s_cbranch_scc1 L_goto")
    e(f"s_sub_u32 s{sCNT}, s{sCNT}, 1")
    e(f"s_cmp_lg_u32 s{sCNT}, 0")
    e("s_cbranch_scc1 L_pollo")
    lab("L_goto")
    stamp(6)
    stampcnt(12)
    os_ = [vP, vP+2, vP+4, vP+6]; vMm, vLl = vP+8, vP+10
    e(f"v_mov_b32 v12, v{vMm}")
    e("s_nop 1")
    for pat in ["quad_perm:[1,0,3,2]", "quad_perm:[2,3,0,1]", "row_half_mirror"]:
        e(f"v_max_f32_dpp v12, v12, v12 {pat} row_mask:0xf bank_mask:0xf")
        e("s_nop 1")
    e(f"v_sub_f32 v12, v{vMm}, v12")
    e("v_exp_f32 v12, v12")
    e("s_nop 0")
    e(f"v_mul_f32 v{vLl}, v{vLl}, v12")
    for r in os_: e(f"v_mul_f32 v{r}, v{r}, v12")
    for pat in ["quad_perm:[1,0,3,2]", "quad_perm:[2,3,0,1]", "row_half_mirror"]:
        for r in [vLl] + os_:
            e(f"v_add_f32_dpp v{r}, v{r}, v{r} {pat} row_mask:0xf bank_mask:0xf")
    e(f"v_rcp_f32 v{vLl}, v{vLl}")
    e("s_nop 0")
    for r in os_: e(f"v_mul_f32 v{r}, v{r}, v{vLl}")
    for r in os_: e(f"v_cvt_pk_bf16_f32 v{r}, v{r}, v{r}")
    vBq = 96
    for q in range(4):
        for r in range(4):
            e(f"v_and_b32 v{vBq+4*q+r}, v{os_[q]}, v{vM+r}")
    vD0 = 112
    e("s_nop 1")
    for rg in range(4):
        for hf in range(2):
            i = rg*2+hf
            c = "0" if rg == 0 else f"v[{vD0+4*hf}:{vD0+4*hf+3}]"
            e(f"v_mfma_f32_16x16x32_bf16 v[{vD0+4*hf}:{vD0+4*hf+3}], v[{vWO+4*i}:{vWO+4*i+3}], v[{vBq+4*rg}:{vBq+4*rg+3}], {c}")
    e(f"s_lshl_b32 s{sT1}, s3, 11")
    e("v_lshlrev_b32 v10, 2, v0")
    e(f"v_add_u32 v10, s{sT1}, v10")
    e("s_nop 6")
    for hf in range(2):
        e(f"ds_write2st64_b32 v10, v{vD0+4*hf}, v{vD0+4*hf+1} offset0:{L_FP//256+4*hf} offset1:{L_FP//256+4*hf+1}")
        e(f"ds_write2st64_b32 v10, v{vD0+4*hf+2}, v{vD0+4*hf+3} offset0:{L_FP//256+4*hf+2} offset1:{L_FP//256+4*hf+3}")
    lds_signal(6)
    e(f"s_lshl_b32 s{sT1}, s3, 9")
    e("v_lshlrev_b32 v10, 3, v0")
    e(f"v_add_u32 v10, s{sT1}, v10")
    e(f"s_lshl_b32 s{sT1}, s4, 19")
    e(f"s_lshl_b32 s{sT2}, s{sLO}, 18")
    e(f"s_add_u32 s{sT1}, s{sT1}, s{sT2}")
    e(f"s_lshl_b32 s{sT2}, s3, 16")
    e(f"s_add_u32 s{sT1}, s{sT1}, s{sT2}")
    e(f"s_lshl_b32 s{sT2}, s5, 9")
    e(f"s_add_u32 s{sT1}, s{sT1}, s{sT2}")
    e(f"s_lshl_b32 s{sT2}, s{sHI}, 6")
    e(f"s_add_u32 s{sT1}, s{sT1}, s{sT2}")
    e(f"s_add_u32 s{sT1}, s{sT1}, {WS_F}")
    addr64(sA, sWS, sT1)
    e("v_lshrrev_b32 v11, 2, v0")
    e("v_lshlrev_b32 v11, 12, v11")
    e("v_and_b32 v12, 3, v0")
    e("v_lshl_add_u32 v11, v12, 4, v11")
    lds_wait(6, 4)
    stamp(7)
    for wv in range(4):
        e(f"ds_read_b64 v[{16+2*wv}:{16+2*wv+1}], v10 offset:{L_FP+wv*2048}")
    e(f"v_mov_b32 v13, s{sTAG}")
    e(f"v_mov_b32 v15, s{sTAG}")
    e("s_waitcnt lgkmcnt(0)")
    e("v_add_f32 v16, v16, v18")
    e("v_add_f32 v17, v17, v19")
    e("v_add_f32 v20, v20, v22")
    e("v_add_f32 v21, v21, v23")
    e("v_add_f32 v12, v16, v20")
    e("v_add_f32 v14, v17, v21")
    e(f"global_store_dwordx4 v11, v[12:15], s[{sA}:{sA+1}] sc1")
    e("s_cmp_eq_u32 s3, 0")
    e("s_cbranch_scc0 L_fin")
    cm("hop 3 poll (wave 0)")
    e(f"s_lshl_b32 s{sT1}, s2, 12")
    e(f"s_add_u32 s{sT1}, s{sT1}, {WS_F}")
    addr64(sA, sWS, sT1)
    e("v_lshlrev_b32 v11, 4, v0")
    e(f"s_mov_b32 s{sCNT}, {o.spin}")
    stamp(8)
    lab("L_pollf")
    for q in range(4):
        e(f"global_load_dwordx4 v[{16+4*q}:{16+4*q+3}], v11, s[{sA}:{sA+1}] offset:{q*1024} sc1")
    e("s_waitcnt vmcnt(0)")
    tagcheck([17, 19, 21, 23, 25, 27, 29, 31])
    e("s_cbranch_scc1 L_gotf")
    e(f"s_sub_u32 s{sCNT}, s{sCNT}, 1")
    e(f"s_cmp_lg_u32 s{sCNT}, 0")
    e("s_cbranch_scc1 L_pollf")
    lab("L_gotf")
    stamp(9)
    stampcnt(13)
    e("v_add_f32 v16, v16, v20")
    e("v_add_f32 v18, v18, v22")
    e("v_add_f32 v24, v24, v28")
    e("v_add_f32 v26, v26, v30")
    e("v_add_f32 v16, v16, v24")
    e("v_add_f32 v18, v18, v26")
    e("s_nop 1")
    for pat in ["row_ror:4", "row_ror:8"]:
        e(f"v_add_f32_dpp v16, v16, v16 {pat} row_mask:0xf bank_mask:0xf")
        e(f"v_add_f32_dpp v18, v18, v18 {pat} row_mask:0xf bank_mask:0xf")
        e("s_nop 1")
    for sw in ["v_permlane16_swap_b32", "v_permlane32_swap_b32"]:
        e("v_mov_b32 v20, v16")
        e("v_mov_b32 v22, v18")
        e("s_nop 1")
        e(f"{sw} v16, v20")
        e(f"{sw} v18, v22")
        e("s_nop 1")
        e("v_add_f32 v16, v16, v20")
        e("v_add_f32 v18, v18, v22")
    e("v_cvt_pk_bf16_f32 v16, v16, v18")
    e(f"s_and_b32 s{sT1}, s2, 1")
    e(f"s_lshl_b32 s{sT1}, s{sT1}, 11")
    e(f"s_lshl_b32 s{sT2}, s4, 10")
    e(f"s_add_u32 s{sT1}, s{sT1}, s{sT2}")
    e(f"s_bfe_u32 s{sT2}, s2, 0x20005")
    e(f"s_lshl_b32 s{sT2}, s{sT2}, 8")
    e(f"s_add_u32 s{sT1}, s{sT1}, s{sT2}")
    e(f"s_bfe_u32 s{sT2}, s2, 0x20001")
    e(f"s_lshl_b32 s{sT2}, s{sT2}, 6")
    e(f"s_add_u32 s{sT1}, s{sT1}, s{sT2}")
    e(f"s_bfe_u32 s{sT2}, s2, 0x20003")
    e(f"s_lshl_b32 s{sT2}, s{sT2}, 4")
    e(f"s_add_u32 s{sT1}, s{sT1}, s{sT2}")
    addr64(sA, sOUT, sT1)
    e("v_lshlrev_b32 v11, 2, v0")
    e("s_mov_b64 exec, 0xf")
    e(f"global_store_dword v11, v16, s[{sA}:{sA+1}]")
    e(f"s_and_b32 s{sT1}, s2, 127")
    e(f"s_cmp_eq_u32 s{sT1}, 0")
    e("s_cbranch_scc0 L_fin")
    e(f"s_lshl_b32 s{sT1}, s4, 8")
    e(f"v_mov_b32 v11, s{sT1}")
    e(f"v_mov_b32 v12, s{sTAG}")
    e("s_mov_b64 exec, 1")
    e(f"global_store_dword v11, v12, s[{sWS}:{sWS+1}]")
    lab("L_fin")
    if o.prof == 4:
        e("s_cmp_eq_u32 s2, 0")
        e("s_cbranch_scc0 L_end")
        e("s_cmp_eq_u32 s3, 0")
        e("s_cbranch_scc0 L_end")
        lab("L_pad")
        stamp(10)
        e("s_waitcnt lgkmcnt(0)")
        e(f"s_sub_u32 s{sT1}, s{sST+20}, s{sST}")
        e(f"s_cmp_lt_u32 s{sT1}, 6000")
        e("s_cbranch_scc1 L_pad")
    elif o.prof == 3:
        stamp(10)
        e("s_waitcnt lgkmcnt(0)")
        e("s_cmp_eq_u32 s2, 0")
        e("s_cbranch_scc0 L_end")
        e("s_mov_b64 exec, 1")
        e("v_mov_b32 v11, 0")
        def am(slot, st):
            e(f"v_mov_b32 v12, s{sST+2*st}")
            e(f"global_store_dword v11, v12, s[{sDBG}:{sDBG+1}] offset:{4*slot}")
            e("s_nop 1")
        e("s_cmp_eq_u32 s3, 4")
        e("s_cbranch_scc0 L_dk")
        am(1, 8); am(2, 2); am(3, 3); am(4, 5); am(5, 6)
        e("s_branch L_end")
        lab("L_dk")
        e("s_cmp_eq_u32 s3, 0")
        e("s_cbranch_scc0 L_end")
        am(0, 0); am(6, 1); am(7, 2); am(8, 4); am(9, 5); am(10, 14); am(11, 15); am(12, 6); am(13, 7); am(14, 9); am(15, 10)
    elif o.prof == 2:
        stamp(10)
        e("s_waitcnt lgkmcnt(0)")
        e("s_mov_b64 exec, 1")
        e("v_mov_b32 v11, 0")
        def am(slot, st, neg=False):
            if neg: e(f"s_not_b32 s{sT1}, s{sST+2*st}"); e(f"v_mov_b32 v12, s{sT1}")
            else: e(f"v_mov_b32 v12, s{sST+2*st}")
            e(f"global_atomic_umax v11, v12, s[{sDBG}:{sDBG+1}] offset:{4*slot}")
            e("s_nop 1")
        am(0, 0, True); am(1, 0); am(13, 10)
        e("s_cmp_lt_u32 s3, 4")
        e("s_cbranch_scc1 L_dk")
        am(2, 8); am(3, 2); am(4, 3); am(7, 6); am(14, 8, True); am(15, 2, True)
        e("s_branch L_end")
        lab("L_dk")
        am(5, 2); am(6, 4); am(8, 14); am(9, 15); am(10, 6); am(11, 7)
        e("s_cmp_eq_u32 s3, 0")
        e("s_cbranch_scc0 L_end")
        am(12, 9)
    elif o.prof:
        stamp(10)
        e("s_waitcnt lgkmcnt(0)")
        e("s_mov_b64 exec, 1")
        e(f"s_lshl_b32 s{sT1}, s2, 3")
        e(f"s_add_u32 s{sT1}, s{sT1}, s3")
        e(f"s_lshl_b32 s{sT1}, s{sT1}, 7")
        e(f"s_add_u32 s{sT1}, s{sT1}, {WS_PROF}")
        e(f"v_mov_b32 v11, s{sT1}")
        for i in range(NST):
            e(f"v_mov_b32 v12, s{sST+2*i}")
            e(f"global_store_dword v11, v12, s[{sWS}:{sWS+1}] offset:{4*i}")
            e("s_nop 1")
    lab("L_end")
    e("s_endpgm")
    L.append('.section .rodata,"a"')
    L.append(".p2align 6")
    L.append(f".amdhsa_kernel {NAME}_kernel")
    L.append(f"  .amdhsa_next_free_vgpr {NV}")
    L.append("  .amdhsa_next_free_sgpr 100")
    L.append(f"  .amdhsa_accum_offset {NV}")
    L.append("  .amdhsa_group_segment_fixed_size 0")
    L.append("  .amdhsa_kernarg_size 104")
    L.append("  .amdhsa_user_sgpr_count 2")
    L.append("  .amdhsa_user_sgpr_kernarg_segment_ptr 1")
    L.append("  .amdhsa_system_sgpr_workgroup_id_x 1")
    L.append(".end_amdhsa_kernel")
    return "\n".join(L) + "\n"

if __name__ == "__main__":
    o = Opt()
    out = sys.argv[1]
    for a in sys.argv[2:]:
        k, v = a.split("=")
        assert hasattr(o, k), k
        setattr(o, k, int(v))
    open(out, "w").write(gen(o))
```

```python
import sys
NAME = "concat_heads__sliding_block_cached__sliding_block_cached__decode"

class Opt:
    prof = 0
    nt = 1
    spin = 200000
    wk = 16
    wv = 16
    kdelay = 1
    touch = 1
    warm = 0
    wb = 0

def gen(o):
    L = []
    def e(s): L.append("    " + s)
    def lab(s): L.append(s + ":")
    def cm(s): L.append("    ; " + s)
    NT = " nt" if o.nt else ""
    WS_EP = 0; WS_Q = 0x1000; WS_ML = WS_Q + 0x40000; WS_O = 0x80000; WS_F = 0x180000; WS_PROF = 0x800000
    L_QP = 0; L_OP = 0; L_QL = 8192; L_PL = 9216; L_ML = 14336; L_CT = 14592; L_FP = 16384; LDS = 32768
    sX, sK, sV, sWQ, sWO = 8, 10, 12, 14, 16
    sOUT, sDBG, sWS = 28, 30, 32
    sEP = 34; sTAG = 35; sB, sS = 36, 37; sHI, sLO = 38, 39
    sT0, sT1, sT2, sT3 = 40, 41, 42, 43
    sA = 44; sA2 = 46; sM1, sM2, sM3 = 48, 50, 52; sC = 54; sCNT = 56
    sSEL_LO, sSEL_HI = 57, 58; sC1 = 59; sCL = 60; sKW = 61; sPC = 62
    sST = 64
    NST = 16
    def stamp(i):
        if o.prof: e(f"s_memrealtime s[{sST+2*i}:{sST+2*i+1}]")
    def stampcnt(i):
        if o.prof: e(f"s_sub_u32 s{sST+2*i}, {o.spin}, s{sCNT}")
    vM = 1
    vKK = 16; vD = 80; vS = 112; vQ = 128; vR = 132; vP0 = 136; vWO = 144
    vWQ = 16; vVV = 16; vX = 80; vPV = 112; vACC = 128; vXX = 136; vBB = 144; vQA = 152
    NV = 184

    def lds_signal(idx):
        e("s_waitcnt lgkmcnt(0)")
        e(f"v_mov_b32 v14, {L_CT + 4*idx}")
        e("v_mov_b32 v15, 1")
        e("s_mov_b64 exec, 1")
        e("ds_add_u32 v14, v15")
        e("s_mov_b64 exec, -1")
    nw = [0]
    def lds_wait(idx, target):
        n = nw[0]; nw[0] += 1
        e(f"v_mov_b32 v14, {L_CT + 4*idx}")
        lab(f"L_lw{n}")
        e("ds_read_b32 v15, v14")
        e("s_waitcnt lgkmcnt(0)")
        e("v_readfirstlane_b32 s63, v15")
        e(f"s_cmp_lt_u32 s63, {target}")
        e(f"s_cbranch_scc1 L_lw{n}")
    def tagcheck(regs):
        e(f"v_cmp_eq_u32 vcc, s{sTAG}, v{regs[0]}")
        for r in regs[1:]:
            e(f"v_cmp_eq_u32 s[{sC}:{sC+1}], s{sTAG}, v{r}")
            e(f"s_and_b64 vcc, vcc, s[{sC}:{sC+1}]")
        e("s_cmp_eq_u64 vcc, exec")
    def masks():
        e("v_and_b32 v10, 1, v0")
        e("v_lshlrev_b32 v10, 4, v10")
        e("v_mov_b32 v11, 0xffff")
        e("v_lshlrev_b32 v11, v10, v11")
        e("v_bfe_u32 v10, v0, 1, 2")
        for r in range(4):
            e(f"v_cmp_eq_u32 vcc, {r}, v10")
            e("s_nop 1")
            e(f"v_cndmask_b32 v{vM+r}, 0, v11, vcc")
    def addr64(dst, base, off):
        e(f"s_add_u32 s{dst}, s{base}, s{off}")
        e(f"s_addc_u32 s{dst+1}, s{base+1}, 0")

    L.append(f"; @launch grid=(256,1,1) block=(512,1,1) lds={LDS}")
    L.append('.amdgcn_target "amdgcn-amd-amdhsa--gfx950"')
    L.append(".text")
    L.append(f".globl {NAME}_kernel")
    L.append(".p2align 8")
    L.append(f".type {NAME}_kernel,@function")
    lab(f"{NAME}_kernel")
    e("s_cmp_ge_u32 s2, 0x100")
    e("s_cbranch_scc1 L_end")
    e("s_load_dwordx16 s[8:23], s[0:1], 0")
    e("s_load_dwordx8 s[24:31], s[0:1], 64")
    e("s_load_dwordx2 s[32:33], s[0:1], 96")
    stamp(0)
    e("v_lshrrev_b32 v5, 6, v0")
    e("v_and_b32 v0, 63, v0")
    e("s_lshr_b32 s4, s2, 7")
    e("v_readfirstlane_b32 s3, v5")
    e("s_and_b32 s5, s2, 7")
    e("s_bfe_u32 s6, s2, 0x40003")
    e(f"s_lshr_b32 s{sB}, s6, 3")
    e(f"s_and_b32 s{sS}, s6, 7")
    e(f"s_lshr_b32 s{sHI}, s6, 1")
    e(f"s_and_b32 s{sLO}, s6, 1")
    e(f"s_lshl_b32 s{sCL}, s4, 3")
    e(f"s_add_u32 s{sCL}, s{sCL}, s5")
    e(f"s_and_b32 s{sKW}, s3, 3")
    e(f"s_lshl_b32 s{sT0}, s{sB}, 3")
    e(f"s_add_u32 s{sT0}, s{sT0}, s5")
    e(f"s_lshl_b32 s{sT0}, s{sT0}, 21")
    e(f"s_lshl_b32 s{sT1}, s{sS}, 16")
    e(f"s_add_u32 s{sT0}, s{sT0}, s{sT1}")
    e(f"s_lshl_b32 s{sT1}, s{sKW}, 14")
    e(f"s_add_u32 s{sT0}, s{sT0}, s{sT1}")
    e(f"s_add_u32 s{sT0}, s{sT0}, {6144*256 + 4096}")
    e("s_cmp_lt_u32 s3, 4")
    e("s_cbranch_scc1 L_kpath")

    e("v_lshrrev_b32 v6, 3, v0")
    e("v_and_b32 v7, 7, v0")
    e("v_lshlrev_b32 v5, 16, v6")
    e("v_lshl_add_u32 v5, v7, 4, v5")
    e("v_lshlrev_b32 v6, 4, v6")
    e(f"s_lshl_b32 s{sT1}, s{sLO}, 8")
    e(f"s_lshl_b32 s{sT2}, s{sKW}, 6")
    e(f"s_add_u32 s{sT1}, s{sT1}, s{sT2}")
    e(f"s_lshl_b32 s{sT2}, s{sT1}, 13")
    e(f"s_lshl_b32 s{sT3}, s5, 10")
    e(f"s_add_u32 s{sT2}, s{sT2}, s{sT3}")
    e(f"s_lshl_b32 s{sT3}, s{sHI}, 7")
    e(f"s_add_u32 s{sT2}, s{sT2}, s{sT3}")
    e(f"s_lshl_b32 s{sT1}, s{sT1}, 1")
    e("s_waitcnt lgkmcnt(0)")
    stamp(8)
    e("s_cmp_eq_u32 s4, 0")
    e(f"s_cselect_b64 s[{sWQ}:{sWQ+1}], s[14:15], s[24:25]")
    e(f"s_cselect_b64 s[{sX}:{sX+1}], s[8:9], s[18:19]")
    e(f"s_cselect_b64 s[{sV}:{sV+1}], s[12:13], s[22:23]")
    addr64(sA, sWQ, sT2)
    for t in range(8):
        e(f"global_load_dwordx4 v[{vWQ+4*t}:{vWQ+4*t+3}], v5, s[{sA}:{sA+1}]{NT}")
        if t < 7:
            e(f"s_add_u32 s{sA}, s{sA}, 8192")
            e(f"s_addc_u32 s{sA+1}, s{sA+1}, 0")
    stamp(9)
    addr64(sX, sX, sT1)
    e(f"global_load_dwordx4 v[{vXX}:{vXX+3}], v6, s[{sX}:{sX+1}]")
    e(f"global_load_dwordx4 v[{vXX+4}:{vXX+7}], v6, s[{sX}:{sX+1}] offset:1024")
    if o.kdelay: e("s_barrier")
    else: e("s_barrier")
    stamp(1)
    e(f"s_lshl_b32 s{sT3}, s4, 8")
    e(f"s_load_dword s{sEP}, s[{sWS}:{sWS+1}], s{sT3}")
    addr64(sV, sV, sT0)
    masks()
    e(f"s_mov_b32 s{sSEL_LO}, 0x01000100")
    e(f"s_mov_b32 s{sSEL_HI}, 0x03020302")
    for i in range(8):
        e(f"v_mov_b32 v{vQA+i}, 0")
    e("s_waitcnt vmcnt(0)")
    stamp(2)
    def bbuild(dst, src, sel, tmp):
        e(f"v_perm_b32 v{tmp}, v{src}, v{src}, s{sel}")
        for r in range(4):
            e(f"v_and_b32 v{dst+r}, v{tmp}, v{vM+r}")
    for t in range(8):
        sel = sSEL_HI if (t & 1) else sSEL_LO
        bbuild(vBB, vXX + (t >> 1), sel, 10)
        bbuild(vBB+4, vXX + 4 + (t >> 1), sel, 11)
        e(f"v_mfma_f32_16x16x32_bf16 v[{vQA}:{vQA+3}], v[{vWQ+4*t}:{vWQ+4*t+3}], v[{vBB}:{vBB+3}], v[{vQA}:{vQA+3}]")
        e("s_nop 0")
        e(f"v_mfma_f32_16x16x32_bf16 v[{vQA+4}:{vQA+7}], v[{vWQ+4*t}:{vWQ+4*t+3}], v[{vBB+4}:{vBB+7}], v[{vQA+4}:{vQA+7}]")
    e(f"s_lshl_b32 s{sT1}, s{sKW}, 11")
    e(f"v_lshlrev_b32 v10, 2, v0")
    e(f"v_add_u32 v10, s{sT1}, v10")
    e("s_nop 6")
    for b in range(2):
        e(f"ds_write2st64_b32 v10, v{vQA+4*b}, v{vQA+4*b+1} offset0:{4*b} offset1:{4*b+1}")
        e(f"ds_write2st64_b32 v10, v{vQA+4*b+2}, v{vQA+4*b+3} offset0:{4*b+2} offset1:{4*b+3}")
    lds_signal(1)
    e(f"s_add_u32 s{sTAG}, s{sEP}, 0x9e3779b9")
    cm("publish q (wave 4 only)")
    e("s_cmp_eq_u32 s3, 4")
    e("s_cbranch_scc0 L_noqpub")
    e("v_lshrrev_b32 v10, 5, v0")
    e("v_lshlrev_b32 v10, 10, v10")
    e("v_bfe_u32 v11, v0, 2, 2")
    e("v_lshl_add_u32 v10, v11, 8, v10")
    e("v_bfe_u32 v11, v0, 4, 1")
    e("v_lshl_add_u32 v10, v11, 6, v10")
    e("v_and_b32 v11, 3, v0")
    e("v_lshl_add_u32 v10, v11, 3, v10")
    e(f"s_lshl_b32 s{sT1}, s{sCL}, 14")
    e(f"s_lshl_b32 s{sT2}, s{sLO}, 12")
    e(f"s_add_u32 s{sT1}, s{sT1}, s{sT2}")
    e(f"s_lshl_b32 s{sT2}, s{sHI}, 9")
    e(f"s_add_u32 s{sT1}, s{sT1}, s{sT2}")
    e(f"s_add_u32 s{sT1}, s{sT1}, {WS_Q}")
    addr64(sA, sWS, sT1)
    e("v_lshrrev_b32 v11, 5, v0")
    e("v_lshlrev_b32 v11, 13, v11")
    e("v_and_b32 v12, 31, v0")
    e("v_lshl_add_u32 v11, v12, 4, v11")
    lds_wait(1, 4)
    base = 80
    for kw in range(4):
        e(f"ds_read_b64 v[{base+4*kw}:{base+4*kw+1}], v10 offset:{L_QP+kw*2048}")
        e(f"ds_read_b64 v[{base+4*kw+2}:{base+4*kw+3}], v10 offset:{L_QP+kw*2048+160}")
    e(f"v_mov_b32 v13, s{sTAG}")
    e(f"v_mov_b32 v15, s{sTAG}")
    e("s_waitcnt lgkmcnt(0)")
    for i in range(0, 16, 4):
        e(f"v_add_f32 v{base+i}, v{base+i}, v{base+i+2}")
        e(f"v_add_f32 v{base+i+1}, v{base+i+1}, v{base+i+3}")
    e(f"v_add_f32 v{base}, v{base}, v{base+4}")
    e(f"v_add_f32 v{base+1}, v{base+1}, v{base+5}")
    e(f"v_add_f32 v{base+8}, v{base+8}, v{base+12}")
    e(f"v_add_f32 v{base+9}, v{base+9}, v{base+13}")
    e(f"v_add_f32 v12, v{base}, v{base+8}")
    e(f"v_add_f32 v14, v{base+1}, v{base+9}")
    e(f"global_store_dwordx4 v11, v[12:15], s[{sA}:{sA+1}] sc1")
    lab("L_noqpub")
    stamp(3)
    e("v_lshlrev_b32 v5, 4, v0")
    for t in range(16):
        if t == 8:
            e(f"s_add_u32 s{sV}, s{sV}, 8192")
            e(f"s_addc_u32 s{sV+1}, s{sV+1}, 0")
        if t >= o.wv: e(f"s_waitcnt vmcnt({o.wv-1})")
        e(f"global_load_dwordx4 v[{vVV+4*t}:{vVV+4*t+3}], v5, s[{sV}:{sV+1}] offset:{(t%8)*1024-4096}{NT}")
    stamp(4)
    e("v_and_b32 v10, 1, v0")
    e("v_lshlrev_b32 v10, 4, v10")
    e("v_mov_b32 v11, 0xffff")
    e("v_lshlrev_b32 v11, v10, v11")
    e("v_and_b32 v10, 2, v0")
    e("v_cmp_eq_u32 vcc, 0, v10")
    e("v_lshrrev_b32 v8, 2, v0")
    e("v_mul_u32_u24 v8, 80, v8")
    e("v_cndmask_b32 v6, 0, v11, vcc")
    e("v_xor_b32 v7, v6, v11")
    e(f"s_mul_i32 s{sT2}, s{sKW}, 1280")
    e(f"v_add_u32 v8, s{sT2}, v8")
    e("v_bfe_u32 v9, v0, 2, 2")
    e("v_lshlrev_b32 v9, 5, v9")
    for i in range(8):
        e(f"v_mov_b32 v{vACC+i}, 0")
    lds_wait(4, 4)
    stamp(5)
    for G in range(4):
        e(f"ds_read_b128 v[{vPV+4*G}:{vPV+4*G+3}], v8 offset:{L_PL+16*G}")
    e(f"ds_read_b128 v[136:139], v9 offset:{L_ML}")
    e(f"ds_read_b128 v[140:143], v9 offset:{L_ML+16}")
    e(f"s_lshl_b32 s{sT1}, s{sKW}, 3")
    e(f"v_add_u32 v9, s{sT1}, v9")
    e(f"ds_read_b32 v144, v9 offset:{L_ML}")
    e("s_waitcnt lgkmcnt(3)")
    for t in range(16):
        e(f"v_and_b32 v{vX+2*t}, v{vPV+t}, v6")
        e(f"v_and_b32 v{vX+2*t+1}, v{vPV+t}, v7")
    e("s_waitcnt lgkmcnt(0)")
    e("v_max3_f32 v145, v136, v138, v140")
    e("v_max_f32 v145, v145, v142")
    e("v_sub_f32 v144, v144, v145")
    e("v_exp_f32 v144, v144")
    cm("PV")
    for t in range(16):
        e(f"s_waitcnt vmcnt({15-t})")
        for u in range(2):
            e(f"v_mfma_f32_16x16x16_bf16 v[{vACC+4*u}:{vACC+4*u+3}], v[{vVV+4*t+2*u}:{vVV+4*t+2*u+1}], v[{vX+2*t}:{vX+2*t+1}], v[{vACC+4*u}:{vACC+4*u+3}]")
    stamp(6)
    e("v_lshlrev_b32 v10, 5, v0")
    e(f"s_lshl_b32 s{sT1}, s{sKW}, 11")
    e(f"v_add_u32 v10, s{sT1}, v10")
    e("s_nop 5")
    for i in range(4):
        for u in range(2):
            e(f"v_mul_f32 v{136+2*i+u}, v{vACC+4*u+i}, v144")
    e(f"ds_write_b128 v10, v[136:139] offset:{L_OP}")
    e(f"ds_write_b128 v10, v[140:143] offset:{L_OP+16}")
    lds_signal(5)
    stamp(7)
    if o.wb == 1:
        e("s_cmp_lt_u32 s2, 8")
        e("s_cbranch_scc0 L_fin")
        e("s_cmp_eq_u32 s3, 4")
        e("s_cbranch_scc0 L_fin")
        e("buffer_wbl2 sc1")
        e("s_waitcnt vmcnt(0)")
    e("s_branch L_fin")

    lab("L_kpath")
    e("v_bfe_u32 v8, v0, 2, 2")
    e("v_lshlrev_b32 v8, 8, v8")
    e("v_lshrrev_b32 v9, 4, v0")
    e("v_lshl_add_u32 v8, v9, 6, v8")
    e("v_and_b32 v9, 3, v0")
    e("v_lshl_add_u32 v8, v9, 4, v8")
    cm("zero LDS counters (wave 0)")
    e("v_lshlrev_b32 v10, 2, v0")
    e("v_mov_b32 v11, 0")
    e(f"ds_write_b32 v10, v11 offset:{L_CT}")
    e("s_waitcnt lgkmcnt(0)")
    e("s_cmp_eq_u32 s4, 0")
    e(f"s_cselect_b64 s[{sK}:{sK+1}], s[10:11], s[20:21]")
    e(f"s_cselect_b64 s[{sWO}:{sWO+1}], s[16:17], s[26:27]")
    addr64(sK, sK, sT0)
    e("s_barrier")
    if o.touch:
        e("v_mov_b32 v10, 0")
        e(f"v_mov_b32 v11, {WS_F + 0x80000}")
        e(f"global_load_dword v180, v10, s[{sOUT}:{sOUT+1}]")
        e(f"global_load_dword v181, v11, s[{sWS}:{sWS+1}]")
    for t in range(16):
        if t == 8:
            e(f"s_add_u32 s{sK}, s{sK}, 8192")
            e(f"s_addc_u32 s{sK+1}, s{sK+1}, 0")
        if t >= o.wk: e(f"s_waitcnt vmcnt({o.wk-1})")
        e(f"global_load_dwordx4 v[{vKK+4*t}:{vKK+4*t+3}], v8, s[{sK}:{sK+1}] offset:{(t%8)*1024-4096}{NT}")
    stamp(1)
    e(f"s_lshl_b32 s{sT3}, s4, 8")
    e(f"s_load_dword s{sEP}, s[{sWS}:{sWS+1}], s{sT3}")
    masks()
    e("v_and_b32 v10, 3, v0")
    e(f"v_cmp_eq_u32 s[{sM1}:{sM1+1}], 1, v10")
    e(f"v_cmp_eq_u32 s[{sM2}:{sM2+1}], 2, v10")
    e(f"v_cmp_eq_u32 s[{sM3}:{sM3+1}], 3, v10")
    e(f"s_lshl_b32 s{sT1}, s{sCL}, 1")
    e(f"s_add_u32 s{sT1}, s{sT1}, s{sB}")
    e(f"s_lshl_b32 s{sT1}, s{sT1}, 13")
    e(f"s_lshl_b32 s{sT2}, s3, 10")
    e(f"s_add_u32 s{sT1}, s{sT1}, s{sT2}")
    e(f"s_add_u32 s{sT1}, s{sT1}, {WS_Q+4096}")
    addr64(sA, sWS, sT1)
    e("v_lshlrev_b32 v12, 4, v0")
    e(f"s_mov_b32 s{sCNT}, {o.spin}")
    e("s_waitcnt lgkmcnt(0)")
    e(f"s_add_u32 s{sTAG}, s{sEP}, 0x9e3779b9")
    lab("L_pollq")
    e(f"global_load_dwordx4 v[{vP0}:{vP0+3}], v12, s[{sA}:{sA+1}] offset:-4096 sc1")
    e(f"global_load_dwordx4 v[{vP0+4}:{vP0+7}], v12, s[{sA}:{sA+1}] sc1")
    e("s_waitcnt vmcnt(0)")
    tagcheck([vP0+1, vP0+3, vP0+5, vP0+7])
    e("s_cbranch_scc1 L_gotq")
    e(f"s_sub_u32 s{sCNT}, s{sCNT}, 1")
    e(f"s_cmp_lg_u32 s{sCNT}, 0")
    e("s_cbranch_scc1 L_pollq")
    lab("L_gotq")
    stamp(2)
    stampcnt(11)
    e(f"v_add_f32 v{vP0}, v{vP0}, v{vP0+4}")
    e(f"v_add_f32 v{vP0+2}, v{vP0+2}, v{vP0+6}")
    e(f"s_lshl_b32 s{sT1}, s3, 8")
    e(f"v_lshlrev_b32 v10, 2, v0")
    e(f"v_cvt_pk_bf16_f32 v11, v{vP0}, v{vP0+2}")
    e(f"v_add_u32 v10, s{sT1}, v10")
    e(f"ds_write_b32 v10, v11 offset:{L_QL}")
    lds_signal(2)
    e(f"v_add_u32 v10, {L_QL}, v8")
    lds_wait(2, 4)
    e(f"ds_read_b128 v[{vQ}:{vQ+3}], v10")
    e("s_waitcnt lgkmcnt(0)")
    stamp(3)
    def dreg(G, a): return vD + (G & 1)*16 + a*4
    def mf(G, a):
        t = 4*G + a; d = dreg(G, a)
        e(f"v_mfma_f32_16x16x32_bf16 v[{d}:{d+3}], v[{vKK+4*t}:{vKK+4*t+3}], v[{vQ}:{vQ+3}], 0")
    def dpp(G, step):
        for a in range(4):
            d = dreg(G, a) + step; sdst = vS + 4*G + a
            qp = f"quad_perm:[{step},{step},{step},{step}] row_mask:0xf bank_mask:0xf"
            if step == 0: e(f"v_mov_b32_dpp v{sdst}, v{d} {qp}")
            else: e(f"v_add_f32_dpp v{sdst}, v{d}, v{sdst} {qp}")
    for a in range(4): mf(0, a)
    for G in range(1, 4):
        for a in range(4):
            mf(G, a)
            if a == 0: e("s_nop 4")
            dpp(G-1, a)
    e("s_nop 4")
    for st in range(4): dpp(3, st)
    for G in range(4):
        e(f"v_cndmask_b32 v{vR+G}, v{vS+4*G}, v{vS+4*G+1}, s[{sM1}:{sM1+1}]")
    for G in range(4):
        e(f"v_cndmask_b32 v{vR+G}, v{vR+G}, v{vS+4*G+2}, s[{sM2}:{sM2+1}]")
    for G in range(4):
        e(f"v_cndmask_b32 v{vR+G}, v{vR+G}, v{vS+4*G+3}, s[{sM3}:{sM3+1}]")
    def quadrow_reduce(v, op, t1):
        e("s_nop 1")
        e(f"{op}_dpp v{v}, v{v}, v{v} quad_perm:[1,0,3,2] row_mask:0xf bank_mask:0xf")
        e("s_nop 1")
        e(f"{op}_dpp v{v}, v{v}, v{v} quad_perm:[2,3,0,1] row_mask:0xf bank_mask:0xf")
        e("s_nop 0")
        e(f"v_mov_b32 v{t1}, v{v}")
        e("s_nop 1")
        e(f"v_permlane16_swap_b32 v{v}, v{t1}")
        e("s_nop 1")
        e(f"{op} v{v}, v{v}, v{t1}")
        e(f"v_mov_b32 v{t1}, v{v}")
        e("s_nop 1")
        e(f"v_permlane32_swap_b32 v{v}, v{t1}")
        e("s_nop 1")
        e(f"{op} v{v}, v{v}, v{t1}")
    e(f"v_max3_f32 v10, v{vR}, v{vR+1}, v{vR+2}")
    e(f"v_max_f32 v10, v10, v{vR+3}")
    quadrow_reduce(10, "v_max_f32", 11)
    e(f"s_mov_b32 s{sC1}, 0x3e0293ee")
    e(f"v_mul_f32 v10, s{sC1}, v10")
    for G in range(4):
        e(f"v_fma_f32 v{vR+G}, v{vR+G}, s{sC1}, -v10")
    for G in range(4):
        e(f"v_exp_f32 v{vR+G}, v{vR+G}")
    e("v_lshrrev_b32 v14, 2, v0")
    e("v_mul_u32_u24 v14, 80, v14")
    e(f"v_add_f32 v12, v{vR}, v{vR+1}")
    e(f"v_add_f32 v13, v{vR+2}, v{vR+3}")
    for G in range(4):
        e(f"v_cvt_pk_bf16_f32 v{vR+G}, v{vR+G}, v{vR+G}")
    e(f"v_add_f32 v12, v12, v13")
    e("v_and_b32 v15, 3, v0")
    e("v_lshl_add_u32 v14, v15, 2, v14")
    e(f"s_mul_i32 s{sT1}, s3, 1280")
    e(f"v_add_u32 v14, s{sT1}, v14")
    for G in range(4):
        e(f"ds_write_b32 v14, v{vR+G} offset:{L_PL+16*G}")
    quadrow_reduce(12, "v_add_f32", 13)
    e("v_mov_b32 v11, v12")
    e("v_lshlrev_b32 v14, 3, v0")
    e(f"s_lshl_b32 s{sT1}, s3, 3")
    e(f"v_add_u32 v14, s{sT1}, v14")
    e("s_mov_b64 exec, 0x1111")
    e(f"ds_write_b64 v14, v[10:11] offset:{L_ML}")
    e("s_mov_b64 exec, -1")
    lds_signal(4)
    stamp(4)
    cm("wo loads: wave k rows 64rb + 16k + 4rg + c (rg 0..3), 2 col halves")
    e(f"s_lshl_b32 s{sT1}, s5, 19")
    e(f"s_lshl_b32 s{sT2}, s{sHI}, 16")
    e(f"s_add_u32 s{sT1}, s{sT1}, s{sT2}")
    e(f"s_lshl_b32 s{sT2}, s3, 14")
    e(f"s_add_u32 s{sT1}, s{sT1}, s{sT2}")
    e(f"s_lshl_b32 s{sT2}, s{sLO}, 9")
    e(f"s_add_u32 s{sT1}, s{sT1}, s{sT2}")
    e(f"s_add_u32 s{sT1}, s{sT1}, 4096")
    addr64(sA2, sWO, sT1)
    e("v_lshrrev_b32 v13, 4, v0")
    e("v_lshlrev_b32 v13, 10, v13")
    e("v_and_b32 v14, 15, v0")
    e("v_lshl_add_u32 v13, v14, 4, v13")
    for rg in range(4):
        if rg == 2:
            e(f"s_add_u32 s{sA2}, s{sA2}, 8192")
            e(f"s_addc_u32 s{sA2+1}, s{sA2+1}, 0")
        for hf in range(2):
            i = rg*2+hf
            e(f"global_load_dwordx4 v[{vWO+4*i}:{vWO+4*i+3}], v13, s[{sA2}:{sA2+1}] offset:{(rg&1)*4096-4096+hf*256}{NT}")
    cm("publish (M,L) from wave 0 after all P ready")
    e("s_cmp_eq_u32 s3, 0")
    e("s_cbranch_scc0 L_nomlpub")
    e("v_bfe_u32 v9, v0, 2, 2")
    e("v_lshlrev_b32 v9, 5, v9")
    e(f"s_lshl_b32 s{sT1}, s{sCL}, 4")
    e(f"s_add_u32 s{sT1}, s{sT1}, s6")
    e(f"s_lshl_b32 s{sT1}, s{sT1}, 6")
    e(f"s_add_u32 s{sT1}, s{sT1}, {WS_ML}")
    addr64(sA, sWS, sT1)
    lds_wait(4, 4)
    e(f"ds_read_b128 v[80:83], v9 offset:{L_ML}")
    e(f"ds_read_b128 v[84:87], v9 offset:{L_ML+16}")
    e("v_lshlrev_b32 v11, 2, v0")
    e("s_waitcnt lgkmcnt(0)")
    e("v_max3_f32 v12, v80, v82, v84")
    e("v_max_f32 v12, v12, v86")
    for r in (80, 82, 84, 86): e(f"v_sub_f32 v{r}, v{r}, v12")
    for r in (80, 82, 84, 86): e(f"v_exp_f32 v{r}, v{r}")
    e(f"v_mov_b32 v13, s{sTAG}")
    e("v_mul_f32 v14, v80, v81")
    e("v_fmac_f32 v14, v82, v83")
    e("v_fmac_f32 v14, v84, v85")
    e("v_fmac_f32 v14, v86, v87")
    e(f"v_mov_b32 v15, s{sTAG}")
    e("s_mov_b64 exec, 0x1111")
    e(f"global_store_dwordx4 v11, v[12:15], s[{sA}:{sA+1}] sc1")
    e("s_mov_b64 exec, -1")
    lab("L_nomlpub")
    cm("publish o: wave=grp; p'=l&3, i''=(l>>2)&3, h=l>>4")
    e("v_lshrrev_b32 v10, 4, v0")
    e("v_lshlrev_b32 v10, 7, v10")
    e("v_and_b32 v11, 3, v0")
    e("v_lshl_add_u32 v10, v11, 5, v10")
    e("v_bfe_u32 v11, v0, 2, 2")
    e("v_lshl_add_u32 v10, v11, 3, v10")
    e(f"s_lshl_b32 s{sT1}, s3, 9")
    e(f"v_add_u32 v10, s{sT1}, v10")
    e(f"s_lshl_b32 s{sT1}, s{sCL}, 4")
    e(f"s_add_u32 s{sT1}, s{sT1}, s6")
    e(f"s_lshl_b32 s{sT1}, s{sT1}, 12")
    e(f"s_lshl_b32 s{sT2}, s3, 8")
    e(f"s_add_u32 s{sT1}, s{sT1}, s{sT2}")
    e(f"s_add_u32 s{sT1}, s{sT1}, {WS_O}")
    addr64(sA, sWS, sT1)
    e("v_lshrrev_b32 v11, 4, v0")
    e("v_lshlrev_b32 v11, 10, v11")
    e("v_and_b32 v12, 15, v0")
    e("v_lshl_add_u32 v11, v12, 4, v11")
    lds_wait(5, 4)
    stamp(5)
    for vw in range(4):
        e(f"ds_read_b64 v[{vP0+2*vw}:{vP0+2*vw+1}], v10 offset:{L_OP+vw*2048}")
    e(f"v_mov_b32 v13, s{sTAG}")
    e(f"v_mov_b32 v15, s{sTAG}")
    e("s_waitcnt lgkmcnt(0)")
    e(f"v_add_f32 v12, v{vP0}, v{vP0+2}")
    e(f"v_add_f32 v14, v{vP0+1}, v{vP0+3}")
    e(f"v_add_f32 v{vP0+4}, v{vP0+4}, v{vP0+6}")
    e(f"v_add_f32 v{vP0+5}, v{vP0+5}, v{vP0+7}")
    e(f"v_add_f32 v12, v12, v{vP0+4}")
    e(f"v_add_f32 v14, v14, v{vP0+5}")
    e(f"global_store_dwordx4 v11, v[12:15], s[{sA}:{sA+1}] sc1")
    if o.prof:
        e("s_waitcnt vmcnt(1)")
        stamp(14)
        e("s_waitcnt vmcnt(0)")
        stamp(15)
    cm("hop 2 poll: lane (s=l&7, b=(l>>3)&1, c=l>>4); wave k covers r8 = rb*8 + 2k + {0,1}")
    e(f"s_lshl_b32 s{sT1}, s{sCL}, 16")
    e(f"s_lshl_b32 s{sT2}, s{sHI}, 9")
    e(f"s_add_u32 s{sT1}, s{sT1}, s{sT2}")
    e(f"s_lshl_b32 s{sT2}, s3, 7")
    e(f"s_add_u32 s{sT1}, s{sT1}, s{sT2}")
    e(f"s_add_u32 s{sT1}, s{sT1}, {WS_O}")
    addr64(sA, sWS, sT1)
    e("v_and_b32 v10, 15, v0")
    e("v_lshlrev_b32 v11, 12, v10")
    e("v_lshrrev_b32 v12, 4, v0")
    e("v_lshl_add_u32 v11, v12, 4, v11")
    e(f"s_lshl_b32 s{sT1}, s{sCL}, 10")
    e(f"s_lshr_b32 s{sT2}, s{sHI}, 1")
    e(f"s_lshl_b32 s{sT2}, s{sT2}, 4")
    e(f"s_add_u32 s{sT1}, s{sT1}, s{sT2}")
    e(f"s_add_u32 s{sT1}, s{sT1}, {WS_ML}")
    addr64(sA2, sWS, sT1)
    e("v_lshlrev_b32 v10, 6, v10")
    e(f"s_mov_b32 s{sCNT}, {o.spin}")
    vP = 80
    lab("L_pollo")
    e(f"global_load_dwordx4 v[{vP}:{vP+3}], v11, s[{sA}:{sA+1}] sc1")
    e(f"global_load_dwordx4 v[{vP+4}:{vP+7}], v11, s[{sA}:{sA+1}] offset:64 sc1")
    e(f"global_load_dwordx4 v[{vP+8}:{vP+11}], v10, s[{sA2}:{sA2+1}] sc1")
    e("s_waitcnt vmcnt(0)")
    tagcheck([vP+1, vP+3, vP+5, vP+7, vP+9, vP+11])
    e("s_cbranch_scc1 L_goto")
    e(f"s_sub_u32 s{sCNT}, s{sCNT}, 1")
    e(f"s_cmp_lg_u32 s{sCNT}, 0")
    e("s_cbranch_scc1 L_pollo")
    lab("L_goto")
    stamp(6)
    stampcnt(12)
    os_ = [vP, vP+2, vP+4, vP+6]; vMm, vLl = vP+8, vP+10
    e(f"v_mov_b32 v12, v{vMm}")
    e("s_nop 1")
    for pat in ["quad_perm:[1,0,3,2]", "quad_perm:[2,3,0,1]", "row_half_mirror"]:
        e(f"v_max_f32_dpp v12, v12, v12 {pat} row_mask:0xf bank_mask:0xf")
        e("s_nop 1")
    e(f"v_sub_f32 v12, v{vMm}, v12")
    e("v_exp_f32 v12, v12")
    e("s_nop 0")
    e(f"v_mul_f32 v{vLl}, v{vLl}, v12")
    for r in os_: e(f"v_mul_f32 v{r}, v{r}, v12")
    for pat in ["quad_perm:[1,0,3,2]", "quad_perm:[2,3,0,1]", "row_half_mirror"]:
        for r in [vLl] + os_:
            e(f"v_add_f32_dpp v{r}, v{r}, v{r} {pat} row_mask:0xf bank_mask:0xf")
    e(f"v_rcp_f32 v{vLl}, v{vLl}")
    e("s_nop 0")
    for r in os_: e(f"v_mul_f32 v{r}, v{r}, v{vLl}")
    for r in os_: e(f"v_cvt_pk_bf16_f32 v{r}, v{r}, v{r}")
    vBq = 96
    for q in range(4):
        for r in range(4):
            e(f"v_and_b32 v{vBq+4*q+r}, v{os_[q]}, v{vM+r}")
    vD0 = 112
    e("s_nop 1")
    for rg in range(4):
        for hf in range(2):
            i = rg*2+hf
            c = "0" if rg == 0 else f"v[{vD0+4*hf}:{vD0+4*hf+3}]"
            e(f"v_mfma_f32_16x16x32_bf16 v[{vD0+4*hf}:{vD0+4*hf+3}], v[{vWO+4*i}:{vWO+4*i+3}], v[{vBq+4*rg}:{vBq+4*rg+3}], {c}")
    e(f"s_lshl_b32 s{sT1}, s3, 11")
    e("v_lshlrev_b32 v10, 2, v0")
    e(f"v_add_u32 v10, s{sT1}, v10")
    e("s_nop 6")
    for hf in range(2):
        e(f"ds_write2st64_b32 v10, v{vD0+4*hf}, v{vD0+4*hf+1} offset0:{L_FP//256+4*hf} offset1:{L_FP//256+4*hf+1}")
        e(f"ds_write2st64_b32 v10, v{vD0+4*hf+2}, v{vD0+4*hf+3} offset0:{L_FP//256+4*hf+2} offset1:{L_FP//256+4*hf+3}")
    lds_signal(6)
    e(f"s_lshl_b32 s{sT1}, s3, 9")
    e("v_lshlrev_b32 v10, 3, v0")
    e(f"v_add_u32 v10, s{sT1}, v10")
    e(f"s_lshl_b32 s{sT1}, s4, 19")
    e(f"s_lshl_b32 s{sT2}, s{sLO}, 18")
    e(f"s_add_u32 s{sT1}, s{sT1}, s{sT2}")
    e(f"s_lshl_b32 s{sT2}, s3, 16")
    e(f"s_add_u32 s{sT1}, s{sT1}, s{sT2}")
    e(f"s_lshl_b32 s{sT2}, s5, 9")
    e(f"s_add_u32 s{sT1}, s{sT1}, s{sT2}")
    e(f"s_lshl_b32 s{sT2}, s{sHI}, 6")
    e(f"s_add_u32 s{sT1}, s{sT1}, s{sT2}")
    e(f"s_add_u32 s{sT1}, s{sT1}, {WS_F}")
    addr64(sA, sWS, sT1)
    e("v_lshrrev_b32 v11, 2, v0")
    e("v_lshlrev_b32 v11, 12, v11")
    e("v_and_b32 v12, 3, v0")
    e("v_lshl_add_u32 v11, v12, 4, v11")
    lds_wait(6, 4)
    stamp(7)
    for wv in range(4):
        e(f"ds_read_b64 v[{16+2*wv}:{16+2*wv+1}], v10 offset:{L_FP+wv*2048}")
    e(f"v_mov_b32 v13, s{sTAG}")
    e(f"v_mov_b32 v15, s{sTAG}")
    e("s_waitcnt lgkmcnt(0)")
    e("v_add_f32 v16, v16, v18")
    e("v_add_f32 v17, v17, v19")
    e("v_add_f32 v20, v20, v22")
    e("v_add_f32 v21, v21, v23")
    e("v_add_f32 v12, v16, v20")
    e("v_add_f32 v14, v17, v21")
    e(f"global_store_dwordx4 v11, v[12:15], s[{sA}:{sA+1}] sc1")
    e("s_cmp_eq_u32 s3, 0")
    e("s_cbranch_scc0 L_fin")
    cm("hop 3 poll (wave 0)")
    e(f"s_lshl_b32 s{sT1}, s2, 12")
    e(f"s_add_u32 s{sT1}, s{sT1}, {WS_F}")
    addr64(sA, sWS, sT1)
    e("v_lshlrev_b32 v11, 4, v0")
    e(f"s_mov_b32 s{sCNT}, {o.spin}")
    stamp(8)
    lab("L_pollf")
    for q in range(4):
        e(f"global_load_dwordx4 v[{16+4*q}:{16+4*q+3}], v11, s[{sA}:{sA+1}] offset:{q*1024} sc1")
    e("s_waitcnt vmcnt(0)")
    tagcheck([17, 19, 21, 23, 25, 27, 29, 31])
    e("s_cbranch_scc1 L_gotf")
    e(f"s_sub_u32 s{sCNT}, s{sCNT}, 1")
    e(f"s_cmp_lg_u32 s{sCNT}, 0")
    e("s_cbranch_scc1 L_pollf")
    lab("L_gotf")
    stamp(9)
    stampcnt(13)
    e("v_add_f32 v16, v16, v20")
    e("v_add_f32 v18, v18, v22")
    e("v_add_f32 v24, v24, v28")
    e("v_add_f32 v26, v26, v30")
    e("v_add_f32 v16, v16, v24")
    e("v_add_f32 v18, v18, v26")
    e("s_nop 1")
    for pat in ["row_ror:4", "row_ror:8"]:
        e(f"v_add_f32_dpp v16, v16, v16 {pat} row_mask:0xf bank_mask:0xf")
        e(f"v_add_f32_dpp v18, v18, v18 {pat} row_mask:0xf bank_mask:0xf")
        e("s_nop 1")
    for sw in ["v_permlane16_swap_b32", "v_permlane32_swap_b32"]:
        e("v_mov_b32 v20, v16")
        e("v_mov_b32 v22, v18")
        e("s_nop 1")
        e(f"{sw} v16, v20")
        e(f"{sw} v18, v22")
        e("s_nop 1")
        e("v_add_f32 v16, v16, v20")
        e("v_add_f32 v18, v18, v22")
    e("v_cvt_pk_bf16_f32 v16, v16, v18")
    e(f"s_and_b32 s{sT1}, s2, 1")
    e(f"s_lshl_b32 s{sT1}, s{sT1}, 11")
    e(f"s_lshl_b32 s{sT2}, s4, 10")
    e(f"s_add_u32 s{sT1}, s{sT1}, s{sT2}")
    e(f"s_bfe_u32 s{sT2}, s2, 0x20005")
    e(f"s_lshl_b32 s{sT2}, s{sT2}, 8")
    e(f"s_add_u32 s{sT1}, s{sT1}, s{sT2}")
    e(f"s_bfe_u32 s{sT2}, s2, 0x20001")
    e(f"s_lshl_b32 s{sT2}, s{sT2}, 6")
    e(f"s_add_u32 s{sT1}, s{sT1}, s{sT2}")
    e(f"s_bfe_u32 s{sT2}, s2, 0x20003")
    e(f"s_lshl_b32 s{sT2}, s{sT2}, 4")
    e(f"s_add_u32 s{sT1}, s{sT1}, s{sT2}")
    addr64(sA, sOUT, sT1)
    e("v_lshlrev_b32 v11, 2, v0")
    e("s_mov_b64 exec, 0xf")
    e(f"global_store_dword v11, v16, s[{sA}:{sA+1}]")
    e(f"s_and_b32 s{sT1}, s2, 127")
    e(f"s_cmp_eq_u32 s{sT1}, 0")
    e("s_cbranch_scc0 L_fin")
    e(f"s_lshl_b32 s{sT1}, s4, 8")
    e(f"v_mov_b32 v11, s{sT1}")
    e(f"v_mov_b32 v12, s{sTAG}")
    e("s_mov_b64 exec, 1")
    e(f"global_store_dword v11, v12, s[{sWS}:{sWS+1}]")
    lab("L_fin")
    if o.prof == 4:
        e("s_cmp_eq_u32 s2, 0")
        e("s_cbranch_scc0 L_end")
        e("s_cmp_eq_u32 s3, 0")
        e("s_cbranch_scc0 L_end")
        lab("L_pad")
        stamp(10)
        e("s_waitcnt lgkmcnt(0)")
        e(f"s_sub_u32 s{sT1}, s{sST+20}, s{sST}")
        e(f"s_cmp_lt_u32 s{sT1}, 6000")
        e("s_cbranch_scc1 L_pad")
    elif o.prof == 3:
        stamp(10)
        e("s_waitcnt lgkmcnt(0)")
        e("s_cmp_eq_u32 s2, 0")
        e("s_cbranch_scc0 L_end")
        e("s_mov_b64 exec, 1")
        e("v_mov_b32 v11, 0")
        def am(slot, st):
            e(f"v_mov_b32 v12, s{sST+2*st}")
            e(f"global_store_dword v11, v12, s[{sDBG}:{sDBG+1}] offset:{4*slot}")
            e("s_nop 1")
        e("s_cmp_eq_u32 s3, 4")
        e("s_cbranch_scc0 L_dk")
        am(1, 8); am(2, 2); am(3, 3); am(4, 5); am(5, 6)
        e("s_branch L_end")
        lab("L_dk")
        e("s_cmp_eq_u32 s3, 0")
        e("s_cbranch_scc0 L_end")
        am(0, 0); am(6, 1); am(7, 2); am(8, 4); am(9, 5); am(10, 14); am(11, 15); am(12, 6); am(13, 7); am(14, 9); am(15, 10)
    elif o.prof == 2:
        stamp(10)
        e("s_waitcnt lgkmcnt(0)")
        e("s_mov_b64 exec, 1")
        e("v_mov_b32 v11, 0")
        def am(slot, st, neg=False):
            if neg: e(f"s_not_b32 s{sT1}, s{sST+2*st}"); e(f"v_mov_b32 v12, s{sT1}")
            else: e(f"v_mov_b32 v12, s{sST+2*st}")
            e(f"global_atomic_umax v11, v12, s[{sDBG}:{sDBG+1}] offset:{4*slot}")
            e("s_nop 1")
        am(0, 0, True); am(1, 0); am(13, 10)
        e("s_cmp_lt_u32 s3, 4")
        e("s_cbranch_scc1 L_dk")
        am(2, 8); am(3, 2); am(4, 3); am(7, 6); am(14, 8, True); am(15, 2, True)
        e("s_branch L_end")
        lab("L_dk")
        am(5, 2); am(6, 4); am(8, 14); am(9, 15); am(10, 6); am(11, 7)
        e("s_cmp_eq_u32 s3, 0")
        e("s_cbranch_scc0 L_end")
        am(12, 9)
    elif o.prof:
        stamp(10)
        e("s_waitcnt lgkmcnt(0)")
        e("s_mov_b64 exec, 1")
        e(f"s_lshl_b32 s{sT1}, s2, 3")
        e(f"s_add_u32 s{sT1}, s{sT1}, s3")
        e(f"s_lshl_b32 s{sT1}, s{sT1}, 7")
        e(f"s_add_u32 s{sT1}, s{sT1}, {WS_PROF}")
        e(f"v_mov_b32 v11, s{sT1}")
        for i in range(NST):
            e(f"v_mov_b32 v12, s{sST+2*i}")
            e(f"global_store_dword v11, v12, s[{sWS}:{sWS+1}] offset:{4*i}")
            e("s_nop 1")
    lab("L_end")
    e("s_endpgm")
    L.append('.section .rodata,"a"')
    L.append(".p2align 6")
    L.append(f".amdhsa_kernel {NAME}_kernel")
    L.append(f"  .amdhsa_next_free_vgpr {NV}")
    L.append("  .amdhsa_next_free_sgpr 100")
    L.append(f"  .amdhsa_accum_offset {NV}")
    L.append("  .amdhsa_group_segment_fixed_size 0")
    L.append("  .amdhsa_kernarg_size 104")
    L.append("  .amdhsa_user_sgpr_count 2")
    L.append("  .amdhsa_user_sgpr_kernarg_segment_ptr 1")
    L.append("  .amdhsa_system_sgpr_workgroup_id_x 1")
    L.append(".end_amdhsa_kernel")
    return "\n".join(L) + "\n"

if __name__ == "__main__":
    o = Opt()
    out = sys.argv[1]
    for a in sys.argv[2:]:
        k, v = a.split("=")
        assert hasattr(o, k), k
        setattr(o, k, int(v))
    open(out, "w").write(gen(o))
```

```python
import sys
NAME = "concat_heads__sliding_block_cached__sliding_block_cached__decode"

class Opt:
    prof = 0
    nt = 1
    spin = 200000
    w = 6
    pq = 1
    touch = 1
    colo = 1
    fack = 1
    b5 = 1
    jy = 0
    kmap = 0
    wqnt = 1
    k0 = -1
    t2 = 1
    b0 = 1
    wqt = 0
    jx = 0

def gen(o):
    L = []
    def e(s): L.append("    " + s)
    def lab(s): L.append(s + ":")
    def cm(s): L.append("    ; " + s)
    NT = " nt" if o.nt else ""
    W = o.w
    WS_Q = 0x1000; WS_O = 0x80000; WS_F = 0x180000; WS_PROF = 0x800000
    L_QP = 0; L_FP = 0; L_OP = 16384; L_Q = 34816; L_M = 35840; L_L = 35968; L_FL = 36096; LDS = 36864
    OPW = 2176; OPH = 544
    sX, sK, sV, sWQ, sWO = 8, 10, 12, 14, 16
    sOUT, sDBG, sWS = 28, 30, 32
    sEP = 34; sTAG = 35; sB, sS = 36, 37; sHI, sLO = 38, 39
    sT0, sT1, sT2, sT3 = 40, 41, 42, 43
    sA = 44; sA2 = 46; sM1, sM2, sM3 = 48, 50, 52; sC = 54; sCNT = 56
    sSEL_LO, sSEL_HI = 57, 58; sC1 = 59; sCL = 60; sXCC = 61; sCOLO = 62; sQA = 96; sODD = 98
    sST = 64
    NST = 16
    def stamp(i):
        if o.prof: e(f"s_memrealtime s[{sST+2*i}:{sST+2*i+1}]")
    def stampcnt(i):
        if o.prof: e(f"s_sub_u32 s{sST+2*i}, {o.spin}, s{sCNT}")
    vM = 1
    vOWQ = 5; vOX = 6; vOWO = 7; vOK = 8; vOV = 9
    vWQ = 16; vWO = 16; vK = 32; vV = 64; vXX = 96; vBB = 100; vQA = 108
    vP = 116; vQ = 120; vD = 124; vS = 156; vR = 164; vX = 124; vACC = 140
    vM0 = 166; vM1 = 167; vMI = 168; vBP = 169; vOA = 170; vPA = 171; vTCH = 172
    NV = 176
    def addr64(dst, base, off):
        e(f"s_add_u32 s{dst}, s{base}, s{off}")
        e(f"s_addc_u32 s{dst+1}, s{base+1}, 0")
    KSTEP = {0: 0, 1: 8192, 2: 65536}[o.kmap]
    def ldKV(t, reg, vo, sb):
        if o.kmap == 0:
            e(f"global_load_dwordx4 v[{reg+4*t}:{reg+4*t+3}], v{vo}, s[{sb}:{sb+1}] offset:{t*1024-4096}{NT}")
        else:
            e(f"global_load_dwordx4 v[{reg+4*t}:{reg+4*t+3}], v{vo}, s[{sb}:{sb+1}]{NT}")
            if t < 7:
                e(f"s_add_u32 s{sb}, s{sb}, {KSTEP}")
                e(f"s_addc_u32 s{sb+1}, s{sb+1}, 0")
    def ldK(t): ldKV(t, vK, vOK, sK)
    def ldV(t): ldKV(t, vV, vOV, sV)
    def ldWO(i): e(f"global_load_dwordx4 v[{vWO+4*i}:{vWO+4*i+3}], v{vOWO}, s[{sWO}:{sWO+1}] offset:{(i>>1)*4096-4096+(i&1)*256}{NT}")
    def pollq(): e(f"global_load_dwordx4 v[{vP}:{vP+3}], v{vOV}, s[{sQA}:{sQA+1}] sc1")
    def rowreduce(v, op, t1):
        for sw in ("v_permlane16_swap_b32", "v_permlane32_swap_b32"):
            e(f"v_mov_b32 v{t1}, v{v}")
            e("s_nop 1")
            e(f"{sw} v{v}, v{t1}")
            e("s_nop 1")
            e(f"{op} v{v}, v{v}, v{t1}")
    def quadrow_reduce(v, op, t1):
        e("s_nop 1")
        e(f"{op}_dpp v{v}, v{v}, v{v} quad_perm:[1,0,3,2] row_mask:0xf bank_mask:0xf")
        e("s_nop 1")
        e(f"{op}_dpp v{v}, v{v}, v{v} quad_perm:[2,3,0,1] row_mask:0xf bank_mask:0xf")
        e("s_nop 0")
        rowreduce(v, op, t1)

    L.append("; fused q-proj + sliding-window GQA decode attention + out-proj (two blocks)")
    L.append(f"; @launch grid=(256,1,1) block=(512,1,1) lds={LDS}")
    L.append('.amdgcn_target "amdgcn-amd-amdhsa--gfx950"')
    L.append(".text")
    L.append(f".globl {NAME}_kernel")
    L.append(".p2align 8")
    L.append(f".type {NAME}_kernel,@function")
    lab(f"{NAME}_kernel")
    e("s_cmp_ge_u32 s2, 0x100")
    e("s_cbranch_scc1 L_end")
    e("s_load_dwordx16 s[8:23], s[0:1], 0")
    e("s_load_dwordx8 s[24:31], s[0:1], 64")
    e("s_load_dwordx2 s[32:33], s[0:1], 96")
    stamp(0)
    e("v_lshrrev_b32 v5, 6, v0")
    e("v_and_b32 v0, 63, v0")
    e("s_lshr_b32 s4, s2, 7")
    e("v_readfirstlane_b32 s3, v5")
    e("s_and_b32 s5, s2, 7")
    e("s_bfe_u32 s6, s2, 0x40003")
    if o.jx: e(f"s_xor_b32 s6, s6, {o.jx}")
    e(f"s_lshr_b32 s{sB}, s6, 3")
    e(f"s_and_b32 s{sS}, s6, 7")
    if o.jy:
        e(f"s_xor_b32 s{sLO}, s6, {o.jy}")
        e(f"s_lshr_b32 s{sHI}, s{sLO}, 1")
        e(f"s_and_b32 s{sLO}, s{sLO}, 1")
    else:
        e(f"s_lshr_b32 s{sHI}, s6, 1")
        e(f"s_and_b32 s{sLO}, s6, 1")
    cm("lane offsets")
    e(f"v_lshrrev_b32 v10, 3, v0")
    e(f"v_and_b32 v11, 7, v0")
    e(f"v_lshlrev_b32 v{vOWQ}, 15, v10")
    e(f"v_lshl_add_u32 v{vOWQ}, v11, 4, v{vOWQ}")
    e(f"v_lshlrev_b32 v{vOX}, 3, v10")
    e(f"v_bfe_u32 v{vOK}, v0, 2, 2")
    e(f"v_lshlrev_b32 v{vOK}, 8, v{vOK}")
    e(f"v_lshrrev_b32 v10, 4, v0")
    e(f"v_lshl_add_u32 v{vOK}, v10, 6, v{vOK}")
    e(f"v_and_b32 v11, 3, v0")
    e(f"v_lshl_add_u32 v{vOK}, v11, 4, v{vOK}")
    e(f"v_lshlrev_b32 v{vOV}, 4, v0")
    cm("scalar offsets")
    e(f"s_lshl_b32 s{sT1}, s{sLO}, 8")
    e(f"s_lshl_b32 s{sT2}, s3, 5")
    e(f"s_add_u32 s{sT1}, s{sT1}, s{sT2}")
    e(f"s_lshl_b32 s{sT2}, s{sT1}, 13")
    e(f"s_lshl_b32 s{sT3}, s5, 10")
    e(f"s_add_u32 s{sT2}, s{sT2}, s{sT3}")
    e(f"s_lshl_b32 s{sT3}, s{sHI}, 7")
    e(f"s_add_u32 s{sT2}, s{sT2}, s{sT3}")
    e(f"s_lshl_b32 s{sT1}, s{sT1}, 1")
    e(f"s_lshl_b32 s{sT0}, s{sB}, 3")
    e(f"s_add_u32 s{sT0}, s{sT0}, s5")
    e(f"s_lshl_b32 s{sT0}, s{sT0}, 21")
    e(f"s_lshl_b32 s{sT3}, s{sS}, {13 if o.kmap == 2 else 16}")
    e(f"s_add_u32 s{sT0}, s{sT0}, s{sT3}")
    e(f"s_lshl_b32 s{sT3}, s3, {13 if o.kmap == 0 else 10}")
    e(f"s_add_u32 s{sT0}, s{sT0}, s{sT3}")
    e(f"s_add_u32 s{sT0}, s{sT0}, {6144*256 + (4096 if o.kmap == 0 else 0)}")
    e(f"s_lshl_b32 s{sCL}, s4, 3")
    e(f"s_add_u32 s{sCL}, s{sCL}, s5")
    e("s_cmp_eq_u32 s4, 0")
    e("s_waitcnt lgkmcnt(0)")
    stamp(8)
    e(f"s_cselect_b64 s[{sWQ}:{sWQ+1}], s[14:15], s[24:25]")
    e(f"s_cselect_b64 s[{sX}:{sX+1}], s[8:9], s[18:19]")
    e(f"s_cselect_b64 s[{sK}:{sK+1}], s[10:11], s[20:21]")
    e(f"s_cselect_b64 s[{sV}:{sV+1}], s[12:13], s[22:23]")
    e(f"s_cselect_b64 s[{sWO}:{sWO+1}], s[16:17], s[26:27]")
    addr64(sX, sX, sT1)
    WQS = 8192
    if o.wqt == 1:
        e(f"s_lshl_b32 s{sT2}, s5, 4")
        e(f"s_add_u32 s{sT2}, s{sT2}, s6")
        e(f"s_lshl_b32 s{sT2}, s{sT2}, 15")
        e(f"s_lshl_b32 s{sT3}, s3, 12")
        e(f"s_add_u32 s{sT2}, s{sT2}, s{sT3}")
        e(f"v_lshlrev_b32 v{vOWQ}, 4, v0")
        WQS = 1024
    if o.wqt == 2:
        e(f"s_and_b32 s{sT2}, s6, 3")
        e(f"s_lshl_b32 s{sT2}, s{sT2}, 7")
        e(f"s_lshl_b32 s{sT3}, s3, 4")
        e(f"s_add_u32 s{sT2}, s{sT2}, s{sT3}")
        e(f"s_lshl_b32 s{sT2}, s{sT2}, 13")
        e(f"s_lshl_b32 s{sT3}, s5, 10")
        e(f"s_add_u32 s{sT2}, s{sT2}, s{sT3}")
        e(f"s_lshr_b32 s{sT3}, s6, 2")
        e(f"s_lshl_b32 s{sT3}, s{sT3}, 8")
        e(f"s_add_u32 s{sT2}, s{sT2}, s{sT3}")
        e(f"v_lshrrev_b32 v10, 4, v0")
        e(f"v_lshlrev_b32 v{vOWQ}, 15, v10")
        e(f"v_and_b32 v11, 15, v0")
        e(f"v_lshl_add_u32 v{vOWQ}, v11, 4, v{vOWQ}")
    if o.wqt == 3:
        e(f"v_lshrrev_b32 v10, 3, v0")
        e(f"v_and_b32 v11, 7, v0")
        e(f"v_lshlrev_b32 v{vOWQ}, 13, v10")
        e(f"v_lshl_add_u32 v{vOWQ}, v11, 4, v{vOWQ}")
        WQS = 65536
    addr64(sWQ, sWQ, sT2)
    e(f"global_load_dwordx2 v[{vXX}:{vXX+1}], v{vOX}, s[{sX}:{sX+1}]")
    e(f"global_load_dwordx2 v[{vXX+2}:{vXX+3}], v{vOX}, s[{sX}:{sX+1}] offset:1024")
    for t in range(4):
        e(f"global_load_dwordx4 v[{vWQ+4*t}:{vWQ+4*t+3}], v{vOWQ}, s[{sWQ}:{sWQ+1}]{NT if o.wqnt else ''}")
        if t < 3:
            e(f"s_add_u32 s{sWQ}, s{sWQ}, {WQS}")
            e(f"s_addc_u32 s{sWQ+1}, s{sWQ+1}, 0")
    addr64(sK, sK, sT0)
    if o.b0: e("s_barrier")
    nk0 = (W - 4) if o.k0 < 0 else o.k0
    for t in range(nk0): ldK(t)
    stamp(1)
    addr64(sV, sV, sT0)
    e(f"s_lshl_b32 s{sT3}, s4, 8")
    e(f"s_load_dword s{sEP}, s[{sWS}:{sWS+1}], s{sT3}")
    e(f"s_getreg_b32 s{sXCC}, hwreg(HW_REG_XCC_ID)")
    if o.t2:
        cm("waves 5/6: touch the V and wo pages this workgroup will stream later (translation warm-up)")
        e("s_cmp_eq_u32 s3, 4")
        e("s_cbranch_scc0 L_nt4")
        e("v_mov_b32 v10, 0")
        e(f"global_load_dword v{vTCH}, v10, s[{sK}:{sK+1}]")
        lab("L_nt4")
        e("s_cmp_eq_u32 s3, 5")
        e("s_cbranch_scc0 L_nt5")
        e("v_mov_b32 v10, 0")
        e(f"global_load_dword v{vTCH}, v10, s[{sV}:{sV+1}]")
        lab("L_nt5")
        e("s_cmp_eq_u32 s3, 6")
        e("s_cbranch_scc0 L_nt6")
        e(f"s_lshl_b32 s{sT1}, s5, 19")
        e(f"v_mov_b32 v10, s{sT1}")
        e(f"global_load_dword v{vTCH}, v10, s[{sWO}:{sWO+1}]")
        lab("L_nt6")
    if o.touch:
        cm("wave 7: touch the output page and the upper workspace page (translation warm-up); issued after the stream head")
        e("s_cmp_eq_u32 s3, 7")
        e("s_cbranch_scc0 L_notouch")
        e("v_mov_b32 v10, 0")
        e(f"v_mov_b32 v11, {WS_F + 0x80000}")
        e(f"global_load_dword v{vTCH}, v10, s[{sOUT}:{sOUT+1}]")
        e(f"global_load_dword v{vTCH+1}, v11, s[{sWS}:{sWS+1}]")
        lab("L_notouch")
    cm("masks")
    e("v_and_b32 v10, 1, v0")
    e("v_lshlrev_b32 v10, 4, v10")
    e("v_mov_b32 v11, 0xffff")
    e("v_lshlrev_b32 v11, v10, v11")
    e("v_bfe_u32 v10, v0, 1, 2")
    for r in range(4):
        e(f"v_cmp_eq_u32 vcc, {r}, v10")
        e("s_nop 1")
        e(f"v_cndmask_b32 v{vM+r}, 0, v11, vcc")
    e("v_and_b32 v10, 2, v0")
    e("v_cmp_eq_u32 vcc, 0, v10")
    e("s_nop 1")
    e(f"v_cndmask_b32 v{vM0}, 0, v11, vcc")
    e(f"v_xor_b32 v{vM1}, v{vM0}, v11")
    e("v_and_b32 v10, 3, v0")
    e(f"v_cmp_eq_u32 s[{sM1}:{sM1+1}], 1, v10")
    e(f"v_cmp_eq_u32 s[{sM2}:{sM2+1}], 2, v10")
    e(f"v_cmp_eq_u32 s[{sM3}:{sM3+1}], 3, v10")
    e(f"s_mov_b32 s{sSEL_LO}, 0x01000100")
    e(f"s_mov_b32 s{sSEL_HI}, 0x03020302")
    e(f"s_mov_b32 s{sC1}, 0x3e0293ee")
    e(f"s_mov_b32 s{sODD}, 0xaaaaaaaa")
    e(f"s_mov_b32 s{sODD+1}, 0xaaaaaaaa")
    cm("wo base / lane offset")
    e(f"s_lshl_b32 s{sT1}, s5, 19")
    e(f"s_lshl_b32 s{sT2}, s{sHI}, 16")
    e(f"s_add_u32 s{sT1}, s{sT1}, s{sT2}")
    e(f"s_lshl_b32 s{sT2}, s3, 13")
    e(f"s_add_u32 s{sT1}, s{sT1}, s{sT2}")
    e(f"s_lshl_b32 s{sT2}, s{sLO}, 9")
    e(f"s_add_u32 s{sT1}, s{sT1}, s{sT2}")
    e(f"s_add_u32 s{sT1}, s{sT1}, 4096")
    addr64(sWO, sWO, sT1)
    e(f"v_lshrrev_b32 v10, 4, v0")
    e(f"v_lshlrev_b32 v{vOWO}, 10, v10")
    e(f"v_and_b32 v11, 15, v0")
    e(f"v_lshl_add_u32 v{vOWO}, v11, 4, v{vOWO}")
    cm("bpermute source lane*4 = ((l>>4) + 32*((l>>3)&1))*4")
    e(f"v_bfe_u32 v11, v0, 3, 1")
    e(f"v_lshl_add_u32 v{vBP}, v11, 5, v10")
    e(f"v_lshlrev_b32 v{vBP}, 2, v{vBP}")
    cm("q poll address: Q + cl*16384 + b*8192 + w*1024")
    e(f"s_lshl_b32 s{sT1}, s{sCL}, 14")
    e(f"s_lshl_b32 s{sT2}, s{sB}, 13")
    e(f"s_add_u32 s{sT1}, s{sT1}, s{sT2}")
    e(f"s_lshl_b32 s{sT2}, s3, 10")
    e(f"s_add_u32 s{sT1}, s{sT1}, s{sT2}")
    e(f"s_add_u32 s{sT1}, s{sT1}, {WS_Q}")
    addr64(sQA, sWS, sT1)
    cm("q-proj")
    q = ["x0", "x1", "wq0", "wq1", "wq2", "wq3"] + [f"K{t}" for t in range(nk0)]
    def wait_for(name, extra=0):
        n = len(q) - 1 - q.index(name) + extra
        assert n <= 63
        e(f"s_waitcnt vmcnt({n})")
    def bbuild(dst, src, sel, tmp):
        e(f"v_perm_b32 v{tmp}, v{src}, v{src}, s{sel}")
        for r in range(4):
            e(f"v_and_b32 v{dst+r}, v{tmp}, v{vM+r}")
    tch = 2 if o.touch else 0
    nk = nk0
    for t in range(4):
        wait_for(f"wq{t}")
        outstanding = [x for x in q[q.index(f"wq{t}")+1:]]
        while nk < 8 and len(outstanding) < W:
            ldK(nk); q.append(f"K{nk}"); outstanding.append("k"); nk += 1
        sel = sSEL_HI if (t & 1) else sSEL_LO
        bbuild(vBB, vXX + (t >> 1), sel, 10)
        bbuild(vBB+4, vXX + 2 + (t >> 1), sel, 11)
        c0 = "0" if t == 0 else f"v[{vQA}:{vQA+3}]"
        c1 = "0" if t == 0 else f"v[{vQA+4}:{vQA+7}]"
        e(f"v_mfma_f32_16x16x32_bf16 v[{vQA}:{vQA+3}], v[{vWQ+4*t}:{vWQ+4*t+3}], v[{vBB}:{vBB+3}], {c0}")
        e("s_nop 0")
        e(f"v_mfma_f32_16x16x32_bf16 v[{vQA+4}:{vQA+7}], v[{vWQ+4*t}:{vWQ+4*t+3}], v[{vBB+4}:{vBB+7}], {c1}")
    e(f"s_lshl_b32 s{sT1}, s3, 11")
    e(f"v_lshlrev_b32 v10, 2, v0")
    e(f"v_add_u32 v10, s{sT1}, v10")
    e("s_nop 6")
    for b in range(2):
        e(f"ds_write2st64_b32 v10, v{vQA+4*b}, v{vQA+4*b+1} offset0:{L_QP//256+4*b} offset1:{L_QP//256+4*b+1}")
        e(f"ds_write2st64_b32 v10, v{vQA+4*b+2}, v{vQA+4*b+3} offset0:{L_QP//256+4*b+2} offset1:{L_QP//256+4*b+3}")
    e("s_waitcnt lgkmcnt(0)")
    stamp(2)
    e(f"s_add_u32 s{sTAG}, s{sEP}, 0x9e3779b9")
    e("s_barrier")
    def issue(kind, t):
        if kind == "K": ldK(t)
        elif kind == "V": ldV(t)
        elif kind == "wo": ldWO(t)
        else: pollq()
    REST = [("V", t) for t in range(8)] + [("wo", t) for t in range(4)]
    def stream_to_poll(q, nk, extra_names):
        seq = [("K", t) for t in range(nk, 8)] + REST[:o.pq] + [("PQ", "")]
        after = W - 2
        seq += REST[o.pq:o.pq + after]
        for kind, t in seq:
            big = [x for x in q if not x.startswith("st")]
            if len(big) >= W:
                wait_for_q(q, big[len(big) - W])
            issue(kind, t); q.append(f"{kind}{t}")
        return min(len(REST), o.pq + after)
    def wait_for_q(q, name):
        n = len(q) - 1 - q.index(name)
        e(f"s_waitcnt vmcnt({n})")
    e("s_cmp_eq_u32 s3, 0")
    e("s_cbranch_scc0 L_noqpub")
    cm("wave 0 publishes the q partial sums")
    e("v_lshrrev_b32 v10, 5, v0")
    e("v_lshlrev_b32 v10, 10, v10")
    e("v_bfe_u32 v11, v0, 2, 2")
    e("v_lshl_add_u32 v10, v11, 8, v10")
    e("v_bfe_u32 v11, v0, 4, 1")
    e("v_lshl_add_u32 v10, v11, 6, v10")
    e("v_and_b32 v11, 3, v0")
    e("v_lshl_add_u32 v10, v11, 3, v10")
    base = vD
    for kw in range(8):
        e(f"ds_read_b64 v[{base+4*kw}:{base+4*kw+1}], v10 offset:{L_QP+kw*2048}")
        e(f"ds_read_b64 v[{base+4*kw+2}:{base+4*kw+3}], v10 offset:{L_QP+kw*2048+160}")
    cm("store address: Q + cl*16384 + (l>>5)*8192 + HI*1024 + LO*512 + (l&31)*16")
    e(f"s_lshl_b32 s{sT1}, s{sCL}, 14")
    e(f"s_lshl_b32 s{sT2}, s{sHI}, 10")
    e(f"s_add_u32 s{sT1}, s{sT1}, s{sT2}")
    e(f"s_lshl_b32 s{sT2}, s{sLO}, 9")
    e(f"s_add_u32 s{sT1}, s{sT1}, s{sT2}")
    e(f"s_add_u32 s{sT1}, s{sT1}, {WS_Q}")
    addr64(sA, sWS, sT1)
    e("v_lshrrev_b32 v11, 5, v0")
    e("v_lshlrev_b32 v11, 13, v11")
    e("v_and_b32 v12, 31, v0")
    e("v_lshl_add_u32 v11, v12, 4, v11")
    e(f"v_mov_b32 v14, s{sXCC}")
    e(f"v_mov_b32 v15, s{sTAG}")
    e("s_waitcnt lgkmcnt(0)")
    n = 16
    regs = [base + 2*i for i in range(16)]
    while len(regs) > 2:
        nxt = []
        for i in range(0, len(regs), 2):
            a, b2 = regs[i], regs[i+1]
            e(f"v_add_f32 v{a}, v{a}, v{b2}")
            e(f"v_add_f32 v{a+1}, v{a+1}, v{b2+1}")
            nxt.append(a)
        regs = nxt
    e(f"v_add_f32 v12, v{regs[0]}, v{regs[1]}")
    e(f"v_add_f32 v13, v{regs[0]+1}, v{regs[1]+1}")
    e(f"global_store_dwordx4 v11, v[12:15], s[{sA}:{sA+1}] sc1")
    stamp(3)
    q0 = list(q) + ["st0"]
    nv_issued = stream_to_poll(q0, nk, None)
    wait_for_q(q0, "PQ")
    e("s_branch L_qchk")
    lab("L_noqpub")
    stamp(3)
    q1 = list(q)
    nv2 = stream_to_poll(q1, nk, None)
    assert nv2 == nv_issued
    wait_for_q(q1, "PQ")
    lab("L_qchk")
    q = q1[q1.index("PQ")+1:]
    more = REST[nv_issued:nv_issued + 2]
    e(f"s_mov_b32 s{sCNT}, {o.spin}")
    e(f"v_cmp_eq_u32 vcc, s{sTAG}, v{vP+3}")
    e("s_cmp_eq_u64 vcc, exec")
    e("s_cbranch_scc1 L_qok")
    pollq()
    for kd, t in more: issue(kd, t)
    e(f"s_waitcnt vmcnt({len(more)})")
    lab("L_qre")
    e(f"v_cmp_eq_u32 vcc, s{sTAG}, v{vP+3}")
    e("s_cmp_eq_u64 vcc, exec")
    e("s_cbranch_scc1 L_qafter")
    e(f"s_sub_u32 s{sCNT}, s{sCNT}, 1")
    e(f"s_cmp_eq_u32 s{sCNT}, 0")
    e("s_cbranch_scc1 L_qafter")
    pollq()
    e("s_waitcnt vmcnt(0)")
    e("s_branch L_qre")
    lab("L_qok")
    for kd, t in more: issue(kd, t)
    lab("L_qafter")
    for kd, t in more: q.append(f"{kd}{t}")
    nr = nv_issued + len(more)
    stamp(4)
    stampcnt(11)
    cm("combine the two partial sums, round to bf16, share through LDS")
    e(f"v_cmp_eq_u32 vcc, s{sXCC}, v{vP+2}")
    e(f"v_mov_b32 v10, v{vP}")
    e(f"v_mov_b32 v11, v{vP+1}")
    e("s_cmp_eq_u64 vcc, exec")
    e(f"s_cselect_b32 s{sT2}, 1, 0")
    e(f"v_permlane32_swap_b32 v{vP}, v10")
    e(f"v_permlane32_swap_b32 v{vP+1}, v11")
    e(f"v_mov_b32 v13, s{sT2}")
    e(f"v_add_f32 v{vP}, v{vP}, v10")
    e(f"v_add_f32 v{vP+1}, v{vP+1}, v11")
    e(f"v_and_b32 v12, 31, v0")
    e(f"v_cvt_pk_bf16_f32 v11, v{vP}, v{vP+1}")
    e(f"s_lshl_b32 s{sT1}, s3, 7")
    e(f"v_lshlrev_b32 v12, 2, v12")
    e(f"v_add_u32 v12, s{sT1}, v12")
    e(f"ds_write_b32 v12, v11 offset:{L_Q}")
    e(f"s_lshl_b32 s{sT1}, s3, 2")
    e(f"v_mov_b32 v14, s{sT1}")
    e(f"ds_write_b32 v14, v13 offset:{L_FL}")
    e("s_waitcnt lgkmcnt(0)")
    e("s_barrier")
    e(f"v_add_u32 v10, {L_Q}, v{vOK}")
    e(f"ds_read_b128 v[{vQ}:{vQ+3}], v10")
    e(f"v_mov_b32 v10, 0")
    e(f"ds_read_b128 v[{vS}:{vS+3}], v10 offset:{L_FL}")
    e(f"ds_read_b128 v[{vS+4}:{vS+7}], v10 offset:{L_FL+16}")
    if nr < len(REST):
        if len(q) >= W: wait_for_q(q, q[len(q) - W])
        issue(*REST[nr]); q.append(f"{REST[nr][0]}{REST[nr][1]}"); nr += 1
    e("s_waitcnt lgkmcnt(0)")
    def dreg(G, a): return vD + G*16 + a*4
    for G in range(2):
        for a in range(4):
            t = 4*G + a; d = dreg(G, a)
            e(f"v_mfma_f32_16x16x32_bf16 v[{d}:{d+3}], v[{vK+4*t}:{vK+4*t+3}], v[{vQ}:{vQ+3}], 0")
    cm("colocation flag (all 16 workgroups of the cluster on this XCD)")
    for i in range(0, 8, 2): e(f"v_and_b32 v{vS+i}, v{vS+i}, v{vS+i+1}")
    e(f"v_and_b32 v{vS}, v{vS}, v{vS+2}")
    e(f"v_and_b32 v{vS+4}, v{vS+4}, v{vS+6}")
    e(f"v_and_b32 v{vS}, v{vS}, v{vS+4}")
    e("s_nop 1")
    e(f"v_readfirstlane_b32 s{sCOLO}, v{vS}")
    e("s_nop 4")
    for G in range(2):
        for step in range(4):
            for a in range(4):
                d = dreg(G, a) + step; sdst = vS + 4*G + a
                qp = f"quad_perm:[{step},{step},{step},{step}] row_mask:0xf bank_mask:0xf"
                if step == 0: e(f"v_mov_b32_dpp v{sdst}, v{d} {qp}")
                else: e(f"v_add_f32_dpp v{sdst}, v{d}, v{sdst} {qp}")
    for G in range(2):
        e(f"v_cndmask_b32 v{vR+G}, v{vS+4*G}, v{vS+4*G+1}, s[{sM1}:{sM1+1}]")
    for G in range(2):
        e(f"v_cndmask_b32 v{vR+G}, v{vR+G}, v{vS+4*G+2}, s[{sM2}:{sM2+1}]")
    for G in range(2):
        e(f"v_cndmask_b32 v{vR+G}, v{vR+G}, v{vS+4*G+3}, s[{sM3}:{sM3+1}]")
    e(f"v_max_f32 v10, v{vR}, v{vR+1}")
    quadrow_reduce(10, "v_max_f32", 11)
    cm("per-wave max -> LDS [h][w]")
    e("v_bfe_u32 v12, v0, 2, 2")
    e("v_lshlrev_b32 v12, 5, v12")
    e(f"s_lshl_b32 s{sT1}, s3, 2")
    e(f"v_add_u32 v13, s{sT1}, v12")
    e("s_mov_b64 exec, 0x1111")
    e(f"ds_write_b32 v13, v10 offset:{L_M}")
    e("s_mov_b64 exec, -1")
    e("s_waitcnt lgkmcnt(0)")
    e("s_barrier")
    e(f"ds_read_b128 v[{vS}:{vS+3}], v12 offset:{L_M}")
    e(f"ds_read_b128 v[{vS+4}:{vS+7}], v12 offset:{L_M+16}")
    e(f"s_and_b32 s{sT1}, s3, 3")
    e(f"s_lshl_b32 s{sT1}, s{sT1}, 5")
    e(f"v_mov_b32 v14, s{sT1}")
    e(f"ds_read_b128 v[{vD}:{vD+3}], v14 offset:{L_M}")
    e(f"ds_read_b128 v[{vD+4}:{vD+7}], v14 offset:{L_M+16}")
    e("s_waitcnt lgkmcnt(2)")
    e(f"v_max3_f32 v10, v{vS}, v{vS+1}, v{vS+2}")
    e(f"v_max3_f32 v11, v{vS+3}, v{vS+4}, v{vS+5}")
    e(f"v_max3_f32 v10, v10, v{vS+6}, v{vS+7}")
    e(f"v_max_f32 v10, v10, v11")
    e(f"v_mul_f32 v10, s{sC1}, v10")
    for G in range(2):
        e(f"v_fma_f32 v{vR+G}, v{vR+G}, s{sC1}, -v10")
    for G in range(2):
        e(f"v_exp_f32 v{vR+G}, v{vR+G}")
    e("s_waitcnt lgkmcnt(0)")
    e(f"v_max3_f32 v14, v{vD}, v{vD+1}, v{vD+2}")
    e(f"v_max3_f32 v15, v{vD+3}, v{vD+4}, v{vD+5}")
    e(f"v_max3_f32 v14, v14, v{vD+6}, v{vD+7}")
    e(f"v_max_f32 v14, v14, v15")
    e(f"v_mul_f32 v{vMI}, s{sC1}, v14")
    e(f"v_add_f32 v10, v{vR}, v{vR+1}")
    for G in range(2):
        e(f"v_cvt_pk_bf16_f32 v{vR+G}, v{vR+G}, v{vR+G}")
    e("s_nop 0")
    for t in range(8):
        G, a = t >> 2, t & 3
        qp = f"quad_perm:[{a},{a},{a},{a}] row_mask:0xf bank_mask:0xf"
        e(f"v_and_b32_dpp v{vX+2*t}, v{vR+G}, v{vM0} {qp}")
        e(f"v_and_b32_dpp v{vX+2*t+1}, v{vR+G}, v{vM1} {qp}")
    stamp(5)
    cm("PV with the wo loads folded into the window")
    def pv(t):
        for u in range(2):
            c = "0" if t == 0 else f"v[{vACC+4*u}:{vACC+4*u+3}]"
            e(f"v_mfma_f32_16x16x16_bf16 v[{vACC+4*u}:{vACC+4*u+3}], v[{vV+4*t+2*u}:{vV+4*t+2*u+1}], v[{vX+2*t}:{vX+2*t+1}], {c}")
    for t in range(8):
        while ("V", t) in REST[nr:]:
            issue(*REST[nr]); q.append(f"{REST[nr][0]}{REST[nr][1]}"); nr += 1
        if f"V{t}" in q:
            wait_for_q(q, f"V{t}")
            q = q[q.index(f"V{t}")+1:]
        pv(t)
        while nr < len(REST) and len(q) < W:
            issue(*REST[nr]); q.append(f"{REST[nr][0]}{REST[nr][1]}"); nr += 1
        if t == 1:
            cm("row-sum of P (off the critical path)")
            quadrow_reduce(10, "v_add_f32", 11)
            e("s_mov_b64 exec, 0x1111")
            e(f"ds_write_b32 v13, v10 offset:{L_L}")
            e("s_mov_b64 exec, -1")
            cm("o partial LDS address: w*OPW + h*OPH + rg*128 + i*8")
            e(f"v_bfe_u32 v11, v0, 2, 2")
            e(f"v_mul_u32_u24 v{vOA}, {OPH}, v11")
            e(f"v_lshrrev_b32 v11, 4, v0")
            e(f"v_lshl_add_u32 v{vOA}, v11, 7, v{vOA}")
            e(f"v_and_b32 v11, 3, v0")
            e(f"v_lshl_add_u32 v{vOA}, v11, 3, v{vOA}")
            e(f"s_mul_i32 s{sT1}, s3, {OPW}")
            e(f"s_add_u32 s{sT1}, s{sT1}, {L_OP}")
            e(f"v_add_u32 v{vOA}, s{sT1}, v{vOA}")
        if t == 2:
            cm("publisher read address, store address, poll address")
            e(f"s_and_b32 s{sT2}, s3, 3")
            e(f"s_mul_i32 s{sT1}, s{sT2}, {OPH}")
            e(f"s_add_u32 s{sT1}, s{sT1}, {L_OP}")
            e(f"v_lshlrev_b32 v{vPA}, 3, v0")
            e(f"v_add_u32 v{vPA}, s{sT1}, v{vPA}")
            e(f"s_lshl_b32 s{sT1}, s{sCL}, 4")
            e(f"s_add_u32 s{sT1}, s{sT1}, s6")
            e(f"s_lshl_b32 s{sT1}, s{sT1}, 12")
            e(f"s_lshl_b32 s{sT2}, s{sT2}, 10")
            e(f"s_add_u32 s{sT1}, s{sT1}, s{sT2}")
            e(f"s_add_u32 s{sT1}, s{sT1}, {WS_O}")
            addr64(sA, sWS, sT1)
            e(f"s_lshl_b32 s{sT1}, s{sCL}, 16")
            e(f"s_lshl_b32 s{sT2}, s{sHI}, 9")
            e(f"s_add_u32 s{sT1}, s{sT1}, s{sT2}")
            e(f"s_lshl_b32 s{sT2}, s3, 6")
            e(f"s_add_u32 s{sT1}, s{sT1}, s{sT2}")
            e(f"s_add_u32 s{sT1}, s{sT1}, {WS_O}")
            addr64(sA2, sWS, sT1)
            e("v_lshrrev_b32 v11, 2, v0")
            e("v_lshlrev_b32 v11, 12, v11")
            e("v_and_b32 v12, 3, v0")
            e(f"v_lshl_add_u32 v{vOX}, v12, 4, v11")
    while nr < len(REST):
        issue(*REST[nr]); q.append(f"{REST[nr][0]}{REST[nr][1]}"); nr += 1
    stamp(6)
    e("s_nop 7")
    for r in range(4):
        e(f"ds_write2_b32 v{vOA}, v{vACC+r}, v{vACC+4+r} offset0:{r*8} offset1:{r*8+1}")
    e("s_waitcnt lgkmcnt(0)")
    e("s_barrier")
    e("s_cmp_lt_u32 s3, 4")
    e("s_cbranch_scc0 L_noopub")
    for wv in range(8):
        e(f"ds_read_b64 v[{vD+2*wv}:{vD+2*wv+1}], v{vPA} offset:{wv*OPW}")
    e(f"s_lshl_b32 s{sT1}, s3, 5")
    e(f"v_mov_b32 v14, s{sT1}")
    e(f"ds_read_b128 v[{vS}:{vS+3}], v14 offset:{L_L}")
    e(f"ds_read_b128 v[{vS+4}:{vS+7}], v14 offset:{L_L+16}")
    e(f"v_mov_b32 v15, s{sTAG}")
    e("s_waitcnt lgkmcnt(2)")
    regs = [vD + 2*i for i in range(8)]
    while len(regs) > 2:
        nxt = []
        for i in range(0, len(regs), 2):
            a, b2 = regs[i], regs[i+1]
            e(f"v_add_f32 v{a}, v{a}, v{b2}")
            e(f"v_add_f32 v{a+1}, v{a+1}, v{b2+1}")
            nxt.append(a)
        regs = nxt
    e(f"v_add_f32 v12, v{regs[0]}, v{regs[1]}")
    e(f"v_add_f32 v13, v{regs[0]+1}, v{regs[1]+1}")
    e("s_waitcnt lgkmcnt(0)")
    for i in range(0, 8, 2): e(f"v_add_f32 v{vS+i}, v{vS+i}, v{vS+i+1}")
    e(f"v_add_f32 v{vS}, v{vS}, v{vS+2}")
    e(f"v_add_f32 v{vS+4}, v{vS+4}, v{vS+6}")
    e(f"v_add_f32 v{vS}, v{vS}, v{vS+4}")
    e(f"v_cndmask_b32 v14, v{vMI}, v{vS}, s[{sODD}:{sODD+1}]")
    if o.colo:
        e(f"s_cmp_eq_u32 s{sCOLO}, 1")
        e("s_cbranch_scc1 L_oplain")
    e(f"global_store_dwordx4 v{vOV}, v[12:15], s[{sA}:{sA+1}] sc1")
    if o.colo:
        e("s_branch L_noopub")
        lab("L_oplain")
        e(f"global_store_dwordx4 v{vOV}, v[12:15], s[{sA}:{sA+1}]")
    lab("L_noopub")
    stamp(7)
    if o.b5: e("s_barrier")
    e(f"s_mov_b32 s{sCNT}, {o.spin}")
    lab("L_pollo")
    e(f"global_load_dwordx4 v[{vP}:{vP+3}], v{vOX}, s[{sA2}:{sA2+1}] sc1")
    e("s_waitcnt vmcnt(0)")
    e(f"v_cmp_eq_u32 vcc, s{sTAG}, v{vP+3}")
    e("s_cmp_eq_u64 vcc, exec")
    e("s_cbranch_scc1 L_goto")
    e(f"s_sub_u32 s{sCNT}, s{sCNT}, 1")
    e(f"s_cmp_lg_u32 s{sCNT}, 0")
    e("s_cbranch_scc1 L_pollo")
    lab("L_goto")
    stamp(9)
    stampcnt(12)
    dp = lambda pat: f"{pat} row_mask:0xf bank_mask:0xf"
    e(f"v_mov_b32_dpp v10, v{vP+2} {dp('quad_perm:[0,0,2,2]')}")
    e(f"v_mov_b32_dpp v11, v{vP+2} {dp('quad_perm:[1,1,3,3]')}")
    e("s_nop 0")
    e(f"v_max_f32_dpp v12, v10, v10 {dp('row_ror:4')}")
    e("s_nop 1")
    e(f"v_max_f32_dpp v12, v12, v12 {dp('row_ror:8')}")
    e("s_nop 0")
    e(f"v_mov_b32 v13, v12")
    e("s_nop 1")
    e(f"v_permlane16_swap_b32 v12, v13")
    e("s_nop 1")
    e(f"v_max_f32 v12, v12, v13")
    e(f"v_sub_f32 v12, v10, v12")
    e(f"v_exp_f32 v12, v12")
    e("s_nop 0")
    rr = [11, vP, vP+1]
    for r in rr: e(f"v_mul_f32 v{r}, v{r}, v12")
    e("s_nop 0")
    for pat in ("row_ror:4", "row_ror:8"):
        for r in rr: e(f"v_add_f32_dpp v{r}, v{r}, v{r} {dp(pat)}")
    for i, r in enumerate(rr): e(f"v_mov_b32 v{13+i}, v{r}")
    for i, r in enumerate(rr): e(f"v_permlane16_swap_b32 v{r}, v{13+i}")
    e("s_nop 0")
    for i, r in enumerate(rr): e(f"v_add_f32 v{r}, v{r}, v{13+i}")
    e("v_rcp_f32 v11, v11")
    e("s_nop 0")
    e(f"v_mul_f32 v{vP}, v{vP}, v11")
    e(f"v_mul_f32 v{vP+1}, v{vP+1}, v11")
    e(f"v_cvt_pk_bf16_f32 v10, v{vP}, v{vP+1}")
    e(f"ds_bpermute_b32 v10, v{vBP}, v10")
    e(f"s_lshl_b32 s{sT1}, s3, 11")
    e(f"v_lshlrev_b32 v12, 2, v0")
    e(f"v_add_u32 v12, s{sT1}, v12")
    e("s_waitcnt lgkmcnt(0)")
    bbuild(vBB, 10, sSEL_LO, 11)
    bbuild(vBB+4, 10, sSEL_HI, 13)
    vD0 = vQA
    e("s_nop 0")
    for rg in range(2):
        for hf in range(2):
            i = rg*2+hf
            c = "0" if rg == 0 else f"v[{vD0+4*hf}:{vD0+4*hf+3}]"
            e(f"v_mfma_f32_16x16x32_bf16 v[{vD0+4*hf}:{vD0+4*hf+3}], v[{vWO+4*i}:{vWO+4*i+3}], v[{vBB+4*rg}:{vBB+4*rg+3}], {c}")
    cm("F publish addresses (waves 0..3 use them)")
    e(f"s_lshl_b32 s{sT1}, s3, 9")
    e("v_lshlrev_b32 v10, 3, v0")
    e(f"v_add_u32 v10, s{sT1}, v10")
    e(f"s_lshl_b32 s{sT1}, s4, 19")
    e(f"s_lshl_b32 s{sT2}, s{sLO}, 18")
    e(f"s_add_u32 s{sT1}, s{sT1}, s{sT2}")
    e(f"s_lshl_b32 s{sT2}, s3, 16")
    e(f"s_add_u32 s{sT1}, s{sT1}, s{sT2}")
    e(f"s_lshl_b32 s{sT2}, s5, 9")
    e(f"s_add_u32 s{sT1}, s{sT1}, s{sT2}")
    e(f"s_lshl_b32 s{sT2}, s{sHI}, 6")
    e(f"s_add_u32 s{sT1}, s{sT1}, s{sT2}")
    e(f"s_add_u32 s{sT1}, s{sT1}, {WS_F}")
    addr64(sA, sWS, sT1)
    e("v_lshrrev_b32 v11, 2, v0")
    e("v_lshlrev_b32 v11, 12, v11")
    e("v_and_b32 v13, 3, v0")
    e("v_lshl_add_u32 v11, v13, 4, v11")
    for hf in range(2):
        e(f"ds_write2st64_b32 v12, v{vD0+4*hf}, v{vD0+4*hf+1} offset0:{L_FP//256+4*hf} offset1:{L_FP//256+4*hf+1}")
        e(f"ds_write2st64_b32 v12, v{vD0+4*hf+2}, v{vD0+4*hf+3} offset0:{L_FP//256+4*hf+2} offset1:{L_FP//256+4*hf+3}")
    e("s_waitcnt lgkmcnt(0)")
    e("s_barrier")
    e("s_cmp_lt_u32 s3, 4")
    e("s_cbranch_scc0 L_fin")
    for wv in range(8):
        e(f"ds_read_b64 v[{vD+2*wv}:{vD+2*wv+1}], v10 offset:{L_FP+wv*2048}")
    e(f"v_mov_b32 v13, s{sTAG}")
    e(f"v_mov_b32 v15, s{sTAG}")
    e("s_waitcnt lgkmcnt(0)")
    regs = [vD + 2*i for i in range(8)]
    while len(regs) > 2:
        nxt = []
        for i in range(0, len(regs), 2):
            a, b2 = regs[i], regs[i+1]
            e(f"v_add_f32 v{a}, v{a}, v{b2}")
            e(f"v_add_f32 v{a+1}, v{a+1}, v{b2+1}")
            nxt.append(a)
        regs = nxt
    e(f"v_add_f32 v12, v{regs[0]}, v{regs[1]}")
    e(f"v_add_f32 v14, v{regs[0]+1}, v{regs[1]+1}")
    e(f"global_store_dwordx4 v11, v[12:15], s[{sA}:{sA+1}] sc1")
    stamp(14)
    e("s_cmp_eq_u32 s3, 0")
    e("s_cbranch_scc0 L_fin")
    cm("final gather (wave 0)")
    e(f"s_lshl_b32 s{sT1}, s2, 12")
    e(f"s_add_u32 s{sT1}, s{sT1}, {WS_F}")
    addr64(sA, sWS, sT1)
    e(f"s_mov_b32 s{sCNT}, {o.spin}")
    if o.fack: e("s_waitcnt vmcnt(0)")
    lab("L_pollf")
    for qq in range(4):
        e(f"global_load_dwordx4 v[{16+4*qq}:{16+4*qq+3}], v{vOV}, s[{sA}:{sA+1}] offset:{qq*1024} sc1")
    e("s_waitcnt vmcnt(0)")
    regs = [17, 19, 21, 23, 25, 27, 29, 31]
    e(f"v_cmp_eq_u32 vcc, s{sTAG}, v{regs[0]}")
    for r in regs[1:]:
        e(f"v_cmp_eq_u32 s[{sC}:{sC+1}], s{sTAG}, v{r}")
        e(f"s_and_b64 vcc, vcc, s[{sC}:{sC+1}]")
    e("s_cmp_eq_u64 vcc, exec")
    e("s_cbranch_scc1 L_gotf")
    e(f"s_sub_u32 s{sCNT}, s{sCNT}, 1")
    e(f"s_cmp_lg_u32 s{sCNT}, 0")
    e("s_cbranch_scc1 L_pollf")
    lab("L_gotf")
    stamp(15)
    stampcnt(13)
    e("v_add_f32 v16, v16, v20")
    e("v_add_f32 v18, v18, v22")
    e("v_add_f32 v24, v24, v28")
    e("v_add_f32 v26, v26, v30")
    e("v_add_f32 v16, v16, v24")
    e("v_add_f32 v18, v18, v26")
    e("s_nop 1")
    for pat in ["row_ror:4", "row_ror:8"]:
        e(f"v_add_f32_dpp v16, v16, v16 {pat} row_mask:0xf bank_mask:0xf")
        e(f"v_add_f32_dpp v18, v18, v18 {pat} row_mask:0xf bank_mask:0xf")
        e("s_nop 1")
    for sw in ["v_permlane16_swap_b32", "v_permlane32_swap_b32"]:
        e("v_mov_b32 v20, v16")
        e("v_mov_b32 v22, v18")
        e("s_nop 1")
        e(f"{sw} v16, v20")
        e(f"{sw} v18, v22")
        e("s_nop 1")
        e("v_add_f32 v16, v16, v20")
        e("v_add_f32 v18, v18, v22")
    e("v_cvt_pk_bf16_f32 v16, v16, v18")
    e(f"s_and_b32 s{sT1}, s2, 1")
    e(f"s_lshl_b32 s{sT1}, s{sT1}, 11")
    e(f"s_lshl_b32 s{sT2}, s4, 10")
    e(f"s_add_u32 s{sT1}, s{sT1}, s{sT2}")
    e(f"s_bfe_u32 s{sT2}, s2, 0x20005")
    e(f"s_lshl_b32 s{sT2}, s{sT2}, 8")
    e(f"s_add_u32 s{sT1}, s{sT1}, s{sT2}")
    e(f"s_bfe_u32 s{sT2}, s2, 0x20001")
    e(f"s_lshl_b32 s{sT2}, s{sT2}, 6")
    e(f"s_add_u32 s{sT1}, s{sT1}, s{sT2}")
    e(f"s_bfe_u32 s{sT2}, s2, 0x20003")
    e(f"s_lshl_b32 s{sT2}, s{sT2}, 4")
    e(f"s_add_u32 s{sT1}, s{sT1}, s{sT2}")
    addr64(sA, sOUT, sT1)
    e("v_lshlrev_b32 v11, 2, v0")
    e("s_mov_b64 exec, 0xf")
    e(f"global_store_dword v11, v16, s[{sA}:{sA+1}]")
    e(f"s_and_b32 s{sT1}, s2, 127")
    e(f"s_cmp_eq_u32 s{sT1}, 0")
    e("s_cbranch_scc0 L_fin")
    e(f"s_lshl_b32 s{sT1}, s4, 8")
    e(f"v_mov_b32 v11, s{sT1}")
    e(f"v_mov_b32 v12, s{sTAG}")
    e("s_mov_b64 exec, 1")
    e(f"global_store_dword v11, v12, s[{sWS}:{sWS+1}]")
    lab("L_fin")
    if o.prof:
        stamp(10)
        e("s_waitcnt lgkmcnt(0)")
        e("s_mov_b64 exec, 1")
        e(f"s_lshl_b32 s{sT1}, s2, 3")
        e(f"s_add_u32 s{sT1}, s{sT1}, s3")
        e(f"s_lshl_b32 s{sT1}, s{sT1}, 7")
        e(f"s_add_u32 s{sT1}, s{sT1}, {WS_PROF}")
        e(f"v_mov_b32 v11, s{sT1}")
        for i in range(NST):
            e(f"v_mov_b32 v12, s{sST+2*i}")
            e(f"global_store_dword v11, v12, s[{sWS}:{sWS+1}] offset:{4*i}")
            e("s_nop 1")
    lab("L_end")
    e("s_endpgm")
    L.append('.section .rodata,"a"')
    L.append(".p2align 6")
    L.append(f".amdhsa_kernel {NAME}_kernel")
    L.append(f"  .amdhsa_next_free_vgpr {NV}")
    L.append("  .amdhsa_next_free_sgpr 100")
    L.append(f"  .amdhsa_accum_offset {NV}")
    L.append("  .amdhsa_group_segment_fixed_size 0")
    L.append("  .amdhsa_kernarg_size 104")
    L.append("  .amdhsa_user_sgpr_count 2")
    L.append("  .amdhsa_user_sgpr_kernarg_segment_ptr 1")
    L.append("  .amdhsa_system_sgpr_workgroup_id_x 1")
    L.append(".end_amdhsa_kernel")
    return "\n".join(L) + "\n"

if __name__ == "__main__":
    o = Opt()
    out = sys.argv[1]
    for a in sys.argv[2:]:
        k, v = a.split("=")
        assert hasattr(o, k), k
        setattr(o, k, int(v))
    open(out, "w").write(gen(o))
```

```python
import sys
NAME = "concat_heads__sliding_block_cached__sliding_block_cached__decode"

class Opt:
    prof = 0
    nt = 1
    spin = 200000
    w = 6
    pq = 1
    touch = 1
    colo = 1
    fack = 1
    b5 = 1
    jy = 0
    b1 = 0
    pub = 7
    st2 = 0
    kmap = 0
    wqnt = 1
    wqf = 0
    kf = 0
    vf = 0
    wof = 0
    dq = 1
    k0 = 0
    t2 = 1
    b0 = 1
    wqt = 0
    jx = 0

def gen(o):
    L = []
    def e(s): L.append("    " + s)
    def lab(s): L.append(s + ":")
    def cm(s): L.append("    ; " + s)
    NT = " nt" if o.nt else ""
    POL = [NT, ' sc1 nt', ' sc0 sc1 nt', ' sc0 sc1', ' sc1', ' sc0 nt', '']
    W = o.w
    WS_Q = 0x1000; WS_Q2 = 0x41000; WS_O = 0x100000; WS_F = 0x200000; WS_PROF = 0x800000
    L_QP = 0; L_FP = 0; L_OP = 16384; L_Q = 34816; L_M = 35840; L_L = 35968; L_FL = 36096; L_CT = 36160; LDS = 36864
    OPW = 2176; OPH = 544
    sX, sK, sV, sWQ, sWO = 8, 10, 12, 14, 16
    sOUT, sDBG, sWS = 28, 30, 32
    sEP = 34; sTAG = 35; sB, sS = 36, 37; sHI, sLO = 38, 39
    sT0, sT1, sT2, sT3 = 40, 41, 42, 43
    sA = 44; sA2 = 46; sM1, sM2, sM3 = 48, 50, 52; sC = 54; sCNT = 56
    sSEL_LO, sSEL_HI = 57, 58; sC1 = 59; sCL = 60; sXCC = 61; sCOLO = 62; sQA = 96; sODD = 98
    sST = 64
    NST = 16
    def stamp(i):
        if o.prof: e(f"s_memrealtime s[{sST+2*i}:{sST+2*i+1}]")
    def stampcnt(i):
        if o.prof: e(f"s_sub_u32 s{sST+2*i}, {o.spin}, s{sCNT}")
    vM = 1
    vOWQ = 5; vOX = 6; vOWO = 7; vOK = 8; vOV = 9
    vWQ = 16; vWO = 16; vK = 32; vV = 64; vXX = 96; vBB = 100; vQA = 108
    vP = 116; vQ = 120; vD = 124; vS = 156; vR = 164; vX = 124; vACC = 140
    vM0 = 166; vM1 = 167; vMI = 168; vBP = 169; vOA = 170; vPA = 171; vTCH = 172
    NV = 176
    def addr64(dst, base, off):
        e(f"s_add_u32 s{dst}, s{base}, s{off}")
        e(f"s_addc_u32 s{dst+1}, s{base+1}, 0")
    KSTEP = {0: 0, 1: 8192, 2: 65536}[o.kmap]
    def ldKV(t, reg, vo, sb, NT=NT):
        if o.kmap == 0:
            e(f"global_load_dwordx4 v[{reg+4*t}:{reg+4*t+3}], v{vo}, s[{sb}:{sb+1}] offset:{t*1024-4096}{NT}")
        else:
            e(f"global_load_dwordx4 v[{reg+4*t}:{reg+4*t+3}], v{vo}, s[{sb}:{sb+1}]{NT}")
            if t < 7:
                e(f"s_add_u32 s{sb}, s{sb}, {KSTEP}")
                e(f"s_addc_u32 s{sb+1}, s{sb+1}, 0")
    def ldK(t): ldKV(t, vK, vOK, sK, POL[o.kf])
    def ldV(t): ldKV(t, vV, vOV, sV, POL[o.vf])
    def ldWO(i): e(f"global_load_dwordx4 v[{vWO+4*i}:{vWO+4*i+3}], v{vOWO}, s[{sWO}:{sWO+1}] offset:{(i>>1)*4096-4096+(i&1)*256}{POL[o.wof]}")
    def pollq(): e(f"global_load_dwordx4 v[{vP}:{vP+3}], v{vOV}, s[{sQA}:{sQA+1}] sc1")
    def rowreduce(v, op, t1):
        for sw in ("v_permlane16_swap_b32", "v_permlane32_swap_b32"):
            e(f"v_mov_b32 v{t1}, v{v}")
            e("s_nop 1")
            e(f"{sw} v{v}, v{t1}")
            e("s_nop 1")
            e(f"{op} v{v}, v{v}, v{t1}")
    def quadrow_reduce(v, op, t1):
        e("s_nop 1")
        e(f"{op}_dpp v{v}, v{v}, v{v} quad_perm:[1,0,3,2] row_mask:0xf bank_mask:0xf")
        e("s_nop 1")
        e(f"{op}_dpp v{v}, v{v}, v{v} quad_perm:[2,3,0,1] row_mask:0xf bank_mask:0xf")
        e("s_nop 0")
        rowreduce(v, op, t1)

    L.append("; fused q-proj + sliding-window GQA decode attention + out-proj (two blocks)")
    L.append(f"; @launch grid=(256,1,1) block=(512,1,1) lds={LDS}")
    L.append('.amdgcn_target "amdgcn-amd-amdhsa--gfx950"')
    L.append(".text")
    L.append(f".globl {NAME}_kernel")
    L.append(".p2align 8")
    L.append(f".type {NAME}_kernel,@function")
    lab(f"{NAME}_kernel")
    e("s_cmp_ge_u32 s2, 0x100")
    e("s_cbranch_scc1 L_end")
    e("s_load_dwordx16 s[8:23], s[0:1], 0")
    e("s_load_dwordx8 s[24:31], s[0:1], 64")
    e("s_load_dwordx2 s[32:33], s[0:1], 96")
    stamp(0)
    e("v_lshrrev_b32 v5, 6, v0")
    e("v_and_b32 v0, 63, v0")
    e("s_lshr_b32 s4, s2, 7")
    e("v_readfirstlane_b32 s3, v5")
    e("s_and_b32 s5, s2, 7")
    e("s_bfe_u32 s6, s2, 0x40003")
    if o.jx: e(f"s_xor_b32 s6, s6, {o.jx}")
    e(f"s_lshr_b32 s{sB}, s6, 3")
    e(f"s_and_b32 s{sS}, s6, 7")
    if o.jy:
        e(f"s_xor_b32 s{sLO}, s6, {o.jy}")
        e(f"s_lshr_b32 s{sHI}, s{sLO}, 1")
        e(f"s_and_b32 s{sLO}, s{sLO}, 1")
    else:
        e(f"s_lshr_b32 s{sHI}, s6, 1")
        e(f"s_and_b32 s{sLO}, s6, 1")
    cm("lane offsets")
    e(f"v_lshrrev_b32 v10, 3, v0")
    e(f"v_and_b32 v11, 7, v0")
    e(f"v_lshlrev_b32 v{vOWQ}, 15, v10")
    e(f"v_lshl_add_u32 v{vOWQ}, v11, 4, v{vOWQ}")
    e(f"v_lshlrev_b32 v{vOX}, 3, v10")
    e(f"v_bfe_u32 v{vOK}, v0, 2, 2")
    e(f"v_lshlrev_b32 v{vOK}, 8, v{vOK}")
    e(f"v_lshrrev_b32 v10, 4, v0")
    e(f"v_lshl_add_u32 v{vOK}, v10, 6, v{vOK}")
    e(f"v_and_b32 v11, 3, v0")
    e(f"v_lshl_add_u32 v{vOK}, v11, 4, v{vOK}")
    e(f"v_lshlrev_b32 v{vOV}, 4, v0")
    cm("scalar offsets")
    e(f"s_lshl_b32 s{sT1}, s{sLO}, 8")
    e(f"s_lshl_b32 s{sT2}, s3, 5")
    e(f"s_add_u32 s{sT1}, s{sT1}, s{sT2}")
    e(f"s_lshl_b32 s{sT2}, s{sT1}, 13")
    e(f"s_lshl_b32 s{sT3}, s5, 10")
    e(f"s_add_u32 s{sT2}, s{sT2}, s{sT3}")
    e(f"s_lshl_b32 s{sT3}, s{sHI}, 7")
    e(f"s_add_u32 s{sT2}, s{sT2}, s{sT3}")
    e(f"s_lshl_b32 s{sT1}, s{sT1}, 1")
    e(f"s_lshl_b32 s{sT0}, s{sB}, 3")
    e(f"s_add_u32 s{sT0}, s{sT0}, s5")
    e(f"s_lshl_b32 s{sT0}, s{sT0}, 21")
    e(f"s_lshl_b32 s{sT3}, s{sS}, {13 if o.kmap == 2 else 16}")
    e(f"s_add_u32 s{sT0}, s{sT0}, s{sT3}")
    e(f"s_lshl_b32 s{sT3}, s3, {13 if o.kmap == 0 else 10}")
    e(f"s_add_u32 s{sT0}, s{sT0}, s{sT3}")
    e(f"s_add_u32 s{sT0}, s{sT0}, {6144*256 + (4096 if o.kmap == 0 else 0)}")
    e(f"s_lshl_b32 s{sCL}, s4, 3")
    e(f"s_add_u32 s{sCL}, s{sCL}, s5")
    e("s_cmp_eq_u32 s4, 0")
    e("s_waitcnt lgkmcnt(0)")
    if not o.st2: stamp(8)
    e(f"s_cselect_b64 s[{sWQ}:{sWQ+1}], s[14:15], s[24:25]")
    e(f"s_cselect_b64 s[{sX}:{sX+1}], s[8:9], s[18:19]")
    e(f"s_cselect_b64 s[{sK}:{sK+1}], s[10:11], s[20:21]")
    e(f"s_cselect_b64 s[{sV}:{sV+1}], s[12:13], s[22:23]")
    e(f"s_cselect_b64 s[{sWO}:{sWO+1}], s[16:17], s[26:27]")
    addr64(sX, sX, sT1)
    WQS = 8192
    if o.wqt == 1:
        e(f"s_lshl_b32 s{sT2}, s5, 4")
        e(f"s_add_u32 s{sT2}, s{sT2}, s6")
        e(f"s_lshl_b32 s{sT2}, s{sT2}, 15")
        e(f"s_lshl_b32 s{sT3}, s3, 12")
        e(f"s_add_u32 s{sT2}, s{sT2}, s{sT3}")
        e(f"v_lshlrev_b32 v{vOWQ}, 4, v0")
        WQS = 1024
    if o.wqt == 2:
        e(f"s_and_b32 s{sT2}, s6, 3")
        e(f"s_lshl_b32 s{sT2}, s{sT2}, 7")
        e(f"s_lshl_b32 s{sT3}, s3, 4")
        e(f"s_add_u32 s{sT2}, s{sT2}, s{sT3}")
        e(f"s_lshl_b32 s{sT2}, s{sT2}, 13")
        e(f"s_lshl_b32 s{sT3}, s5, 10")
        e(f"s_add_u32 s{sT2}, s{sT2}, s{sT3}")
        e(f"s_lshr_b32 s{sT3}, s6, 2")
        e(f"s_lshl_b32 s{sT3}, s{sT3}, 8")
        e(f"s_add_u32 s{sT2}, s{sT2}, s{sT3}")
        e(f"v_lshrrev_b32 v10, 4, v0")
        e(f"v_lshlrev_b32 v{vOWQ}, 15, v10")
        e(f"v_and_b32 v11, 15, v0")
        e(f"v_lshl_add_u32 v{vOWQ}, v11, 4, v{vOWQ}")
    if o.wqt == 3:
        e(f"v_lshrrev_b32 v10, 3, v0")
        e(f"v_and_b32 v11, 7, v0")
        e(f"v_lshlrev_b32 v{vOWQ}, 13, v10")
        e(f"v_lshl_add_u32 v{vOWQ}, v11, 4, v{vOWQ}")
        WQS = 65536
    addr64(sWQ, sWQ, sT2)
    e(f"global_load_dwordx2 v[{vXX}:{vXX+1}], v{vOX}, s[{sX}:{sX+1}]")
    e(f"global_load_dwordx2 v[{vXX+2}:{vXX+3}], v{vOX}, s[{sX}:{sX+1}] offset:1024")
    for t in range(4):
        e(f"global_load_dwordx4 v[{vWQ+4*t}:{vWQ+4*t+3}], v{vOWQ}, s[{sWQ}:{sWQ+1}]{[NT if o.wqnt else '', ' sc1 nt', ' sc0 sc1 nt', ' sc0 sc1', ' sc1', ' sc0 nt'][o.wqf]}")
        if t < 3:
            e(f"s_add_u32 s{sWQ}, s{sWQ}, {WQS}")
            e(f"s_addc_u32 s{sWQ+1}, s{sWQ+1}, 0")
    addr64(sK, sK, sT0)
    if not o.b1:
        e(f"v_mov_b32 v10, {L_CT}")
        e("v_mov_b32 v11, 0")
        e("ds_write_b32 v10, v11")
        e("s_waitcnt lgkmcnt(0)")
    if o.b0 or not o.b1: e("s_barrier")
    nk0 = (W - 4) if o.k0 < 0 else o.k0
    for t in range(nk0): ldK(t)
    if not o.st2: stamp(1)
    addr64(sV, sV, sT0)
    e(f"s_lshl_b32 s{sT3}, s4, 8")
    e(f"s_load_dword s{sEP}, s[{sWS}:{sWS+1}], s{sT3}")
    e(f"s_getreg_b32 s{sXCC}, hwreg(HW_REG_XCC_ID)")
    if o.t2:
        cm("waves 5/6: touch the V and wo pages this workgroup will stream later (translation warm-up)")
        e("s_cmp_eq_u32 s3, 4")
        e("s_cbranch_scc0 L_nt4")
        e("v_mov_b32 v10, 0")
        e(f"global_load_dword v{vTCH}, v10, s[{sK}:{sK+1}]")
        lab("L_nt4")
        e("s_cmp_eq_u32 s3, 5")
        e("s_cbranch_scc0 L_nt5")
        e("v_mov_b32 v10, 0")
        e(f"global_load_dword v{vTCH}, v10, s[{sV}:{sV+1}]")
        lab("L_nt5")
        e("s_cmp_eq_u32 s3, 6")
        e("s_cbranch_scc0 L_nt6")
        e(f"s_lshl_b32 s{sT1}, s5, 19")
        e(f"v_mov_b32 v10, s{sT1}")
        e(f"global_load_dword v{vTCH}, v10, s[{sWO}:{sWO+1}]")
        lab("L_nt6")
    if o.touch:
        cm("wave 7: touch the output page and the upper workspace page (translation warm-up); issued after the stream head")
        e("s_cmp_eq_u32 s3, 7")
        e("s_cbranch_scc0 L_notouch")
        e("v_mov_b32 v10, 0")
        e(f"v_mov_b32 v11, {WS_F + 0x80000}")
        e(f"global_load_dword v{vTCH}, v10, s[{sOUT}:{sOUT+1}]")
        e(f"global_load_dword v{vTCH+1}, v11, s[{sWS}:{sWS+1}]")
        lab("L_notouch")
    cm("masks")
    e("v_and_b32 v10, 1, v0")
    e("v_lshlrev_b32 v10, 4, v10")
    e("v_mov_b32 v11, 0xffff")
    e("v_lshlrev_b32 v11, v10, v11")
    e("v_bfe_u32 v10, v0, 1, 2")
    for r in range(4):
        e(f"v_cmp_eq_u32 vcc, {r}, v10")
        e("s_nop 1")
        e(f"v_cndmask_b32 v{vM+r}, 0, v11, vcc")
    e("v_and_b32 v10, 2, v0")
    e("v_cmp_eq_u32 vcc, 0, v10")
    e("s_nop 1")
    e(f"v_cndmask_b32 v{vM0}, 0, v11, vcc")
    e(f"v_xor_b32 v{vM1}, v{vM0}, v11")
    e("v_and_b32 v10, 3, v0")
    e(f"v_cmp_eq_u32 s[{sM1}:{sM1+1}], 1, v10")
    e(f"v_cmp_eq_u32 s[{sM2}:{sM2+1}], 2, v10")
    e(f"v_cmp_eq_u32 s[{sM3}:{sM3+1}], 3, v10")
    e(f"s_mov_b32 s{sSEL_LO}, 0x01000100")
    e(f"s_mov_b32 s{sSEL_HI}, 0x03020302")
    e(f"s_mov_b32 s{sC1}, 0x3e0293ee")
    e(f"s_mov_b32 s{sODD}, 0xaaaaaaaa")
    e(f"s_mov_b32 s{sODD+1}, 0xaaaaaaaa")
    cm("wo base / lane offset")
    e(f"s_lshl_b32 s{sT1}, s5, 19")
    e(f"s_lshl_b32 s{sT2}, s{sHI}, 16")
    e(f"s_add_u32 s{sT1}, s{sT1}, s{sT2}")
    e(f"s_lshl_b32 s{sT2}, s3, 13")
    e(f"s_add_u32 s{sT1}, s{sT1}, s{sT2}")
    e(f"s_lshl_b32 s{sT2}, s{sLO}, 9")
    e(f"s_add_u32 s{sT1}, s{sT1}, s{sT2}")
    e(f"s_add_u32 s{sT1}, s{sT1}, 4096")
    addr64(sWO, sWO, sT1)
    e(f"v_lshrrev_b32 v10, 4, v0")
    e(f"v_lshlrev_b32 v{vOWO}, 10, v10")
    e(f"v_and_b32 v11, 15, v0")
    e(f"v_lshl_add_u32 v{vOWO}, v11, 4, v{vOWO}")
    cm("bpermute source lane*4 = ((l>>4) + 32*((l>>3)&1))*4")
    e(f"v_bfe_u32 v11, v0, 3, 1")
    e(f"v_lshl_add_u32 v{vBP}, v11, 5, v10")
    e(f"v_lshlrev_b32 v{vBP}, 2, v{vBP}")
    cm("q poll address: Q + cl*16384 + b*8192 + w*1024")
    e(f"s_lshl_b32 s{sT1}, s{sCL}, 14")
    e(f"s_lshl_b32 s{sT2}, s{sB}, 13")
    e(f"s_add_u32 s{sT1}, s{sT1}, s{sT2}")
    e(f"s_lshl_b32 s{sT2}, s3, 10")
    e(f"s_add_u32 s{sT1}, s{sT1}, s{sT2}")
    e(f"s_add_u32 s{sT1}, s{sT1}, {WS_Q}")
    addr64(sQA, sWS, sT1)
    cm("q-proj")
    q = ["x0", "x1", "wq0", "wq1", "wq2", "wq3"] + [f"K{t}" for t in range(nk0)]
    def wait_for(name, extra=0):
        n = len(q) - 1 - q.index(name) + extra
        assert n <= 63
        e(f"s_waitcnt vmcnt({n})")
    def bbuild(dst, src, sel, tmp):
        e(f"v_perm_b32 v{tmp}, v{src}, v{src}, s{sel}")
        for r in range(4):
            e(f"v_and_b32 v{dst+r}, v{tmp}, v{vM+r}")
    tch = 2 if o.touch else 0
    nk = nk0
    for t in range(4):
        wait_for(f"wq{t}")
        outstanding = [x for x in q[q.index(f"wq{t}")+1:]]
        while nk < 8 and len(outstanding) < W:
            ldK(nk); q.append(f"K{nk}"); outstanding.append("k"); nk += 1
        sel = sSEL_HI if (t & 1) else sSEL_LO
        bbuild(vBB, vXX + (t >> 1), sel, 10)
        bbuild(vBB+4, vXX + 2 + (t >> 1), sel, 11)
        c0 = "0" if t == 0 else f"v[{vQA}:{vQA+3}]"
        c1 = "0" if t == 0 else f"v[{vQA+4}:{vQA+7}]"
        e(f"v_mfma_f32_16x16x32_bf16 v[{vQA}:{vQA+3}], v[{vWQ+4*t}:{vWQ+4*t+3}], v[{vBB}:{vBB+3}], {c0}")
        e("s_nop 0")
        e(f"v_mfma_f32_16x16x32_bf16 v[{vQA+4}:{vQA+7}], v[{vWQ+4*t}:{vWQ+4*t+3}], v[{vBB+4}:{vBB+7}], {c1}")
    e(f"s_lshl_b32 s{sT1}, s3, 11")
    e(f"v_lshlrev_b32 v10, 2, v0")
    e(f"v_add_u32 v10, s{sT1}, v10")
    e("s_nop 6")
    for b in range(2):
        e(f"ds_write2st64_b32 v10, v{vQA+4*b}, v{vQA+4*b+1} offset0:{L_QP//256+4*b} offset1:{L_QP//256+4*b+1}")
        e(f"ds_write2st64_b32 v10, v{vQA+4*b+2}, v{vQA+4*b+3} offset0:{L_QP//256+4*b+2} offset1:{L_QP//256+4*b+3}")
    e("s_waitcnt lgkmcnt(0)")
    stamp(2)
    e(f"s_add_u32 s{sTAG}, s{sEP}, 0x9e3779b9")
    if o.b1: e("s_barrier")
    else:
        e(f"v_mov_b32 v14, {L_CT}")
        e("v_mov_b32 v15, 1")
        e("s_mov_b64 exec, 1")
        e("ds_add_u32 v14, v15")
        e("s_mov_b64 exec, -1")
    def issue(kind, t):
        if kind == "K": ldK(t)
        elif kind == "V": ldV(t)
        elif kind == "wo": ldWO(t)
        else: pollq()
    REST = [("V", t) for t in range(8)] + [("wo", t) for t in range(4)]
    def stream_to_poll(q, nk, extra_names):
        seq = [("K", t) for t in range(nk, 8)] + REST[:o.pq] + [("PQ", "")]
        after = W - 2
        seq += REST[o.pq:o.pq + after]
        for kind, t in seq:
            big = [x for x in q if not x.startswith("st")]
            if len(big) >= W:
                wait_for_q(q, big[len(big) - W])
            issue(kind, t); q.append(f"{kind}{t}")
        return min(len(REST), o.pq + after)
    def wait_for_q(q, name):
        n = len(q) - 1 - q.index(name)
        e(f"s_waitcnt vmcnt({n})")
    e(f"s_cmp_eq_u32 s3, {0 if o.b1 else o.pub}")
    e("s_cbranch_scc0 L_noqpub")
    cm("one wave publishes the q partial sums")
    if not o.b1:
        lab("L_cw")
        e("ds_read_b32 v15, v14")
        e("s_waitcnt lgkmcnt(0)")
        e("v_readfirstlane_b32 s63, v15")
        e("s_cmp_lt_u32 s63, 8")
        e("s_cbranch_scc1 L_cw")
    e("v_lshrrev_b32 v10, 5, v0")
    e("v_lshlrev_b32 v10, 10, v10")
    e("v_bfe_u32 v11, v0, 2, 2")
    e("v_lshl_add_u32 v10, v11, 8, v10")
    e("v_bfe_u32 v11, v0, 4, 1")
    e("v_lshl_add_u32 v10, v11, 6, v10")
    e("v_and_b32 v11, 3, v0")
    e("v_lshl_add_u32 v10, v11, 3, v10")
    base = vD
    for kw in range(8):
        e(f"ds_read_b64 v[{base+4*kw}:{base+4*kw+1}], v10 offset:{L_QP+kw*2048}")
        e(f"ds_read_b64 v[{base+4*kw+2}:{base+4*kw+3}], v10 offset:{L_QP+kw*2048+160}")
    cm("store address: Q + cl*16384 + (l>>5)*8192 + HI*1024 + LO*512 + (l&31)*16")
    e(f"s_lshl_b32 s{sT1}, s{sCL}, 14")
    e(f"s_lshl_b32 s{sT2}, s{sHI}, 10")
    e(f"s_add_u32 s{sT1}, s{sT1}, s{sT2}")
    e(f"s_lshl_b32 s{sT2}, s{sLO}, 9")
    e(f"s_add_u32 s{sT1}, s{sT1}, s{sT2}")
    e(f"s_add_u32 s{sT1}, s{sT1}, {WS_Q}")
    addr64(sA, sWS, sT1)
    e("v_lshrrev_b32 v11, 5, v0")
    e("v_lshlrev_b32 v11, 13, v11")
    e("v_and_b32 v12, 31, v0")
    e("v_lshl_add_u32 v11, v12, 4, v11")
    e(f"v_mov_b32 v14, s{sXCC}")
    e(f"v_mov_b32 v15, s{sTAG}")
    e("s_waitcnt lgkmcnt(0)")
    n = 16
    regs = [base + 2*i for i in range(16)]
    while len(regs) > 2:
        nxt = []
        for i in range(0, len(regs), 2):
            a, b2 = regs[i], regs[i+1]
            e(f"v_add_f32 v{a}, v{a}, v{b2}")
            e(f"v_add_f32 v{a+1}, v{a+1}, v{b2+1}")
            nxt.append(a)
        regs = nxt
    e(f"v_add_f32 v12, v{regs[0]}, v{regs[1]}")
    e(f"v_add_f32 v13, v{regs[0]+1}, v{regs[1]+1}")
    if o.dq:
        e(f"global_store_dwordx4 v11, v[12:15], s[{sA}:{sA+1}]")
        e(f"s_add_u32 s{sA}, s{sA}, {WS_Q2 - WS_Q}")
        e(f"s_addc_u32 s{sA+1}, s{sA+1}, 0")
    e(f"global_store_dwordx4 v11, v[12:15], s[{sA}:{sA+1}] sc1")
    stamp(3)
    q0 = list(q) + ["st0"] + (["st1"] if o.dq else [])
    nv_issued = stream_to_poll(q0, nk, None)
    wait_for_q(q0, "PQ")
    e("s_branch L_qchk")
    lab("L_noqpub")
    stamp(3)
    q1 = list(q)
    nv2 = stream_to_poll(q1, nk, None)
    assert nv2 == nv_issued
    wait_for_q(q1, "PQ")
    lab("L_qchk")
    q = q1[q1.index("PQ")+1:]
    more = REST[nv_issued:nv_issued + 2]
    e(f"s_mov_b32 s{sCNT}, {o.spin}")
    e(f"v_cmp_eq_u32 vcc, s{sTAG}, v{vP+3}")
    e("s_cmp_eq_u64 vcc, exec")
    e("s_cbranch_scc1 L_qok")
    pollq()
    for kd, t in more: issue(kd, t)
    e(f"s_waitcnt vmcnt({len(more)})")
    if o.dq:
        e(f"v_cmp_eq_u32 vcc, s{sTAG}, v{vP+3}")
        e("s_cmp_eq_u64 vcc, exec")
        e("s_cbranch_scc1 L_qafter")
        pollq()
        e("s_waitcnt vmcnt(0)")
        e(f"s_add_u32 s{sQA}, s{sQA}, {WS_Q2 - WS_Q}")
        e(f"s_addc_u32 s{sQA+1}, s{sQA+1}, 0")
    lab("L_qre")
    e(f"v_cmp_eq_u32 vcc, s{sTAG}, v{vP+3}")
    e("s_cmp_eq_u64 vcc, exec")
    e("s_cbranch_scc1 L_qafter")
    e(f"s_sub_u32 s{sCNT}, s{sCNT}, 1")
    e(f"s_cmp_eq_u32 s{sCNT}, 0")
    e("s_cbranch_scc1 L_qafter")
    pollq()
    e("s_waitcnt vmcnt(0)")
    e("s_branch L_qre")
    lab("L_qok")
    for kd, t in more: issue(kd, t)
    lab("L_qafter")
    for kd, t in more: q.append(f"{kd}{t}")
    nr = nv_issued + len(more)
    stamp(4)
    stampcnt(11)
    cm("combine the two partial sums, round to bf16, share through LDS")
    e(f"v_cmp_eq_u32 vcc, s{sXCC}, v{vP+2}")
    e(f"v_mov_b32 v10, v{vP}")
    e(f"v_mov_b32 v11, v{vP+1}")
    e("s_cmp_eq_u64 vcc, exec")
    e(f"s_cselect_b32 s{sT2}, 1, 0")
    e(f"v_permlane32_swap_b32 v{vP}, v10")
    e(f"v_permlane32_swap_b32 v{vP+1}, v11")
    e(f"v_mov_b32 v13, s{sT2}")
    e(f"v_add_f32 v{vP}, v{vP}, v10")
    e(f"v_add_f32 v{vP+1}, v{vP+1}, v11")
    e(f"v_and_b32 v12, 31, v0")
    e(f"v_cvt_pk_bf16_f32 v11, v{vP}, v{vP+1}")
    e(f"s_lshl_b32 s{sT1}, s3, 7")
    e(f"v_lshlrev_b32 v12, 2, v12")
    e(f"v_add_u32 v12, s{sT1}, v12")
    e(f"ds_write_b32 v12, v11 offset:{L_Q}")
    e(f"s_lshl_b32 s{sT1}, s3, 2")
    e(f"v_mov_b32 v14, s{sT1}")
    e(f"ds_write_b32 v14, v13 offset:{L_FL}")
    e("s_waitcnt lgkmcnt(0)")
    e("s_barrier")
    if o.st2: stamp(1)
    e(f"v_add_u32 v10, {L_Q}, v{vOK}")
    e(f"ds_read_b128 v[{vQ}:{vQ+3}], v10")
    e(f"v_mov_b32 v10, 0")
    e(f"ds_read_b128 v[{vS}:{vS+3}], v10 offset:{L_FL}")
    e(f"ds_read_b128 v[{vS+4}:{vS+7}], v10 offset:{L_FL+16}")
    if nr < len(REST):
        if len(q) >= W: wait_for_q(q, q[len(q) - W])
        issue(*REST[nr]); q.append(f"{REST[nr][0]}{REST[nr][1]}"); nr += 1
    e("s_waitcnt lgkmcnt(0)")
    def dreg(G, a): return vD + G*16 + a*4
    for G in range(2):
        for a in range(4):
            t = 4*G + a; d = dreg(G, a)
            e(f"v_mfma_f32_16x16x32_bf16 v[{d}:{d+3}], v[{vK+4*t}:{vK+4*t+3}], v[{vQ}:{vQ+3}], 0")
    cm("colocation flag (all 16 workgroups of the cluster on this XCD)")
    for i in range(0, 8, 2): e(f"v_and_b32 v{vS+i}, v{vS+i}, v{vS+i+1}")
    e(f"v_and_b32 v{vS}, v{vS}, v{vS+2}")
    e(f"v_and_b32 v{vS+4}, v{vS+4}, v{vS+6}")
    e(f"v_and_b32 v{vS}, v{vS}, v{vS+4}")
    e("s_nop 1")
    e(f"v_readfirstlane_b32 s{sCOLO}, v{vS}")
    e("s_nop 4")
    for G in range(2):
        for step in range(4):
            for a in range(4):
                d = dreg(G, a) + step; sdst = vS + 4*G + a
                qp = f"quad_perm:[{step},{step},{step},{step}] row_mask:0xf bank_mask:0xf"
                if step == 0: e(f"v_mov_b32_dpp v{sdst}, v{d} {qp}")
                else: e(f"v_add_f32_dpp v{sdst}, v{d}, v{sdst} {qp}")
    for G in range(2):
        e(f"v_cndmask_b32 v{vR+G}, v{vS+4*G}, v{vS+4*G+1}, s[{sM1}:{sM1+1}]")
    for G in range(2):
        e(f"v_cndmask_b32 v{vR+G}, v{vR+G}, v{vS+4*G+2}, s[{sM2}:{sM2+1}]")
    for G in range(2):
        e(f"v_cndmask_b32 v{vR+G}, v{vR+G}, v{vS+4*G+3}, s[{sM3}:{sM3+1}]")
    e(f"v_max_f32 v10, v{vR}, v{vR+1}")
    quadrow_reduce(10, "v_max_f32", 11)
    cm("per-wave max -> LDS [h][w]")
    e("v_bfe_u32 v12, v0, 2, 2")
    e("v_lshlrev_b32 v12, 5, v12")
    e(f"s_lshl_b32 s{sT1}, s3, 2")
    e(f"v_add_u32 v13, s{sT1}, v12")
    e("s_mov_b64 exec, 0x1111")
    e(f"ds_write_b32 v13, v10 offset:{L_M}")
    e("s_mov_b64 exec, -1")
    e("s_waitcnt lgkmcnt(0)")
    if o.st2: stamp(8)
    e("s_barrier")
    e(f"ds_read_b128 v[{vS}:{vS+3}], v12 offset:{L_M}")
    e(f"ds_read_b128 v[{vS+4}:{vS+7}], v12 offset:{L_M+16}")
    e(f"s_and_b32 s{sT1}, s3, 3")
    e(f"s_lshl_b32 s{sT1}, s{sT1}, 5")
    e(f"v_mov_b32 v14, s{sT1}")
    e(f"ds_read_b128 v[{vD}:{vD+3}], v14 offset:{L_M}")
    e(f"ds_read_b128 v[{vD+4}:{vD+7}], v14 offset:{L_M+16}")
    e("s_waitcnt lgkmcnt(2)")
    e(f"v_max3_f32 v10, v{vS}, v{vS+1}, v{vS+2}")
    e(f"v_max3_f32 v11, v{vS+3}, v{vS+4}, v{vS+5}")
    e(f"v_max3_f32 v10, v10, v{vS+6}, v{vS+7}")
    e(f"v_max_f32 v10, v10, v11")
    e(f"v_mul_f32 v10, s{sC1}, v10")
    for G in range(2):
        e(f"v_fma_f32 v{vR+G}, v{vR+G}, s{sC1}, -v10")
    for G in range(2):
        e(f"v_exp_f32 v{vR+G}, v{vR+G}")
    e("s_waitcnt lgkmcnt(0)")
    e(f"v_max3_f32 v14, v{vD}, v{vD+1}, v{vD+2}")
    e(f"v_max3_f32 v15, v{vD+3}, v{vD+4}, v{vD+5}")
    e(f"v_max3_f32 v14, v14, v{vD+6}, v{vD+7}")
    e(f"v_max_f32 v14, v14, v15")
    e(f"v_mul_f32 v{vMI}, s{sC1}, v14")
    e(f"v_add_f32 v10, v{vR}, v{vR+1}")
    for G in range(2):
        e(f"v_cvt_pk_bf16_f32 v{vR+G}, v{vR+G}, v{vR+G}")
    e("s_nop 0")
    for t in range(8):
        G, a = t >> 2, t & 3
        qp = f"quad_perm:[{a},{a},{a},{a}] row_mask:0xf bank_mask:0xf"
        e(f"v_and_b32_dpp v{vX+2*t}, v{vR+G}, v{vM0} {qp}")
        e(f"v_and_b32_dpp v{vX+2*t+1}, v{vR+G}, v{vM1} {qp}")
    stamp(5)
    cm("PV with the wo loads folded into the window")
    def pv(t):
        for u in range(2):
            c = "0" if t == 0 else f"v[{vACC+4*u}:{vACC+4*u+3}]"
            e(f"v_mfma_f32_16x16x16_bf16 v[{vACC+4*u}:{vACC+4*u+3}], v[{vV+4*t+2*u}:{vV+4*t+2*u+1}], v[{vX+2*t}:{vX+2*t+1}], {c}")
    for t in range(8):
        while ("V", t) in REST[nr:]:
            issue(*REST[nr]); q.append(f"{REST[nr][0]}{REST[nr][1]}"); nr += 1
        if f"V{t}" in q:
            wait_for_q(q, f"V{t}")
            q = q[q.index(f"V{t}")+1:]
        pv(t)
        while nr < len(REST) and len(q) < W:
            issue(*REST[nr]); q.append(f"{REST[nr][0]}{REST[nr][1]}"); nr += 1
        if t == 1:
            cm("row-sum of P (off the critical path)")
            quadrow_reduce(10, "v_add_f32", 11)
            e("s_mov_b64 exec, 0x1111")
            e(f"ds_write_b32 v13, v10 offset:{L_L}")
            e("s_mov_b64 exec, -1")
            cm("o partial LDS address: w*OPW + h*OPH + rg*128 + i*8")
            e(f"v_bfe_u32 v11, v0, 2, 2")
            e(f"v_mul_u32_u24 v{vOA}, {OPH}, v11")
            e(f"v_lshrrev_b32 v11, 4, v0")
            e(f"v_lshl_add_u32 v{vOA}, v11, 7, v{vOA}")
            e(f"v_and_b32 v11, 3, v0")
            e(f"v_lshl_add_u32 v{vOA}, v11, 3, v{vOA}")
            e(f"s_mul_i32 s{sT1}, s3, {OPW}")
            e(f"s_add_u32 s{sT1}, s{sT1}, {L_OP}")
            e(f"v_add_u32 v{vOA}, s{sT1}, v{vOA}")
        if t == 2:
            cm("publisher read address, store address, poll address")
            e(f"s_and_b32 s{sT2}, s3, 3")
            e(f"s_mul_i32 s{sT1}, s{sT2}, {OPH}")
            e(f"s_add_u32 s{sT1}, s{sT1}, {L_OP}")
            e(f"v_lshlrev_b32 v{vPA}, 3, v0")
            e(f"v_add_u32 v{vPA}, s{sT1}, v{vPA}")
            e(f"s_lshl_b32 s{sT1}, s{sCL}, 4")
            e(f"s_add_u32 s{sT1}, s{sT1}, s6")
            e(f"s_lshl_b32 s{sT1}, s{sT1}, 12")
            e(f"s_lshl_b32 s{sT2}, s{sT2}, 10")
            e(f"s_add_u32 s{sT1}, s{sT1}, s{sT2}")
            e(f"s_add_u32 s{sT1}, s{sT1}, {WS_O}")
            addr64(sA, sWS, sT1)
            e(f"s_lshl_b32 s{sT1}, s{sCL}, 16")
            e(f"s_lshl_b32 s{sT2}, s{sHI}, 9")
            e(f"s_add_u32 s{sT1}, s{sT1}, s{sT2}")
            e(f"s_lshl_b32 s{sT2}, s3, 6")
            e(f"s_add_u32 s{sT1}, s{sT1}, s{sT2}")
            e(f"s_add_u32 s{sT1}, s{sT1}, {WS_O}")
            addr64(sA2, sWS, sT1)
            e("v_lshrrev_b32 v11, 2, v0")
            e("v_lshlrev_b32 v11, 12, v11")
            e("v_and_b32 v12, 3, v0")
            e(f"v_lshl_add_u32 v{vOX}, v12, 4, v11")
    while nr < len(REST):
        issue(*REST[nr]); q.append(f"{REST[nr][0]}{REST[nr][1]}"); nr += 1
    stamp(6)
    e("s_nop 7")
    for r in range(4):
        e(f"ds_write2_b32 v{vOA}, v{vACC+r}, v{vACC+4+r} offset0:{r*8} offset1:{r*8+1}")
    e("s_waitcnt lgkmcnt(0)")
    e("s_barrier")
    e("s_cmp_lt_u32 s3, 4")
    e("s_cbranch_scc0 L_noopub")
    for wv in range(8):
        e(f"ds_read_b64 v[{vD+2*wv}:{vD+2*wv+1}], v{vPA} offset:{wv*OPW}")
    e(f"s_lshl_b32 s{sT1}, s3, 5")
    e(f"v_mov_b32 v14, s{sT1}")
    e(f"ds_read_b128 v[{vS}:{vS+3}], v14 offset:{L_L}")
    e(f"ds_read_b128 v[{vS+4}:{vS+7}], v14 offset:{L_L+16}")
    e(f"v_mov_b32 v15, s{sTAG}")
    e("s_waitcnt lgkmcnt(2)")
    regs = [vD + 2*i for i in range(8)]
    while len(regs) > 2:
        nxt = []
        for i in range(0, len(regs), 2):
            a, b2 = regs[i], regs[i+1]
            e(f"v_add_f32 v{a}, v{a}, v{b2}")
            e(f"v_add_f32 v{a+1}, v{a+1}, v{b2+1}")
            nxt.append(a)
        regs = nxt
    e(f"v_add_f32 v12, v{regs[0]}, v{regs[1]}")
    e(f"v_add_f32 v13, v{regs[0]+1}, v{regs[1]+1}")
    e("s_waitcnt lgkmcnt(0)")
    for i in range(0, 8, 2): e(f"v_add_f32 v{vS+i}, v{vS+i}, v{vS+i+1}")
    e(f"v_add_f32 v{vS}, v{vS}, v{vS+2}")
    e(f"v_add_f32 v{vS+4}, v{vS+4}, v{vS+6}")
    e(f"v_add_f32 v{vS}, v{vS}, v{vS+4}")
    e(f"v_cndmask_b32 v14, v{vMI}, v{vS}, s[{sODD}:{sODD+1}]")
    if o.colo:
        e(f"s_cmp_eq_u32 s{sCOLO}, 1")
        e("s_cbranch_scc1 L_oplain")
    e(f"global_store_dwordx4 v{vOV}, v[12:15], s[{sA}:{sA+1}] sc1")
    if o.colo:
        e("s_branch L_noopub")
        lab("L_oplain")
        e(f"global_store_dwordx4 v{vOV}, v[12:15], s[{sA}:{sA+1}]")
    lab("L_noopub")
    stamp(7)
    if o.b5: e("s_barrier")
    e(f"s_mov_b32 s{sCNT}, {o.spin}")
    lab("L_pollo")
    e(f"global_load_dwordx4 v[{vP}:{vP+3}], v{vOX}, s[{sA2}:{sA2+1}] sc1")
    e("s_waitcnt vmcnt(0)")
    e(f"v_cmp_eq_u32 vcc, s{sTAG}, v{vP+3}")
    e("s_cmp_eq_u64 vcc, exec")
    e("s_cbranch_scc1 L_goto")
    e(f"s_sub_u32 s{sCNT}, s{sCNT}, 1")
    e(f"s_cmp_lg_u32 s{sCNT}, 0")
    e("s_cbranch_scc1 L_pollo")
    lab("L_goto")
    stamp(9)
    stampcnt(12)
    dp = lambda pat: f"{pat} row_mask:0xf bank_mask:0xf"
    e(f"v_mov_b32_dpp v10, v{vP+2} {dp('quad_perm:[0,0,2,2]')}")
    e(f"v_mov_b32_dpp v11, v{vP+2} {dp('quad_perm:[1,1,3,3]')}")
    e("s_nop 0")
    e(f"v_max_f32_dpp v12, v10, v10 {dp('row_ror:4')}")
    e("s_nop 1")
    e(f"v_max_f32_dpp v12, v12, v12 {dp('row_ror:8')}")
    e("s_nop 0")
    e(f"v_mov_b32 v13, v12")
    e("s_nop 1")
    e(f"v_permlane16_swap_b32 v12, v13")
    e("s_nop 1")
    e(f"v_max_f32 v12, v12, v13")
    e(f"v_sub_f32 v12, v10, v12")
    e(f"v_exp_f32 v12, v12")
    e("s_nop 0")
    rr = [11, vP, vP+1]
    for r in rr: e(f"v_mul_f32 v{r}, v{r}, v12")
    e("s_nop 0")
    for pat in ("row_ror:4", "row_ror:8"):
        for r in rr: e(f"v_add_f32_dpp v{r}, v{r}, v{r} {dp(pat)}")
    for i, r in enumerate(rr): e(f"v_mov_b32 v{13+i}, v{r}")
    for i, r in enumerate(rr): e(f"v_permlane16_swap_b32 v{r}, v{13+i}")
    e("s_nop 0")
    for i, r in enumerate(rr): e(f"v_add_f32 v{r}, v{r}, v{13+i}")
    e("v_rcp_f32 v11, v11")
    e("s_nop 0")
    e(f"v_mul_f32 v{vP}, v{vP}, v11")
    e(f"v_mul_f32 v{vP+1}, v{vP+1}, v11")
    e(f"v_cvt_pk_bf16_f32 v10, v{vP}, v{vP+1}")
    e(f"ds_bpermute_b32 v10, v{vBP}, v10")
    e(f"s_lshl_b32 s{sT1}, s3, 11")
    e(f"v_lshlrev_b32 v12, 2, v0")
    e(f"v_add_u32 v12, s{sT1}, v12")
    e("s_waitcnt lgkmcnt(0)")
    bbuild(vBB, 10, sSEL_LO, 11)
    bbuild(vBB+4, 10, sSEL_HI, 13)
    vD0 = vQA
    e("s_nop 0")
    for rg in range(2):
        for hf in range(2):
            i = rg*2+hf
            c = "0" if rg == 0 else f"v[{vD0+4*hf}:{vD0+4*hf+3}]"
            e(f"v_mfma_f32_16x16x32_bf16 v[{vD0+4*hf}:{vD0+4*hf+3}], v[{vWO+4*i}:{vWO+4*i+3}], v[{vBB+4*rg}:{vBB+4*rg+3}], {c}")
    cm("F publish addresses (waves 0..3 use them)")
    e(f"s_lshl_b32 s{sT1}, s3, 9")
    e("v_lshlrev_b32 v10, 3, v0")
    e(f"v_add_u32 v10, s{sT1}, v10")
    e(f"s_lshl_b32 s{sT1}, s4, 19")
    e(f"s_lshl_b32 s{sT2}, s{sLO}, 18")
    e(f"s_add_u32 s{sT1}, s{sT1}, s{sT2}")
    e(f"s_lshl_b32 s{sT2}, s3, 16")
    e(f"s_add_u32 s{sT1}, s{sT1}, s{sT2}")
    e(f"s_lshl_b32 s{sT2}, s5, 9")
    e(f"s_add_u32 s{sT1}, s{sT1}, s{sT2}")
    e(f"s_lshl_b32 s{sT2}, s{sHI}, 6")
    e(f"s_add_u32 s{sT1}, s{sT1}, s{sT2}")
    e(f"s_add_u32 s{sT1}, s{sT1}, {WS_F}")
    addr64(sA, sWS, sT1)
    e("v_lshrrev_b32 v11, 2, v0")
    e("v_lshlrev_b32 v11, 12, v11")
    e("v_and_b32 v13, 3, v0")
    e("v_lshl_add_u32 v11, v13, 4, v11")
    for hf in range(2):
        e(f"ds_write2st64_b32 v12, v{vD0+4*hf}, v{vD0+4*hf+1} offset0:{L_FP//256+4*hf} offset1:{L_FP//256+4*hf+1}")
        e(f"ds_write2st64_b32 v12, v{vD0+4*hf+2}, v{vD0+4*hf+3} offset0:{L_FP//256+4*hf+2} offset1:{L_FP//256+4*hf+3}")
    e("s_waitcnt lgkmcnt(0)")
    e("s_barrier")
    e("s_cmp_lt_u32 s3, 4")
    e("s_cbranch_scc0 L_fin")
    for wv in range(8):
        e(f"ds_read_b64 v[{vD+2*wv}:{vD+2*wv+1}], v10 offset:{L_FP+wv*2048}")
    e(f"v_mov_b32 v13, s{sTAG}")
    e(f"v_mov_b32 v15, s{sTAG}")
    e("s_waitcnt lgkmcnt(0)")
    regs = [vD + 2*i for i in range(8)]
    while len(regs) > 2:
        nxt = []
        for i in range(0, len(regs), 2):
            a, b2 = regs[i], regs[i+1]
            e(f"v_add_f32 v{a}, v{a}, v{b2}")
            e(f"v_add_f32 v{a+1}, v{a+1}, v{b2+1}")
            nxt.append(a)
        regs = nxt
    e(f"v_add_f32 v12, v{regs[0]}, v{regs[1]}")
    e(f"v_add_f32 v14, v{regs[0]+1}, v{regs[1]+1}")
    e(f"global_store_dwordx4 v11, v[12:15], s[{sA}:{sA+1}] sc1")
    stamp(14)
    e("s_cmp_eq_u32 s3, 0")
    e("s_cbranch_scc0 L_fin")
    cm("final gather (wave 0)")
    e(f"s_lshl_b32 s{sT1}, s2, 12")
    e(f"s_add_u32 s{sT1}, s{sT1}, {WS_F}")
    addr64(sA, sWS, sT1)
    e(f"s_mov_b32 s{sCNT}, {o.spin}")
    if o.fack: e("s_waitcnt vmcnt(0)")
    lab("L_pollf")
    for qq in range(4):
        e(f"global_load_dwordx4 v[{16+4*qq}:{16+4*qq+3}], v{vOV}, s[{sA}:{sA+1}] offset:{qq*1024} sc1")
    e("s_waitcnt vmcnt(0)")
    regs = [17, 19, 21, 23, 25, 27, 29, 31]
    e(f"v_cmp_eq_u32 vcc, s{sTAG}, v{regs[0]}")
    for r in regs[1:]:
        e(f"v_cmp_eq_u32 s[{sC}:{sC+1}], s{sTAG}, v{r}")
        e(f"s_and_b64 vcc, vcc, s[{sC}:{sC+1}]")
    e("s_cmp_eq_u64 vcc, exec")
    e("s_cbranch_scc1 L_gotf")
    e(f"s_sub_u32 s{sCNT}, s{sCNT}, 1")
    e(f"s_cmp_lg_u32 s{sCNT}, 0")
    e("s_cbranch_scc1 L_pollf")
    lab("L_gotf")
    stamp(15)
    stampcnt(13)
    e("v_add_f32 v16, v16, v20")
    e("v_add_f32 v18, v18, v22")
    e("v_add_f32 v24, v24, v28")
    e("v_add_f32 v26, v26, v30")
    e("v_add_f32 v16, v16, v24")
    e("v_add_f32 v18, v18, v26")
    e("s_nop 1")
    for pat in ["row_ror:4", "row_ror:8"]:
        e(f"v_add_f32_dpp v16, v16, v16 {pat} row_mask:0xf bank_mask:0xf")
        e(f"v_add_f32_dpp v18, v18, v18 {pat} row_mask:0xf bank_mask:0xf")
        e("s_nop 1")
    for sw in ["v_permlane16_swap_b32", "v_permlane32_swap_b32"]:
        e("v_mov_b32 v20, v16")
        e("v_mov_b32 v22, v18")
        e("s_nop 1")
        e(f"{sw} v16, v20")
        e(f"{sw} v18, v22")
        e("s_nop 1")
        e("v_add_f32 v16, v16, v20")
        e("v_add_f32 v18, v18, v22")
    e("v_cvt_pk_bf16_f32 v16, v16, v18")
    e(f"s_and_b32 s{sT1}, s2, 1")
    e(f"s_lshl_b32 s{sT1}, s{sT1}, 11")
    e(f"s_lshl_b32 s{sT2}, s4, 10")
    e(f"s_add_u32 s{sT1}, s{sT1}, s{sT2}")
    e(f"s_bfe_u32 s{sT2}, s2, 0x20005")
    e(f"s_lshl_b32 s{sT2}, s{sT2}, 8")
    e(f"s_add_u32 s{sT1}, s{sT1}, s{sT2}")
    e(f"s_bfe_u32 s{sT2}, s2, 0x20001")
    e(f"s_lshl_b32 s{sT2}, s{sT2}, 6")
    e(f"s_add_u32 s{sT1}, s{sT1}, s{sT2}")
    e(f"s_bfe_u32 s{sT2}, s2, 0x20003")
    e(f"s_lshl_b32 s{sT2}, s{sT2}, 4")
    e(f"s_add_u32 s{sT1}, s{sT1}, s{sT2}")
    addr64(sA, sOUT, sT1)
    e("v_lshlrev_b32 v11, 2, v0")
    e("s_mov_b64 exec, 0xf")
    e(f"global_store_dword v11, v16, s[{sA}:{sA+1}]")
    e(f"s_and_b32 s{sT1}, s2, 127")
    e(f"s_cmp_eq_u32 s{sT1}, 0")
    e("s_cbranch_scc0 L_fin")
    e(f"s_lshl_b32 s{sT1}, s4, 8")
    e(f"v_mov_b32 v11, s{sT1}")
    e(f"v_mov_b32 v12, s{sTAG}")
    e("s_mov_b64 exec, 1")
    e(f"global_store_dword v11, v12, s[{sWS}:{sWS+1}]")
    lab("L_fin")
    if o.prof:
        stamp(10)
        e("s_waitcnt lgkmcnt(0)")
        e("s_mov_b64 exec, 1")
        e(f"s_lshl_b32 s{sT1}, s2, 3")
        e(f"s_add_u32 s{sT1}, s{sT1}, s3")
        e(f"s_lshl_b32 s{sT1}, s{sT1}, 7")
        e(f"s_add_u32 s{sT1}, s{sT1}, {WS_PROF}")
        e(f"v_mov_b32 v11, s{sT1}")
        for i in range(NST):
            e(f"v_mov_b32 v12, s{sST+2*i}")
            e(f"global_store_dword v11, v12, s[{sWS}:{sWS+1}] offset:{4*i}")
            e("s_nop 1")
    lab("L_end")
    e("s_endpgm")
    L.append('.section .rodata,"a"')
    L.append(".p2align 6")
    L.append(f".amdhsa_kernel {NAME}_kernel")
    L.append(f"  .amdhsa_next_free_vgpr {NV}")
    L.append("  .amdhsa_next_free_sgpr 100")
    L.append(f"  .amdhsa_accum_offset {NV}")
    L.append("  .amdhsa_group_segment_fixed_size 0")
    L.append("  .amdhsa_kernarg_size 104")
    L.append("  .amdhsa_user_sgpr_count 2")
    L.append("  .amdhsa_user_sgpr_kernarg_segment_ptr 1")
    L.append("  .amdhsa_system_sgpr_workgroup_id_x 1")
    L.append(".end_amdhsa_kernel")
    return "\n".join(L) + "\n"

if __name__ == "__main__":
    o = Opt()
    out = sys.argv[1]
    for a in sys.argv[2:]:
        k, v = a.split("=")
        assert hasattr(o, k), k
        setattr(o, k, int(v))
    open(out, "w").write(gen(o))
```

```python
import sys
NAME = "concat_heads__sliding_block_cached__sliding_block_cached__decode"

class Opt:
    prof = 0
    nt = 1
    spin = 200000
    w = 6
    pq = 1
    touch = 1
    colo = 1
    fack = 1
    b5 = 1
    jy = 0
    b1 = 0
    pub = 7
    st2 = 0
    kmap = 0
    wqnt = 1
    nw = 0
    pd = -1
    wv = 0
    aft = -1
    kx = 0
    nb3 = 0
    pre = 0
    mk = 0
    mp = 0
    mps = 2
    prio = 0
    wqf = 0
    kf = 0
    vf = 0
    wof = 0
    dq = 1
    k0 = 0
    t2 = 1
    b0 = 1
    wqt = 0
    jx = 0

def gen(o):
    L = []
    def e(s): L.append("    " + s)
    def lab(s): L.append(s + ":")
    def cm(s): L.append("    ; " + s)
    NT = " nt" if o.nt else ""
    POL = [NT, ' sc1 nt', ' sc0 sc1 nt', ' sc0 sc1', ' sc1', ' sc0 nt', '']
    W = o.w
    WS_Q = 0x1000; WS_Q2 = 0x41000; WS_O = 0x100000; WS_F = 0x200000; WS_PROF = 0x800000
    L_QP = 0; L_FP = 0; L_OP = 16384; L_Q = 34816; L_M = 35840; L_L = 35968; L_FL = 36096; L_CT = 36160; LDS = 36864
    OPW = 2176; OPH = 544
    sX, sK, sV, sWQ, sWO = 8, 10, 12, 14, 16
    sOUT, sDBG, sWS = 28, 30, 32
    sEP = 34; sTAG = 35; sB, sS = 36, 37; sHI, sLO = 38, 39
    sT0, sT1, sT2, sT3 = 40, 41, 42, 43
    sA = 44; sA2 = 46; sM1, sM2, sM3 = 48, 50, 52; sC = 54; sCNT = 56
    sSEL_LO, sSEL_HI = 57, 58; sC1 = 59; sCL = 60; sXCC = 61; sCOLO = 62; sQA = 96; sODD = 98
    sST = 64
    NST = 16
    def stamp(i):
        if o.prof == 1 or (o.prof == 2 and i in (0, 10)): e(f"s_memrealtime s[{sST+2*i}:{sST+2*i+1}]")
    def stampcnt(i):
        if o.prof == 1: e(f"s_sub_u32 s{sST+2*i}, {o.spin}, s{sCNT}")
    vM = 1
    vOWQ = 5; vOX = 6; vOWO = 7; vOK = 8; vOV = 9
    vWQ = 16; vWO = 16; vK = 32; vV = 64; vXX = 96; vBB = 100; vQA = 108
    vP = 116; vQ = 120; vD = 124; vS = 156; vR = 164; vX = 124; vACC = 140
    vM0 = 166; vM1 = 167; vMI = 168; vBP = 169; vOA = 170; vPA = 171; vTCH = 172
    NV = 176
    vPX = [176, 180]
    if o.mp: NV = 184
    def addr64(dst, base, off):
        e(f"s_add_u32 s{dst}, s{base}, s{off}")
        e(f"s_addc_u32 s{dst+1}, s{base+1}, 0")
    KSTEP = {0: 0, 1: 8192, 2: 65536}[o.kmap]
    def ldKV(t, reg, vo, sb, NT=NT):
        if o.kmap == 0:
            e(f"global_load_dwordx4 v[{reg+4*t}:{reg+4*t+3}], v{vo}, s[{sb}:{sb+1}] offset:{t*1024-4096}{NT}")
        else:
            e(f"global_load_dwordx4 v[{reg+4*t}:{reg+4*t+3}], v{vo}, s[{sb}:{sb+1}]{NT}")
            if t < 7:
                e(f"s_add_u32 s{sb}, s{sb}, {KSTEP}")
                e(f"s_addc_u32 s{sb+1}, s{sb+1}, 0")
    def ldK(t): ldKV(t, vK, vOK, sK, POL[o.kf])
    def ldV(t): ldKV(t, vV, vOV, sV, POL[o.vf])
    def ldWO(i): e(f"global_load_dwordx4 v[{vWO+4*i}:{vWO+4*i+3}], v{vOWO}, s[{sWO}:{sWO+1}] offset:{(i>>1)*4096-4096+(i&1)*256}{POL[o.wof]}")
    def pollq(r=None):
        r = vP if r is None else r
        e(f"global_load_dwordx4 v[{r}:{r+3}], v{vOV}, s[{sQA}:{sQA+1}] sc1")
    def outaddr(dst):
        e(f"s_and_b32 s{sT1}, s2, 1")
        e(f"s_lshl_b32 s{sT1}, s{sT1}, 11")
        e(f"s_lshl_b32 s{sT2}, s4, 10")
        e(f"s_add_u32 s{sT1}, s{sT1}, s{sT2}")
        e(f"s_bfe_u32 s{sT2}, s2, 0x20005")
        e(f"s_lshl_b32 s{sT2}, s{sT2}, 8")
        e(f"s_add_u32 s{sT1}, s{sT1}, s{sT2}")
        e(f"s_bfe_u32 s{sT2}, s2, 0x20001")
        e(f"s_lshl_b32 s{sT2}, s{sT2}, 6")
        e(f"s_add_u32 s{sT1}, s{sT1}, s{sT2}")
        e(f"s_bfe_u32 s{sT2}, s2, 0x20003")
        e(f"s_lshl_b32 s{sT2}, s{sT2}, 4")
        e(f"s_add_u32 s{sT1}, s{sT1}, s{sT2}")
        addr64(dst, sOUT, sT1)
    def rowreduce(v, op, t1):
        for sw in ("v_permlane16_swap_b32", "v_permlane32_swap_b32"):
            e(f"v_mov_b32 v{t1}, v{v}")
            e("s_nop 1")
            e(f"{sw} v{v}, v{t1}")
            e("s_nop 1")
            e(f"{op} v{v}, v{v}, v{t1}")
    def quadrow_reduce(v, op, t1):
        e("s_nop 1")
        e(f"{op}_dpp v{v}, v{v}, v{v} quad_perm:[1,0,3,2] row_mask:0xf bank_mask:0xf")
        e("s_nop 1")
        e(f"{op}_dpp v{v}, v{v}, v{v} quad_perm:[2,3,0,1] row_mask:0xf bank_mask:0xf")
        e("s_nop 0")
        rowreduce(v, op, t1)

    L.append("; fused q-proj + sliding-window GQA decode attention + out-proj (two blocks)")
    L.append(f"; @launch grid=(256,1,1) block=(512,1,1) lds={LDS}")
    L.append('.amdgcn_target "amdgcn-amd-amdhsa--gfx950"')
    L.append(".text")
    L.append(f".globl {NAME}_kernel")
    L.append(".p2align 8")
    L.append(f".type {NAME}_kernel,@function")
    lab(f"{NAME}_kernel")
    e("s_cmp_ge_u32 s2, 0x100")
    e("s_cbranch_scc1 L_end")
    e("s_load_dwordx16 s[8:23], s[0:1], 0")
    e("s_load_dwordx8 s[24:31], s[0:1], 64")
    e("s_load_dwordx2 s[32:33], s[0:1], 96")
    stamp(0)
    e("v_lshrrev_b32 v5, 6, v0")
    e("v_and_b32 v0, 63, v0")
    e("s_lshr_b32 s4, s2, 7")
    e("v_readfirstlane_b32 s3, v5")
    e("s_and_b32 s5, s2, 7")
    e("s_bfe_u32 s6, s2, 0x40003")
    if o.jx: e(f"s_xor_b32 s6, s6, {o.jx}")
    e(f"s_lshr_b32 s{sB}, s6, 3")
    e(f"s_and_b32 s{sS}, s6, 7")
    if o.jy:
        e(f"s_xor_b32 s{sLO}, s6, {o.jy}")
        e(f"s_lshr_b32 s{sHI}, s{sLO}, 1")
        e(f"s_and_b32 s{sLO}, s{sLO}, 1")
    else:
        e(f"s_lshr_b32 s{sHI}, s6, 1")
        e(f"s_and_b32 s{sLO}, s6, 1")
    cm("lane offsets")
    e(f"v_lshrrev_b32 v10, 3, v0")
    e(f"v_and_b32 v11, 7, v0")
    e(f"v_lshlrev_b32 v{vOWQ}, 15, v10")
    e(f"v_lshl_add_u32 v{vOWQ}, v11, 4, v{vOWQ}")
    e(f"v_lshlrev_b32 v{vOX}, 3, v10")
    e(f"v_bfe_u32 v{vOK}, v0, 2, 2")
    e(f"v_lshlrev_b32 v{vOK}, 8, v{vOK}")
    e(f"v_lshrrev_b32 v10, 4, v0")
    e(f"v_lshl_add_u32 v{vOK}, v10, 6, v{vOK}")
    e(f"v_and_b32 v11, 3, v0")
    e(f"v_lshl_add_u32 v{vOK}, v11, 4, v{vOK}")
    e(f"v_lshlrev_b32 v{vOV}, 4, v0")
    cm("scalar offsets")
    e(f"s_lshl_b32 s{sT1}, s{sLO}, 8")
    e(f"s_lshl_b32 s{sT2}, s3, 5")
    e(f"s_add_u32 s{sT1}, s{sT1}, s{sT2}")
    e(f"s_lshl_b32 s{sT2}, s{sT1}, 13")
    e(f"s_lshl_b32 s{sT3}, s5, 10")
    e(f"s_add_u32 s{sT2}, s{sT2}, s{sT3}")
    e(f"s_lshl_b32 s{sT3}, s{sHI}, 7")
    e(f"s_add_u32 s{sT2}, s{sT2}, s{sT3}")
    e(f"s_lshl_b32 s{sT1}, s{sT1}, 1")
    e(f"s_lshl_b32 s{sT0}, s{sB}, 3")
    e(f"s_add_u32 s{sT0}, s{sT0}, s5")
    e(f"s_lshl_b32 s{sT0}, s{sT0}, 21")
    e(f"s_lshl_b32 s{sT3}, s{sS}, {13 if o.kmap == 2 else 16}")
    e(f"s_add_u32 s{sT0}, s{sT0}, s{sT3}")
    e(f"s_lshl_b32 s{sT3}, s3, {13 if o.kmap == 0 else 10}")
    e(f"s_add_u32 s{sT0}, s{sT0}, s{sT3}")
    e(f"s_add_u32 s{sT0}, s{sT0}, {6144*256 + (4096 if o.kmap == 0 else 0)}")
    e(f"s_lshl_b32 s{sCL}, s4, 3")
    e(f"s_add_u32 s{sCL}, s{sCL}, s5")
    e("s_cmp_eq_u32 s4, 0")
    e("s_waitcnt lgkmcnt(0)")
    if not o.st2: stamp(8)
    e(f"s_cselect_b64 s[{sWQ}:{sWQ+1}], s[14:15], s[24:25]")
    e(f"s_cselect_b64 s[{sX}:{sX+1}], s[8:9], s[18:19]")
    e(f"s_cselect_b64 s[{sK}:{sK+1}], s[10:11], s[20:21]")
    e(f"s_cselect_b64 s[{sV}:{sV+1}], s[12:13], s[22:23]")
    e(f"s_cselect_b64 s[{sWO}:{sWO+1}], s[16:17], s[26:27]")
    addr64(sX, sX, sT1)
    WQS = 8192
    if o.wqt == 1:
        e(f"s_lshl_b32 s{sT2}, s5, 4")
        e(f"s_add_u32 s{sT2}, s{sT2}, s6")
        e(f"s_lshl_b32 s{sT2}, s{sT2}, 15")
        e(f"s_lshl_b32 s{sT3}, s3, 12")
        e(f"s_add_u32 s{sT2}, s{sT2}, s{sT3}")
        e(f"v_lshlrev_b32 v{vOWQ}, 4, v0")
        WQS = 1024
    if o.wqt == 2:
        e(f"s_and_b32 s{sT2}, s6, 3")
        e(f"s_lshl_b32 s{sT2}, s{sT2}, 7")
        e(f"s_lshl_b32 s{sT3}, s3, 4")
        e(f"s_add_u32 s{sT2}, s{sT2}, s{sT3}")
        e(f"s_lshl_b32 s{sT2}, s{sT2}, 13")
        e(f"s_lshl_b32 s{sT3}, s5, 10")
        e(f"s_add_u32 s{sT2}, s{sT2}, s{sT3}")
        e(f"s_lshr_b32 s{sT3}, s6, 2")
        e(f"s_lshl_b32 s{sT3}, s{sT3}, 8")
        e(f"s_add_u32 s{sT2}, s{sT2}, s{sT3}")
        e(f"v_lshrrev_b32 v10, 4, v0")
        e(f"v_lshlrev_b32 v{vOWQ}, 15, v10")
        e(f"v_and_b32 v11, 15, v0")
        e(f"v_lshl_add_u32 v{vOWQ}, v11, 4, v{vOWQ}")
    if o.wqt == 3:
        e(f"v_lshrrev_b32 v10, 3, v0")
        e(f"v_and_b32 v11, 7, v0")
        e(f"v_lshlrev_b32 v{vOWQ}, 13, v10")
        e(f"v_lshl_add_u32 v{vOWQ}, v11, 4, v{vOWQ}")
        WQS = 65536
    addr64(sWQ, sWQ, sT2)
    e(f"global_load_dwordx2 v[{vXX}:{vXX+1}], v{vOX}, s[{sX}:{sX+1}]")
    e(f"global_load_dwordx2 v[{vXX+2}:{vXX+3}], v{vOX}, s[{sX}:{sX+1}] offset:1024")
    for t in range(4):
        e(f"global_load_dwordx4 v[{vWQ+4*t}:{vWQ+4*t+3}], v{vOWQ}, s[{sWQ}:{sWQ+1}]{[NT if o.wqnt else '', ' sc1 nt', ' sc0 sc1 nt', ' sc0 sc1', ' sc1', ' sc0 nt'][o.wqf]}")
        if t < 3:
            e(f"s_add_u32 s{sWQ}, s{sWQ}, {WQS}")
            e(f"s_addc_u32 s{sWQ+1}, s{sWQ+1}, 0")
    addr64(sK, sK, sT0)
    if not o.b1:
        e(f"v_mov_b32 v10, {L_CT}")
        e("v_mov_b32 v11, 0")
        e("ds_write_b32 v10, v11")
        e("s_waitcnt lgkmcnt(0)")
    if o.b0 or not o.b1: e("s_barrier")
    nk0 = (W - 4) if o.k0 < 0 else o.k0
    for t in range(nk0): ldK(t)
    if not o.st2: stamp(1)
    addr64(sV, sV, sT0)
    e(f"s_lshl_b32 s{sT3}, s4, 8")
    e(f"s_load_dword s{sEP}, s[{sWS}:{sWS+1}], s{sT3}")
    e(f"s_getreg_b32 s{sXCC}, hwreg(HW_REG_XCC_ID)")
    if o.t2:
        cm("waves 5/6: touch the V and wo pages this workgroup will stream later (translation warm-up)")
        e("s_cmp_eq_u32 s3, 4")
        e("s_cbranch_scc0 L_nt4")
        e("v_mov_b32 v10, 0")
        e(f"global_load_dword v{vTCH}, v10, s[{sK}:{sK+1}]")
        lab("L_nt4")
        e("s_cmp_eq_u32 s3, 5")
        e("s_cbranch_scc0 L_nt5")
        e("v_mov_b32 v10, 0")
        e(f"global_load_dword v{vTCH}, v10, s[{sV}:{sV+1}]")
        lab("L_nt5")
        e("s_cmp_eq_u32 s3, 6")
        e("s_cbranch_scc0 L_nt6")
        e(f"s_lshl_b32 s{sT1}, s5, 19")
        e(f"v_mov_b32 v10, s{sT1}")
        e(f"global_load_dword v{vTCH}, v10, s[{sWO}:{sWO+1}]")
        lab("L_nt6")
    if o.touch:
        cm("wave 7: touch the output page and the upper workspace page (translation warm-up); issued after the stream head")
        e("s_cmp_eq_u32 s3, 7")
        e("s_cbranch_scc0 L_notouch")
        e("v_mov_b32 v10, 0")
        e(f"v_mov_b32 v11, {WS_F + 0x80000}")
        e(f"global_load_dword v{vTCH}, v10, s[{sOUT}:{sOUT+1}]")
        e(f"global_load_dword v{vTCH+1}, v11, s[{sWS}:{sWS+1}]")
        lab("L_notouch")
    cm("masks")
    e("v_and_b32 v10, 1, v0")
    e("v_lshlrev_b32 v10, 4, v10")
    e("v_mov_b32 v11, 0xffff")
    e("v_lshlrev_b32 v11, v10, v11")
    e("v_bfe_u32 v10, v0, 1, 2")
    for r in range(4):
        e(f"v_cmp_eq_u32 vcc, {r}, v10")
        e("s_nop 1")
        e(f"v_cndmask_b32 v{vM+r}, 0, v11, vcc")
    e("v_and_b32 v10, 2, v0")
    e("v_cmp_eq_u32 vcc, 0, v10")
    e("s_nop 1")
    e(f"v_cndmask_b32 v{vM0}, 0, v11, vcc")
    e(f"v_xor_b32 v{vM1}, v{vM0}, v11")
    e("v_and_b32 v10, 3, v0")
    e(f"v_cmp_eq_u32 s[{sM1}:{sM1+1}], 1, v10")
    e(f"v_cmp_eq_u32 s[{sM2}:{sM2+1}], 2, v10")
    e(f"v_cmp_eq_u32 s[{sM3}:{sM3+1}], 3, v10")
    e(f"s_mov_b32 s{sSEL_LO}, 0x01000100")
    e(f"s_mov_b32 s{sSEL_HI}, 0x03020302")
    e(f"s_mov_b32 s{sC1}, 0x3e0293ee")
    e(f"s_mov_b32 s{sODD}, 0xaaaaaaaa")
    e(f"s_mov_b32 s{sODD+1}, 0xaaaaaaaa")
    cm("wo base / lane offset")
    e(f"s_lshl_b32 s{sT1}, s5, 19")
    e(f"s_lshl_b32 s{sT2}, s{sHI}, 16")
    e(f"s_add_u32 s{sT1}, s{sT1}, s{sT2}")
    e(f"s_lshl_b32 s{sT2}, s3, 13")
    e(f"s_add_u32 s{sT1}, s{sT1}, s{sT2}")
    e(f"s_lshl_b32 s{sT2}, s{sLO}, 9")
    e(f"s_add_u32 s{sT1}, s{sT1}, s{sT2}")
    e(f"s_add_u32 s{sT1}, s{sT1}, 4096")
    addr64(sWO, sWO, sT1)
    e(f"v_lshrrev_b32 v10, 4, v0")
    e(f"v_lshlrev_b32 v{vOWO}, 10, v10")
    e(f"v_and_b32 v11, 15, v0")
    e(f"v_lshl_add_u32 v{vOWO}, v11, 4, v{vOWO}")
    cm("bpermute source lane*4 = ((l>>4) + 32*((l>>3)&1))*4")
    e(f"v_bfe_u32 v11, v0, 3, 1")
    e(f"v_lshl_add_u32 v{vBP}, v11, 5, v10")
    e(f"v_lshlrev_b32 v{vBP}, 2, v{vBP}")
    cm("q poll address: Q + cl*16384 + b*8192 + w*1024")
    e(f"s_lshl_b32 s{sT1}, s{sCL}, 14")
    e(f"s_lshl_b32 s{sT2}, s{sB}, 13")
    e(f"s_add_u32 s{sT1}, s{sT1}, s{sT2}")
    e(f"s_lshl_b32 s{sT2}, s3, 10")
    e(f"s_add_u32 s{sT1}, s{sT1}, s{sT2}")
    e(f"s_add_u32 s{sT1}, s{sT1}, {WS_Q}")
    addr64(sQA, sWS, sT1)
    cm("q-proj")
    q = ["x0", "x1", "wq0", "wq1", "wq2", "wq3"] + [f"K{t}" for t in range(nk0)]
    def wait_for(name, extra=0):
        n = len(q) - 1 - q.index(name) + extra
        assert n <= 63
        e(f"s_waitcnt vmcnt({n})")
    def bbuild(dst, src, sel, tmp):
        e(f"v_perm_b32 v{tmp}, v{src}, v{src}, s{sel}")
        for r in range(4):
            e(f"v_and_b32 v{dst+r}, v{tmp}, v{vM+r}")
    if o.kx:
        assert nk0 == 0 and o.t2 and o.touch
        e("s_cmp_lt_u32 s3, 4")
        e("s_cbranch_scc1 L_kx4")
        e("s_cmp_eq_u32 s3, 7")
        e("s_cbranch_scc1 L_kx6")
        e("s_waitcnt vmcnt(5)")
        lab("L_kx6")
        e("s_waitcnt vmcnt(6)")
        e("s_branch L_kxgo")
        lab("L_kx4")
        e("s_waitcnt vmcnt(4)")
        lab("L_kxgo")
        for t in range(o.kx):
            ldK(t); q.append(f"K{t}")
        nk0 = o.kx
    tch = 2 if o.touch else 0
    nk = nk0
    for t in range(4):
        wait_for(f"wq{t}")
        outstanding = [x for x in q[q.index(f"wq{t}")+1:]]
        while nk < 8 and len(outstanding) < W:
            ldK(nk); q.append(f"K{nk}"); outstanding.append("k"); nk += 1
        sel = sSEL_HI if (t & 1) else sSEL_LO
        bbuild(vBB, vXX + (t >> 1), sel, 10)
        bbuild(vBB+4, vXX + 2 + (t >> 1), sel, 11)
        c0 = "0" if t == 0 else f"v[{vQA}:{vQA+3}]"
        c1 = "0" if t == 0 else f"v[{vQA+4}:{vQA+7}]"
        e(f"v_mfma_f32_16x16x32_bf16 v[{vQA}:{vQA+3}], v[{vWQ+4*t}:{vWQ+4*t+3}], v[{vBB}:{vBB+3}], {c0}")
        e("s_nop 0")
        e(f"v_mfma_f32_16x16x32_bf16 v[{vQA+4}:{vQA+7}], v[{vWQ+4*t}:{vWQ+4*t+3}], v[{vBB+4}:{vBB+7}], {c1}")
    e(f"s_lshl_b32 s{sT1}, s3, 11")
    e(f"v_lshlrev_b32 v10, 2, v0")
    e(f"v_add_u32 v10, s{sT1}, v10")
    e("s_nop 6")
    for b in range(2):
        e(f"ds_write2st64_b32 v10, v{vQA+4*b}, v{vQA+4*b+1} offset0:{L_QP//256+4*b} offset1:{L_QP//256+4*b+1}")
        e(f"ds_write2st64_b32 v10, v{vQA+4*b+2}, v{vQA+4*b+3} offset0:{L_QP//256+4*b+2} offset1:{L_QP//256+4*b+3}")
    e("s_waitcnt lgkmcnt(0)")
    stamp(2)
    e(f"s_add_u32 s{sTAG}, s{sEP}, 0x9e3779b9")
    if o.b1: e("s_barrier")
    else:
        e(f"v_mov_b32 v14, {L_CT}")
        e("v_mov_b32 v15, 1")
        e("s_mov_b64 exec, 1")
        e("ds_add_u32 v14, v15")
        e("s_mov_b64 exec, -1")
    def issue(kind, t):
        if kind == "K": ldK(t)
        elif kind == "V": ldV(t)
        elif kind == "wo": ldWO(t)
        elif kind == "PX": pollq(vPX[t])
        else: pollq()
    REST = [("V", t) for t in range(8)] + [("wo", t) for t in range(4)]
    def stream_to_poll(q, nk, extra_names):
        seq = [("K", t) for t in range(nk, 8)] + REST[:o.pq] + [("PQ", "")]
        after = W - 2 if o.aft < 0 else o.aft
        aft = REST[o.pq:o.pq + after]
        for i in range(o.mp - 1, -1, -1):
            aft.insert(min(len(aft), (i + 1) * o.mps), ("PX", i))
        seq += aft
        Wc = W
        for kind, t in seq:
            big = [x for x in q if not x.startswith("st") and not x.startswith("PX")]
            if kind == "PQ" and o.pd >= 0:
                wait_for_q(q, f"K{7 - o.pd}")
            elif len(big) >= Wc and kind != "PX":
                wait_for_q(q, big[len(big) - Wc])
            issue(kind, t); q.append(f"{kind}{t}")
            if kind == "PQ" and o.wv: Wc = o.wv
        return min(len(REST), o.pq + after)
    def wait_for_q(q, name):
        n = len(q) - 1 - q.index(name)
        e(f"s_waitcnt vmcnt({n})")
    e(f"s_cmp_eq_u32 s3, {0 if o.b1 else o.pub}")
    e("s_cbranch_scc0 L_noqpub")
    if o.prio: e("s_setprio 3")
    cm("one wave publishes the q partial sums")
    if not o.b1:
        lab("L_cw")
        e("ds_read_b32 v15, v14")
        e("s_waitcnt lgkmcnt(0)")
        e("v_readfirstlane_b32 s63, v15")
        e("s_cmp_lt_u32 s63, 8")
        e("s_cbranch_scc1 L_cw")
    e("v_lshrrev_b32 v10, 5, v0")
    e("v_lshlrev_b32 v10, 10, v10")
    e("v_bfe_u32 v11, v0, 2, 2")
    e("v_lshl_add_u32 v10, v11, 8, v10")
    e("v_bfe_u32 v11, v0, 4, 1")
    e("v_lshl_add_u32 v10, v11, 6, v10")
    e("v_and_b32 v11, 3, v0")
    e("v_lshl_add_u32 v10, v11, 3, v10")
    base = vD
    for kw in range(8):
        e(f"ds_read_b64 v[{base+4*kw}:{base+4*kw+1}], v10 offset:{L_QP+kw*2048}")
        e(f"ds_read_b64 v[{base+4*kw+2}:{base+4*kw+3}], v10 offset:{L_QP+kw*2048+160}")
    cm("store address: Q + cl*16384 + (l>>5)*8192 + HI*1024 + LO*512 + (l&31)*16")
    e(f"s_lshl_b32 s{sT1}, s{sCL}, 14")
    e(f"s_lshl_b32 s{sT2}, s{sHI}, 10")
    e(f"s_add_u32 s{sT1}, s{sT1}, s{sT2}")
    e(f"s_lshl_b32 s{sT2}, s{sLO}, 9")
    e(f"s_add_u32 s{sT1}, s{sT1}, s{sT2}")
    e(f"s_add_u32 s{sT1}, s{sT1}, {WS_Q}")
    addr64(sA, sWS, sT1)
    e("v_lshrrev_b32 v11, 5, v0")
    e("v_lshlrev_b32 v11, 13, v11")
    e("v_and_b32 v12, 31, v0")
    e("v_lshl_add_u32 v11, v12, 4, v11")
    e(f"v_mov_b32 v14, s{sXCC}")
    e(f"v_mov_b32 v15, s{sTAG}")
    e("s_waitcnt lgkmcnt(0)")
    n = 16
    regs = [base + 2*i for i in range(16)]
    while len(regs) > 2:
        nxt = []
        for i in range(0, len(regs), 2):
            a, b2 = regs[i], regs[i+1]
            e(f"v_add_f32 v{a}, v{a}, v{b2}")
            e(f"v_add_f32 v{a+1}, v{a+1}, v{b2+1}")
            nxt.append(a)
        regs = nxt
    e(f"v_add_f32 v12, v{regs[0]}, v{regs[1]}")
    e(f"v_add_f32 v13, v{regs[0]+1}, v{regs[1]+1}")
    if o.dq:
        e(f"global_store_dwordx4 v11, v[12:15], s[{sA}:{sA+1}]")
        e(f"s_add_u32 s{sA}, s{sA}, {WS_Q2 - WS_Q}")
        e(f"s_addc_u32 s{sA+1}, s{sA+1}, 0")
    e(f"global_store_dwordx4 v11, v[12:15], s[{sA}:{sA+1}] sc1")
    if o.prio: e("s_setprio 0")
    stamp(3)
    q0 = list(q) + ["st0"] + (["st1"] if o.dq else [])
    nv_issued = stream_to_poll(q0, nk, None)
    wait_for_q(q0, "PQ")
    e("s_branch L_qchk")
    lab("L_noqpub")
    stamp(3)
    q1 = list(q)
    nv2 = stream_to_poll(q1, nk, None)
    assert nv2 == nv_issued
    wait_for_q(q1, "PQ")
    lab("L_qchk")
    q = q1[q1.index("PQ")+1:]
    more = REST[nv_issued:nv_issued + 2]
    e(f"s_mov_b32 s{sCNT}, {o.spin}")
    e(f"v_cmp_eq_u32 vcc, s{sTAG}, v{vP+3}")
    e("s_cmp_eq_u64 vcc, exec")
    e("s_cbranch_scc1 L_qok")
    for i in range(o.mp):
        wait_for_q(q, f"PX{i}")
        e(f"v_cmp_eq_u32 vcc, s{sTAG}, v{vPX[i]+3}")
        e("s_cmp_eq_u64 vcc, exec")
        e(f"s_cbranch_scc1 L_qx{i}")
    pollq()
    for kd, t in more: issue(kd, t)
    e(f"s_waitcnt vmcnt({len(more)})")
    if o.dq:
        e(f"v_cmp_eq_u32 vcc, s{sTAG}, v{vP+3}")
        e("s_cmp_eq_u64 vcc, exec")
        e("s_cbranch_scc1 L_qafter")
        pollq()
        e("s_waitcnt vmcnt(0)")
        e(f"s_add_u32 s{sQA}, s{sQA}, {WS_Q2 - WS_Q}")
        e(f"s_addc_u32 s{sQA+1}, s{sQA+1}, 0")
    lab("L_qre")
    e(f"v_cmp_eq_u32 vcc, s{sTAG}, v{vP+3}")
    e("s_cmp_eq_u64 vcc, exec")
    e("s_cbranch_scc1 L_qafter")
    e(f"s_sub_u32 s{sCNT}, s{sCNT}, 1")
    e(f"s_cmp_eq_u32 s{sCNT}, 0")
    e("s_cbranch_scc1 L_qafter")
    pollq()
    e("s_waitcnt vmcnt(0)")
    e("s_branch L_qre")
    for i in range(o.mp):
        lab(f"L_qx{i}")
        for r in range(4): e(f"v_mov_b32 v{vP+r}, v{vPX[i]+r}")
        if i < o.mp - 1: e("s_branch L_qok")
    lab("L_qok")
    for kd, t in more: issue(kd, t)
    lab("L_qafter")
    for kd, t in more: q.append(f"{kd}{t}")
    nr = nv_issued + len(more)
    stamp(4)
    stampcnt(11)
    cm("combine the two partial sums, round to bf16, share through LDS")
    e(f"v_cmp_eq_u32 vcc, s{sXCC}, v{vP+2}")
    e(f"v_mov_b32 v10, v{vP}")
    e(f"v_mov_b32 v11, v{vP+1}")
    e("s_cmp_eq_u64 vcc, exec")
    e(f"s_cselect_b32 s{sT2}, 1, 0")
    e(f"v_permlane32_swap_b32 v{vP}, v10")
    e(f"v_permlane32_swap_b32 v{vP+1}, v11")
    e(f"v_mov_b32 v13, s{sT2}")
    e(f"v_add_f32 v{vP}, v{vP}, v10")
    e(f"v_add_f32 v{vP+1}, v{vP+1}, v11")
    e(f"v_and_b32 v12, 31, v0")
    e(f"v_cvt_pk_bf16_f32 v11, v{vP}, v{vP+1}")
    e(f"s_lshl_b32 s{sT1}, s3, 7")
    e(f"v_lshlrev_b32 v12, 2, v12")
    e(f"v_add_u32 v12, s{sT1}, v12")
    e(f"ds_write_b32 v12, v11 offset:{L_Q}")
    e(f"s_lshl_b32 s{sT1}, s3, 2")
    e(f"v_mov_b32 v14, s{sT1}")
    e(f"ds_write_b32 v14, v13 offset:{L_FL}")
    e("s_waitcnt lgkmcnt(0)")
    e("s_barrier")
    if o.st2: stamp(1)
    e(f"v_add_u32 v10, {L_Q}, v{vOK}")
    e(f"ds_read_b128 v[{vQ}:{vQ+3}], v10")
    e(f"v_mov_b32 v10, 0")
    e(f"ds_read_b128 v[{vS}:{vS+3}], v10 offset:{L_FL}")
    e(f"ds_read_b128 v[{vS+4}:{vS+7}], v10 offset:{L_FL+16}")
    if o.nw:
        for _ in range(o.nw):
            if nr < len(REST):
                issue(*REST[nr]); q.append(f"{REST[nr][0]}{REST[nr][1]}"); nr += 1
    elif nr < len(REST):
        if len(q) >= W: wait_for_q(q, q[len(q) - W])
        issue(*REST[nr]); q.append(f"{REST[nr][0]}{REST[nr][1]}"); nr += 1
    e("s_waitcnt lgkmcnt(0)")
    def dreg(G, a): return vD + G*16 + a*4
    for G in range(2):
        for a in range(4):
            t = 4*G + a; d = dreg(G, a)
            e(f"v_mfma_f32_16x16x32_bf16 v[{d}:{d+3}], v[{vK+4*t}:{vK+4*t+3}], v[{vQ}:{vQ+3}], 0")
    cm("colocation flag (all 16 workgroups of the cluster on this XCD)")
    for i in range(0, 8, 2): e(f"v_and_b32 v{vS+i}, v{vS+i}, v{vS+i+1}")
    e(f"v_and_b32 v{vS}, v{vS}, v{vS+2}")
    e(f"v_and_b32 v{vS+4}, v{vS+4}, v{vS+6}")
    e(f"v_and_b32 v{vS}, v{vS}, v{vS+4}")
    e("s_nop 1")
    e(f"v_readfirstlane_b32 s{sCOLO}, v{vS}")
    e("s_nop 4")
    for G in range(2):
        for step in range(4):
            for a in range(4):
                d = dreg(G, a) + step; sdst = vS + 4*G + a
                qp = f"quad_perm:[{step},{step},{step},{step}] row_mask:0xf bank_mask:0xf"
                if step == 0: e(f"v_mov_b32_dpp v{sdst}, v{d} {qp}")
                else: e(f"v_add_f32_dpp v{sdst}, v{d}, v{sdst} {qp}")
    for G in range(2):
        e(f"v_cndmask_b32 v{vR+G}, v{vS+4*G}, v{vS+4*G+1}, s[{sM1}:{sM1+1}]")
    for G in range(2):
        e(f"v_cndmask_b32 v{vR+G}, v{vR+G}, v{vS+4*G+2}, s[{sM2}:{sM2+1}]")
    for G in range(2):
        e(f"v_cndmask_b32 v{vR+G}, v{vR+G}, v{vS+4*G+3}, s[{sM3}:{sM3+1}]")
    e(f"v_max_f32 v10, v{vR}, v{vR+1}")
    quadrow_reduce(10, "v_max_f32", 11)
    cm("per-wave max -> LDS [h][w]")
    e("v_bfe_u32 v12, v0, 2, 2")
    e("v_lshlrev_b32 v12, 5, v12")
    e(f"s_lshl_b32 s{sT1}, s3, 2")
    e(f"v_add_u32 v13, s{sT1}, v12")
    e("s_mov_b64 exec, 0x1111")
    e(f"ds_write_b32 v13, v10 offset:{L_M}")
    e("s_mov_b64 exec, -1")
    for _ in range(o.nw):
        if nr < len(REST):
            issue(*REST[nr]); q.append(f"{REST[nr][0]}{REST[nr][1]}"); nr += 1
    if o.nb3:
        e(f"v_mul_f32 v14, s{sC1}, v10")
        for G in range(2):
            e(f"v_fma_f32 v{vR+G}, v{vR+G}, s{sC1}, -v14")
        for G in range(2):
            e(f"v_exp_f32 v{vR+G}, v{vR+G}")
        e("s_nop 0")
    else:
        e("s_waitcnt lgkmcnt(0)")
        if o.st2: stamp(8)
        e("s_barrier")
        e(f"ds_read_b128 v[{vS}:{vS+3}], v12 offset:{L_M}")
        e(f"ds_read_b128 v[{vS+4}:{vS+7}], v12 offset:{L_M+16}")
        e(f"s_and_b32 s{sT1}, s3, 3")
        e(f"s_lshl_b32 s{sT1}, s{sT1}, 5")
        e(f"v_mov_b32 v14, s{sT1}")
        e(f"ds_read_b128 v[{vD}:{vD+3}], v14 offset:{L_M}")
        e(f"ds_read_b128 v[{vD+4}:{vD+7}], v14 offset:{L_M+16}")
        e("s_waitcnt lgkmcnt(2)")
        e(f"v_max3_f32 v10, v{vS}, v{vS+1}, v{vS+2}")
        e(f"v_max3_f32 v11, v{vS+3}, v{vS+4}, v{vS+5}")
        e(f"v_max3_f32 v10, v10, v{vS+6}, v{vS+7}")
        e(f"v_max_f32 v10, v10, v11")
        e(f"v_mul_f32 v10, s{sC1}, v10")
        for G in range(2):
            e(f"v_fma_f32 v{vR+G}, v{vR+G}, s{sC1}, -v10")
        for G in range(2):
            e(f"v_exp_f32 v{vR+G}, v{vR+G}")
        e("s_waitcnt lgkmcnt(0)")
        e(f"v_max3_f32 v14, v{vD}, v{vD+1}, v{vD+2}")
        e(f"v_max3_f32 v15, v{vD+3}, v{vD+4}, v{vD+5}")
        e(f"v_max3_f32 v14, v14, v{vD+6}, v{vD+7}")
        e(f"v_max_f32 v14, v14, v15")
        e(f"v_mul_f32 v{vMI}, s{sC1}, v14")
    e(f"v_add_f32 v10, v{vR}, v{vR+1}")
    for G in range(2):
        e(f"v_cvt_pk_bf16_f32 v{vR+G}, v{vR+G}, v{vR+G}")
    e("s_nop 0")
    for t in range(8):
        G, a = t >> 2, t & 3
        qp = f"quad_perm:[{a},{a},{a},{a}] row_mask:0xf bank_mask:0xf"
        e(f"v_and_b32_dpp v{vX+2*t}, v{vR+G}, v{vM0} {qp}")
        e(f"v_and_b32_dpp v{vX+2*t+1}, v{vR+G}, v{vM1} {qp}")
    stamp(5)
    cm("PV with the wo loads folded into the window")
    def pv(t):
        for u in range(2):
            c = "0" if t == 0 else f"v[{vACC+4*u}:{vACC+4*u+3}]"
            e(f"v_mfma_f32_16x16x16_bf16 v[{vACC+4*u}:{vACC+4*u+3}], v[{vV+4*t+2*u}:{vV+4*t+2*u+1}], v[{vX+2*t}:{vX+2*t+1}], {c}")
    for t in range(8):
        while ("V", t) in REST[nr:]:
            issue(*REST[nr]); q.append(f"{REST[nr][0]}{REST[nr][1]}"); nr += 1
        if f"V{t}" in q:
            wait_for_q(q, f"V{t}")
            q = q[q.index(f"V{t}")+1:]
        pv(t)
        while nr < len(REST) and len(q) < (o.wv or W):
            issue(*REST[nr]); q.append(f"{REST[nr][0]}{REST[nr][1]}"); nr += 1
        if t == 1:
            cm("row-sum of P (off the critical path)")
            quadrow_reduce(10, "v_add_f32", 11)
            e("s_mov_b64 exec, 0x1111")
            e(f"ds_write_b32 v13, v10 offset:{L_L}")
            e("s_mov_b64 exec, -1")
            cm("o partial LDS address: w*OPW + h*OPH + rg*128 + i*8")
            e(f"v_bfe_u32 v11, v0, 2, 2")
            e(f"v_mul_u32_u24 v{vOA}, {OPH}, v11")
            e(f"v_lshrrev_b32 v11, 4, v0")
            e(f"v_lshl_add_u32 v{vOA}, v11, 7, v{vOA}")
            e(f"v_and_b32 v11, 3, v0")
            e(f"v_lshl_add_u32 v{vOA}, v11, 3, v{vOA}")
            e(f"s_mul_i32 s{sT1}, s3, {OPW}")
            e(f"s_add_u32 s{sT1}, s{sT1}, {L_OP}")
            e(f"v_add_u32 v{vOA}, s{sT1}, v{vOA}")
        if t == 3 and o.pre:
            cm("final gather and output addresses")
            e(f"s_lshl_b32 s{sT1}, s2, 12")
            e(f"s_add_u32 s{sT1}, s{sT1}, {WS_F}")
            addr64(sWQ, sWS, sT1)
            outaddr(sX)
        if t == 2:
            cm("publisher read address, store address, poll address")
            e(f"s_and_b32 s{sT2}, s3, 3")
            e(f"s_mul_i32 s{sT1}, s{sT2}, {OPH}")
            e(f"s_add_u32 s{sT1}, s{sT1}, {L_OP}")
            e(f"v_lshlrev_b32 v{vPA}, 3, v0")
            e(f"v_add_u32 v{vPA}, s{sT1}, v{vPA}")
            e(f"s_lshl_b32 s{sT1}, s{sCL}, 4")
            e(f"s_add_u32 s{sT1}, s{sT1}, s6")
            e(f"s_lshl_b32 s{sT1}, s{sT1}, 12")
            e(f"s_lshl_b32 s{sT2}, s{sT2}, 10")
            e(f"s_add_u32 s{sT1}, s{sT1}, s{sT2}")
            e(f"s_add_u32 s{sT1}, s{sT1}, {WS_O}")
            addr64(sA, sWS, sT1)
            e(f"s_lshl_b32 s{sT1}, s{sCL}, 16")
            e(f"s_lshl_b32 s{sT2}, s{sHI}, 9")
            e(f"s_add_u32 s{sT1}, s{sT1}, s{sT2}")
            e(f"s_lshl_b32 s{sT2}, s3, 6")
            e(f"s_add_u32 s{sT1}, s{sT1}, s{sT2}")
            e(f"s_add_u32 s{sT1}, s{sT1}, {WS_O}")
            addr64(sA2, sWS, sT1)
            e("v_lshrrev_b32 v11, 2, v0")
            e("v_lshlrev_b32 v11, 12, v11")
            e("v_and_b32 v12, 3, v0")
            e(f"v_lshl_add_u32 v{vOX}, v12, 4, v11")
    while nr < len(REST):
        issue(*REST[nr]); q.append(f"{REST[nr][0]}{REST[nr][1]}"); nr += 1
    stamp(6)
    e("s_nop 7")
    for r in range(4):
        e(f"ds_write2_b32 v{vOA}, v{vACC+r}, v{vACC+4+r} offset0:{r*8} offset1:{r*8+1}")
    e("s_waitcnt lgkmcnt(0)")
    e("s_barrier")
    e("s_cmp_lt_u32 s3, 4")
    e("s_cbranch_scc0 L_noopub")
    if o.nb3:
        vF = vD + 24
        e(f"s_lshl_b32 s{sT1}, s3, 5")
        e(f"v_mov_b32 v14, s{sT1}")
        e(f"ds_read_b128 v[{vF}:{vF+3}], v14 offset:{L_M}")
        e(f"ds_read_b128 v[{vF+4}:{vF+7}], v14 offset:{L_M+16}")
        e(f"ds_read_b128 v[{vS}:{vS+3}], v14 offset:{L_L}")
        e(f"ds_read_b128 v[{vS+4}:{vS+7}], v14 offset:{L_L+16}")
        for wv in range(8):
            e(f"ds_read_b64 v[{vD+2*wv}:{vD+2*wv+1}], v{vPA} offset:{wv*OPW}")
        e(f"v_mov_b32 v15, s{sTAG}")
        e("s_waitcnt lgkmcnt(10)")
        e(f"v_max3_f32 v10, v{vF}, v{vF+1}, v{vF+2}")
        e(f"v_max3_f32 v11, v{vF+3}, v{vF+4}, v{vF+5}")
        e(f"v_max3_f32 v10, v10, v{vF+6}, v{vF+7}")
        e(f"v_max_f32 v10, v10, v11")
        e(f"v_mul_f32 v{vMI}, s{sC1}, v10")
        for wv in range(8): e(f"v_fma_f32 v{vF+wv}, v{vF+wv}, s{sC1}, -v{vMI}")
        for wv in range(8): e(f"v_exp_f32 v{vF+wv}, v{vF+wv}")
        e("s_waitcnt lgkmcnt(8)")
        e(f"v_mul_f32 v{vS}, v{vS}, v{vF}")
        e(f"v_mul_f32 v{vS+1}, v{vS+1}, v{vF+1}")
        for wv in range(2, 8): e(f"v_fma_f32 v{vS+(wv&1)}, v{vS+wv}, v{vF+wv}, v{vS+(wv&1)}")
        e("s_waitcnt lgkmcnt(0)")
        e(f"v_mul_f32 v12, v{vD}, v{vF}")
        e(f"v_mul_f32 v13, v{vD+1}, v{vF}")
        e(f"v_mul_f32 v10, v{vD+2}, v{vF+1}")
        e(f"v_mul_f32 v11, v{vD+3}, v{vF+1}")
        for wv in range(2, 8):
            a, b2 = (12, 13) if wv % 2 == 0 else (10, 11)
            e(f"v_fma_f32 v{a}, v{vD+2*wv}, v{vF+wv}, v{a}")
            e(f"v_fma_f32 v{b2}, v{vD+2*wv+1}, v{vF+wv}, v{b2}")
        e(f"v_add_f32 v{vS}, v{vS}, v{vS+1}")
        e("v_add_f32 v12, v12, v10")
        e("v_add_f32 v13, v13, v11")
    else:
        for wv in range(8):
            e(f"ds_read_b64 v[{vD+2*wv}:{vD+2*wv+1}], v{vPA} offset:{wv*OPW}")
        e(f"s_lshl_b32 s{sT1}, s3, 5")
        e(f"v_mov_b32 v14, s{sT1}")
        e(f"ds_read_b128 v[{vS}:{vS+3}], v14 offset:{L_L}")
        e(f"ds_read_b128 v[{vS+4}:{vS+7}], v14 offset:{L_L+16}")
        e(f"v_mov_b32 v15, s{sTAG}")
        e("s_waitcnt lgkmcnt(2)")
        regs = [vD + 2*i for i in range(8)]
        while len(regs) > 2:
            nxt = []
            for i in range(0, len(regs), 2):
                a, b2 = regs[i], regs[i+1]
                e(f"v_add_f32 v{a}, v{a}, v{b2}")
                e(f"v_add_f32 v{a+1}, v{a+1}, v{b2+1}")
                nxt.append(a)
            regs = nxt
        e(f"v_add_f32 v12, v{regs[0]}, v{regs[1]}")
        e(f"v_add_f32 v13, v{regs[0]+1}, v{regs[1]+1}")
        e("s_waitcnt lgkmcnt(0)")
        for i in range(0, 8, 2): e(f"v_add_f32 v{vS+i}, v{vS+i}, v{vS+i+1}")
        e(f"v_add_f32 v{vS}, v{vS}, v{vS+2}")
        e(f"v_add_f32 v{vS+4}, v{vS+4}, v{vS+6}")
        e(f"v_add_f32 v{vS}, v{vS}, v{vS+4}")
    e(f"v_cndmask_b32 v14, v{vMI}, v{vS}, s[{sODD}:{sODD+1}]")
    if o.colo:
        e(f"s_cmp_eq_u32 s{sCOLO}, 1")
        e("s_cbranch_scc1 L_oplain")
    e(f"global_store_dwordx4 v{vOV}, v[12:15], s[{sA}:{sA+1}] sc1")
    if o.colo:
        e("s_branch L_noopub")
        lab("L_oplain")
        e(f"global_store_dwordx4 v{vOV}, v[12:15], s[{sA}:{sA+1}]")
    lab("L_noopub")
    stamp(7)
    if o.b5: e("s_barrier")
    e(f"s_mov_b32 s{sCNT}, {o.spin}")
    lab("L_pollo")
    e(f"global_load_dwordx4 v[{vP}:{vP+3}], v{vOX}, s[{sA2}:{sA2+1}] sc1")
    e("s_waitcnt vmcnt(0)")
    if o.mk >= 2:
        e("s_mov_b64 exec, -1")
        e(f"v_cmp_ne_u32 vcc, s{sTAG}, v{vP+3}")
        e("s_cmp_eq_u64 vcc, 0")
        e("s_cbranch_scc1 L_goto")
        e(f"s_sub_u32 s{sCNT}, s{sCNT}, 1")
        e(f"s_cmp_eq_u32 s{sCNT}, 0")
        e("s_cbranch_scc1 L_goto")
        e("s_mov_b64 exec, vcc")
        e("s_branch L_pollo")
    else:
        e(f"v_cmp_eq_u32 vcc, s{sTAG}, v{vP+3}")
        e("s_cmp_eq_u64 vcc, exec")
        e("s_cbranch_scc1 L_goto")
        e(f"s_sub_u32 s{sCNT}, s{sCNT}, 1")
        e(f"s_cmp_lg_u32 s{sCNT}, 0")
        e("s_cbranch_scc1 L_pollo")
    lab("L_goto")
    stamp(9)
    stampcnt(12)
    dp = lambda pat: f"{pat} row_mask:0xf bank_mask:0xf"
    e(f"v_mov_b32_dpp v10, v{vP+2} {dp('quad_perm:[0,0,2,2]')}")
    e(f"v_mov_b32_dpp v11, v{vP+2} {dp('quad_perm:[1,1,3,3]')}")
    e("s_nop 0")
    e(f"v_max_f32_dpp v12, v10, v10 {dp('row_ror:4')}")
    e("s_nop 1")
    e(f"v_max_f32_dpp v12, v12, v12 {dp('row_ror:8')}")
    e("s_nop 0")
    e(f"v_mov_b32 v13, v12")
    e("s_nop 1")
    e(f"v_permlane16_swap_b32 v12, v13")
    e("s_nop 1")
    e(f"v_max_f32 v12, v12, v13")
    e(f"v_sub_f32 v12, v10, v12")
    e(f"v_exp_f32 v12, v12")
    e("s_nop 0")
    rr = [11, vP, vP+1]
    for r in rr: e(f"v_mul_f32 v{r}, v{r}, v12")
    e("s_nop 0")
    for pat in ("row_ror:4", "row_ror:8"):
        for r in rr: e(f"v_add_f32_dpp v{r}, v{r}, v{r} {dp(pat)}")
    for i, r in enumerate(rr): e(f"v_mov_b32 v{13+i}, v{r}")
    for i, r in enumerate(rr): e(f"v_permlane16_swap_b32 v{r}, v{13+i}")
    e("s_nop 0")
    for i, r in enumerate(rr): e(f"v_add_f32 v{r}, v{r}, v{13+i}")
    e("v_rcp_f32 v11, v11")
    e("s_nop 0")
    e(f"v_mul_f32 v{vP}, v{vP}, v11")
    e(f"v_mul_f32 v{vP+1}, v{vP+1}, v11")
    e(f"v_cvt_pk_bf16_f32 v10, v{vP}, v{vP+1}")
    e(f"ds_bpermute_b32 v10, v{vBP}, v10")
    e(f"s_lshl_b32 s{sT1}, s3, 11")
    e(f"v_lshlrev_b32 v12, 2, v0")
    e(f"v_add_u32 v12, s{sT1}, v12")
    e("s_waitcnt lgkmcnt(0)")
    bbuild(vBB, 10, sSEL_LO, 11)
    bbuild(vBB+4, 10, sSEL_HI, 13)
    vD0 = vQA
    e("s_nop 0")
    for rg in range(2):
        for hf in range(2):
            i = rg*2+hf
            c = "0" if rg == 0 else f"v[{vD0+4*hf}:{vD0+4*hf+3}]"
            e(f"v_mfma_f32_16x16x32_bf16 v[{vD0+4*hf}:{vD0+4*hf+3}], v[{vWO+4*i}:{vWO+4*i+3}], v[{vBB+4*rg}:{vBB+4*rg+3}], {c}")
    cm("F publish addresses (waves 0..3 use them)")
    e(f"s_lshl_b32 s{sT1}, s3, 9")
    e("v_lshlrev_b32 v10, 3, v0")
    e(f"v_add_u32 v10, s{sT1}, v10")
    e(f"s_lshl_b32 s{sT1}, s4, 19")
    e(f"s_lshl_b32 s{sT2}, s{sLO}, 18")
    e(f"s_add_u32 s{sT1}, s{sT1}, s{sT2}")
    e(f"s_lshl_b32 s{sT2}, s3, 16")
    e(f"s_add_u32 s{sT1}, s{sT1}, s{sT2}")
    e(f"s_lshl_b32 s{sT2}, s5, 9")
    e(f"s_add_u32 s{sT1}, s{sT1}, s{sT2}")
    e(f"s_lshl_b32 s{sT2}, s{sHI}, 6")
    e(f"s_add_u32 s{sT1}, s{sT1}, s{sT2}")
    e(f"s_add_u32 s{sT1}, s{sT1}, {WS_F}")
    addr64(sA, sWS, sT1)
    e("v_lshrrev_b32 v11, 2, v0")
    e("v_lshlrev_b32 v11, 12, v11")
    e("v_and_b32 v13, 3, v0")
    e("v_lshl_add_u32 v11, v13, 4, v11")
    for hf in range(2):
        e(f"ds_write2st64_b32 v12, v{vD0+4*hf}, v{vD0+4*hf+1} offset0:{L_FP//256+4*hf} offset1:{L_FP//256+4*hf+1}")
        e(f"ds_write2st64_b32 v12, v{vD0+4*hf+2}, v{vD0+4*hf+3} offset0:{L_FP//256+4*hf+2} offset1:{L_FP//256+4*hf+3}")
    e("s_waitcnt lgkmcnt(0)")
    e("s_barrier")
    e("s_cmp_lt_u32 s3, 4")
    e("s_cbranch_scc0 L_fin")
    for wv in range(8):
        e(f"ds_read_b64 v[{vD+2*wv}:{vD+2*wv+1}], v10 offset:{L_FP+wv*2048}")
    e(f"v_mov_b32 v13, s{sTAG}")
    e(f"v_mov_b32 v15, s{sTAG}")
    e("s_waitcnt lgkmcnt(0)")
    regs = [vD + 2*i for i in range(8)]
    while len(regs) > 2:
        nxt = []
        for i in range(0, len(regs), 2):
            a, b2 = regs[i], regs[i+1]
            e(f"v_add_f32 v{a}, v{a}, v{b2}")
            e(f"v_add_f32 v{a+1}, v{a+1}, v{b2+1}")
            nxt.append(a)
        regs = nxt
    e(f"v_add_f32 v12, v{regs[0]}, v{regs[1]}")
    e(f"v_add_f32 v14, v{regs[0]+1}, v{regs[1]+1}")
    e(f"global_store_dwordx4 v11, v[12:15], s[{sA}:{sA+1}] sc1")
    stamp(14)
    e("s_cmp_eq_u32 s3, 0")
    e("s_cbranch_scc0 L_fin")
    cm("final gather (wave 0)")
    sFA = sWQ if o.pre else sA
    if not o.pre:
        e(f"s_lshl_b32 s{sT1}, s2, 12")
        e(f"s_add_u32 s{sT1}, s{sT1}, {WS_F}")
        addr64(sA, sWS, sT1)
    e(f"s_mov_b32 s{sCNT}, {o.spin}")
    if o.fack: e("s_waitcnt vmcnt(0)")
    if o.mk:
        assert o.pre
        MK = [40, 48, 50, 52]
        for m in MK: e(f"s_mov_b64 s[{m}:{m+1}], -1")
        lab("L_pollf")
        for qq in range(4):
            e(f"s_mov_b64 exec, s[{MK[qq]}:{MK[qq]+1}]")
            e(f"s_cbranch_execz L_fs{qq}")
            e(f"global_load_dwordx4 v[{16+4*qq}:{16+4*qq+3}], v{vOV}, s[{sFA}:{sFA+1}] offset:{qq*1024} sc1")
            lab(f"L_fs{qq}")
        e("s_mov_b64 exec, -1")
        e("s_waitcnt vmcnt(0)")
        for qq in range(4):
            e(f"v_cmp_ne_u32 vcc, s{sTAG}, v{17+4*qq}")
            e(f"v_cmp_ne_u32 s[{MK[qq]}:{MK[qq]+1}], s{sTAG}, v{19+4*qq}")
            e("s_nop 0")
            e(f"s_or_b64 s[{MK[qq]}:{MK[qq]+1}], s[{MK[qq]}:{MK[qq]+1}], vcc")
        e(f"s_or_b64 s[{sC}:{sC+1}], s[40:41], s[48:49]")
        e(f"s_or_b64 vcc, s[50:51], s[52:53]")
        e(f"s_or_b64 vcc, vcc, s[{sC}:{sC+1}]")
        e("s_cmp_eq_u64 vcc, 0")
        e("s_cbranch_scc1 L_gotf")
    else:
        lab("L_pollf")
        for qq in range(4):
            e(f"global_load_dwordx4 v[{16+4*qq}:{16+4*qq+3}], v{vOV}, s[{sFA}:{sFA+1}] offset:{qq*1024} sc1")
        e("s_waitcnt vmcnt(0)")
        regs = [17, 19, 21, 23, 25, 27, 29, 31]
        e(f"v_cmp_eq_u32 vcc, s{sTAG}, v{regs[0]}")
        for r in regs[1:]:
            e(f"v_cmp_eq_u32 s[{sC}:{sC+1}], s{sTAG}, v{r}")
            e(f"s_and_b64 vcc, vcc, s[{sC}:{sC+1}]")
        e("s_cmp_eq_u64 vcc, exec")
        e("s_cbranch_scc1 L_gotf")
    e(f"s_sub_u32 s{sCNT}, s{sCNT}, 1")
    e(f"s_cmp_lg_u32 s{sCNT}, 0")
    e("s_cbranch_scc1 L_pollf")
    lab("L_gotf")
    stamp(15)
    stampcnt(13)
    e("v_add_f32 v16, v16, v20")
    e("v_add_f32 v18, v18, v22")
    e("v_add_f32 v24, v24, v28")
    e("v_add_f32 v26, v26, v30")
    e("v_add_f32 v16, v16, v24")
    e("v_add_f32 v18, v18, v26")
    e("s_nop 1")
    for pat in ["row_ror:4", "row_ror:8"]:
        e(f"v_add_f32_dpp v16, v16, v16 {pat} row_mask:0xf bank_mask:0xf")
        e(f"v_add_f32_dpp v18, v18, v18 {pat} row_mask:0xf bank_mask:0xf")
        e("s_nop 1")
    for sw in ["v_permlane16_swap_b32", "v_permlane32_swap_b32"]:
        e("v_mov_b32 v20, v16")
        e("v_mov_b32 v22, v18")
        e("s_nop 1")
        e(f"{sw} v16, v20")
        e(f"{sw} v18, v22")
        e("s_nop 1")
        e("v_add_f32 v16, v16, v20")
        e("v_add_f32 v18, v18, v22")
    e("v_cvt_pk_bf16_f32 v16, v16, v18")
    if not o.pre: outaddr(sA)
    sOA = sX if o.pre else sA
    e("v_lshlrev_b32 v11, 2, v0")
    e("s_mov_b64 exec, 0xf")
    e(f"global_store_dword v11, v16, s[{sOA}:{sOA+1}]")
    e(f"s_and_b32 s{sT1}, s2, 127")
    e(f"s_cmp_eq_u32 s{sT1}, 0")
    e("s_cbranch_scc0 L_fin")
    e(f"s_lshl_b32 s{sT1}, s4, 8")
    e(f"v_mov_b32 v11, s{sT1}")
    e(f"v_mov_b32 v12, s{sTAG}")
    e("s_mov_b64 exec, 1")
    e(f"global_store_dword v11, v12, s[{sWS}:{sWS+1}]")
    lab("L_fin")
    if o.prof:
        stamp(10)
        e("s_waitcnt lgkmcnt(0)")
        e("s_mov_b64 exec, 1")
        e(f"s_lshl_b32 s{sT1}, s2, 3")
        e(f"s_add_u32 s{sT1}, s{sT1}, s3")
        e(f"s_lshl_b32 s{sT1}, s{sT1}, 7")
        e(f"s_add_u32 s{sT1}, s{sT1}, {WS_PROF}")
        e(f"v_mov_b32 v11, s{sT1}")
        for i in range(NST):
            e(f"v_mov_b32 v12, s{sST+2*i}")
            e(f"global_store_dword v11, v12, s[{sWS}:{sWS+1}] offset:{4*i}")
            e("s_nop 1")
    lab("L_end")
    e("s_endpgm")
    L.append('.section .rodata,"a"')
    L.append(".p2align 6")
    L.append(f".amdhsa_kernel {NAME}_kernel")
    L.append(f"  .amdhsa_next_free_vgpr {NV}")
    L.append("  .amdhsa_next_free_sgpr 100")
    L.append(f"  .amdhsa_accum_offset {NV}")
    L.append("  .amdhsa_group_segment_fixed_size 0")
    L.append("  .amdhsa_kernarg_size 104")
    L.append("  .amdhsa_user_sgpr_count 2")
    L.append("  .amdhsa_user_sgpr_kernarg_segment_ptr 1")
    L.append("  .amdhsa_system_sgpr_workgroup_id_x 1")
    L.append(".end_amdhsa_kernel")
    return "\n".join(L) + "\n"

if __name__ == "__main__":
    o = Opt()
    out = sys.argv[1]
    for a in sys.argv[2:]:
        k, v = a.split("=")
        assert hasattr(o, k), k
        setattr(o, k, int(v))
    open(out, "w").write(gen(o))
```

```python
import sys
NAME = "concat_heads__sliding_block_cached__sliding_block_cached__decode"

class Opt:
    prof = 0
    nt = 1
    spin = 200000
    w = 6
    pq = 1
    touch = 1
    colo = 1
    fack = 1
    b5 = 1
    jy = 0
    b1 = 0
    pub = 7
    st2 = 0
    kmap = 0
    wqnt = 1
    nw = 0
    pd = -1
    wv = 0
    aft = -1
    kx = 0
    nb3 = 0
    pre = 0
    mk = 0
    mp = 0
    mps = 2
    prio = 0
    wqf = 0
    kf = 0
    vf = 0
    wof = 0
    dq = 1
    k0 = 0
    t2 = 1
    b0 = 1
    wqt = 0
    jx = 0

def gen(o):
    L = []
    def e(s): L.append("    " + s)
    def lab(s): L.append(s + ":")
    def cm(s): L.append("    ; " + s)
    NT = " nt" if o.nt else ""
    POL = [NT, ' sc1 nt', ' sc0 sc1 nt', ' sc0 sc1', ' sc1', ' sc0 nt', '']
    W = o.w
    WS_Q = 0x1000; WS_Q2 = 0x41000; WS_O = 0x100000; WS_F = 0x200000; WS_PROF = 0x800000
    L_QP = 0; L_FP = 0; L_OP = 16384; L_Q = 34816; L_M = 35840; L_L = 35968; L_FL = 36096; L_CT = 36160; LDS = 36864
    OPW = 2176; OPH = 544
    sX, sK, sV, sWQ, sWO = 8, 10, 12, 14, 16
    sOUT, sDBG, sWS = 28, 30, 32
    sEP = 34; sTAG = 35; sB, sS = 36, 37; sHI, sLO = 38, 39
    sT0, sT1, sT2, sT3 = 40, 41, 42, 43
    sA = 44; sA2 = 46; sM1, sM2, sM3 = 48, 50, 52; sC = 54; sCNT = 56
    sSEL_LO, sSEL_HI = 57, 58; sC1 = 59; sCL = 60; sXCC = 61; sCOLO = 62; sQA = 96; sODD = 98
    sST = 64
    NST = 16
    def stamp(i):
        if o.prof == 1 or (o.prof == 2 and i in (0, 10)): e(f"s_memrealtime s[{sST+2*i}:{sST+2*i+1}]")
    def stampcnt(i):
        if o.prof == 1: e(f"s_sub_u32 s{sST+2*i}, {o.spin}, s{sCNT}")
    vM = 1
    vOWQ = 5; vOX = 6; vOWO = 7; vOK = 8; vOV = 9
    vWQ = 16; vWO = 16; vK = 32; vV = 64; vXX = 96; vBB = 100; vQA = 108
    vP = 116; vQ = 120; vD = 124; vS = 156; vR = 164; vX = 124; vACC = 140
    vM0 = 166; vM1 = 167; vMI = 168; vBP = 169; vOA = 170; vPA = 171; vTCH = 172
    NV = 176
    vPX = [176, 180]
    if o.mp: NV = 184
    def addr64(dst, base, off):
        e(f"s_add_u32 s{dst}, s{base}, s{off}")
        e(f"s_addc_u32 s{dst+1}, s{base+1}, 0")
    KSTEP = {0: 0, 1: 8192, 2: 65536}[o.kmap]
    def ldKV(t, reg, vo, sb, NT=NT):
        if o.kmap == 0:
            e(f"global_load_dwordx4 v[{reg+4*t}:{reg+4*t+3}], v{vo}, s[{sb}:{sb+1}] offset:{t*1024-4096}{NT}")
        else:
            e(f"global_load_dwordx4 v[{reg+4*t}:{reg+4*t+3}], v{vo}, s[{sb}:{sb+1}]{NT}")
            if t < 7:
                e(f"s_add_u32 s{sb}, s{sb}, {KSTEP}")
                e(f"s_addc_u32 s{sb+1}, s{sb+1}, 0")
    def ldK(t): ldKV(t, vK, vOK, sK, POL[o.kf])
    def ldV(t): ldKV(t, vV, vOV, sV, POL[o.vf])
    def ldWO(i): e(f"global_load_dwordx4 v[{vWO+4*i}:{vWO+4*i+3}], v{vOWO}, s[{sWO}:{sWO+1}] offset:{(i>>1)*4096-4096+(i&1)*256}{POL[o.wof]}")
    def pollq(r=None):
        r = vP if r is None else r
        e(f"global_load_dwordx4 v[{r}:{r+3}], v{vOV}, s[{sQA}:{sQA+1}] sc1")
    def outaddr(dst):
        e(f"s_and_b32 s{sT1}, s2, 1")
        e(f"s_lshl_b32 s{sT1}, s{sT1}, 11")
        e(f"s_lshl_b32 s{sT2}, s4, 10")
        e(f"s_add_u32 s{sT1}, s{sT1}, s{sT2}")
        e(f"s_bfe_u32 s{sT2}, s2, 0x20005")
        e(f"s_lshl_b32 s{sT2}, s{sT2}, 8")
        e(f"s_add_u32 s{sT1}, s{sT1}, s{sT2}")
        e(f"s_bfe_u32 s{sT2}, s2, 0x20001")
        e(f"s_lshl_b32 s{sT2}, s{sT2}, 6")
        e(f"s_add_u32 s{sT1}, s{sT1}, s{sT2}")
        e(f"s_bfe_u32 s{sT2}, s2, 0x20003")
        e(f"s_lshl_b32 s{sT2}, s{sT2}, 4")
        e(f"s_add_u32 s{sT1}, s{sT1}, s{sT2}")
        addr64(dst, sOUT, sT1)
    def pollqm():
        if o.mk >= 3: e("s_not_b64 exec, vcc")
        pollq()
        if o.mk >= 3: e("s_mov_b64 exec, -1")
    def rowreduce(v, op, t1):
        for sw in ("v_permlane16_swap_b32", "v_permlane32_swap_b32"):
            e(f"v_mov_b32 v{t1}, v{v}")
            e("s_nop 1")
            e(f"{sw} v{v}, v{t1}")
            e("s_nop 1")
            e(f"{op} v{v}, v{v}, v{t1}")
    def quadrow_reduce(v, op, t1):
        e("s_nop 1")
        e(f"{op}_dpp v{v}, v{v}, v{v} quad_perm:[1,0,3,2] row_mask:0xf bank_mask:0xf")
        e("s_nop 1")
        e(f"{op}_dpp v{v}, v{v}, v{v} quad_perm:[2,3,0,1] row_mask:0xf bank_mask:0xf")
        e("s_nop 0")
        rowreduce(v, op, t1)

    L.append("; fused q-proj + sliding-window GQA decode attention + out-proj (two blocks)")
    L.append(f"; @launch grid=(256,1,1) block=(512,1,1) lds={LDS}")
    L.append('.amdgcn_target "amdgcn-amd-amdhsa--gfx950"')
    L.append(".text")
    L.append(f".globl {NAME}_kernel")
    L.append(".p2align 8")
    L.append(f".type {NAME}_kernel,@function")
    lab(f"{NAME}_kernel")
    e("s_cmp_ge_u32 s2, 0x100")
    e("s_cbranch_scc1 L_end")
    e("s_load_dwordx16 s[8:23], s[0:1], 0")
    e("s_load_dwordx8 s[24:31], s[0:1], 64")
    e("s_load_dwordx2 s[32:33], s[0:1], 96")
    stamp(0)
    e("v_lshrrev_b32 v5, 6, v0")
    e("v_and_b32 v0, 63, v0")
    e("s_lshr_b32 s4, s2, 7")
    e("v_readfirstlane_b32 s3, v5")
    e("s_and_b32 s5, s2, 7")
    e("s_bfe_u32 s6, s2, 0x40003")
    if o.jx: e(f"s_xor_b32 s6, s6, {o.jx}")
    e(f"s_lshr_b32 s{sB}, s6, 3")
    e(f"s_and_b32 s{sS}, s6, 7")
    if o.jy:
        e(f"s_xor_b32 s{sLO}, s6, {o.jy}")
        e(f"s_lshr_b32 s{sHI}, s{sLO}, 1")
        e(f"s_and_b32 s{sLO}, s{sLO}, 1")
    else:
        e(f"s_lshr_b32 s{sHI}, s6, 1")
        e(f"s_and_b32 s{sLO}, s6, 1")
    cm("lane offsets")
    e(f"v_lshrrev_b32 v10, 3, v0")
    e(f"v_and_b32 v11, 7, v0")
    e(f"v_lshlrev_b32 v{vOWQ}, 15, v10")
    e(f"v_lshl_add_u32 v{vOWQ}, v11, 4, v{vOWQ}")
    e(f"v_lshlrev_b32 v{vOX}, 3, v10")
    e(f"v_bfe_u32 v{vOK}, v0, 2, 2")
    e(f"v_lshlrev_b32 v{vOK}, 8, v{vOK}")
    e(f"v_lshrrev_b32 v10, 4, v0")
    e(f"v_lshl_add_u32 v{vOK}, v10, 6, v{vOK}")
    e(f"v_and_b32 v11, 3, v0")
    e(f"v_lshl_add_u32 v{vOK}, v11, 4, v{vOK}")
    e(f"v_lshlrev_b32 v{vOV}, 4, v0")
    cm("scalar offsets")
    e(f"s_lshl_b32 s{sT1}, s{sLO}, 8")
    e(f"s_lshl_b32 s{sT2}, s3, 5")
    e(f"s_add_u32 s{sT1}, s{sT1}, s{sT2}")
    e(f"s_lshl_b32 s{sT2}, s{sT1}, 13")
    e(f"s_lshl_b32 s{sT3}, s5, 10")
    e(f"s_add_u32 s{sT2}, s{sT2}, s{sT3}")
    e(f"s_lshl_b32 s{sT3}, s{sHI}, 7")
    e(f"s_add_u32 s{sT2}, s{sT2}, s{sT3}")
    e(f"s_lshl_b32 s{sT1}, s{sT1}, 1")
    e(f"s_lshl_b32 s{sT0}, s{sB}, 3")
    e(f"s_add_u32 s{sT0}, s{sT0}, s5")
    e(f"s_lshl_b32 s{sT0}, s{sT0}, 21")
    e(f"s_lshl_b32 s{sT3}, s{sS}, {13 if o.kmap == 2 else 16}")
    e(f"s_add_u32 s{sT0}, s{sT0}, s{sT3}")
    e(f"s_lshl_b32 s{sT3}, s3, {13 if o.kmap == 0 else 10}")
    e(f"s_add_u32 s{sT0}, s{sT0}, s{sT3}")
    e(f"s_add_u32 s{sT0}, s{sT0}, {6144*256 + (4096 if o.kmap == 0 else 0)}")
    e(f"s_lshl_b32 s{sCL}, s4, 3")
    e(f"s_add_u32 s{sCL}, s{sCL}, s5")
    e("s_cmp_eq_u32 s4, 0")
    e("s_waitcnt lgkmcnt(0)")
    if not o.st2: stamp(8)
    e(f"s_cselect_b64 s[{sWQ}:{sWQ+1}], s[14:15], s[24:25]")
    e(f"s_cselect_b64 s[{sX}:{sX+1}], s[8:9], s[18:19]")
    e(f"s_cselect_b64 s[{sK}:{sK+1}], s[10:11], s[20:21]")
    e(f"s_cselect_b64 s[{sV}:{sV+1}], s[12:13], s[22:23]")
    e(f"s_cselect_b64 s[{sWO}:{sWO+1}], s[16:17], s[26:27]")
    addr64(sX, sX, sT1)
    WQS = 8192
    if o.wqt == 1:
        e(f"s_lshl_b32 s{sT2}, s5, 4")
        e(f"s_add_u32 s{sT2}, s{sT2}, s6")
        e(f"s_lshl_b32 s{sT2}, s{sT2}, 15")
        e(f"s_lshl_b32 s{sT3}, s3, 12")
        e(f"s_add_u32 s{sT2}, s{sT2}, s{sT3}")
        e(f"v_lshlrev_b32 v{vOWQ}, 4, v0")
        WQS = 1024
    if o.wqt == 2:
        e(f"s_and_b32 s{sT2}, s6, 3")
        e(f"s_lshl_b32 s{sT2}, s{sT2}, 7")
        e(f"s_lshl_b32 s{sT3}, s3, 4")
        e(f"s_add_u32 s{sT2}, s{sT2}, s{sT3}")
        e(f"s_lshl_b32 s{sT2}, s{sT2}, 13")
        e(f"s_lshl_b32 s{sT3}, s5, 10")
        e(f"s_add_u32 s{sT2}, s{sT2}, s{sT3}")
        e(f"s_lshr_b32 s{sT3}, s6, 2")
        e(f"s_lshl_b32 s{sT3}, s{sT3}, 8")
        e(f"s_add_u32 s{sT2}, s{sT2}, s{sT3}")
        e(f"v_lshrrev_b32 v10, 4, v0")
        e(f"v_lshlrev_b32 v{vOWQ}, 15, v10")
        e(f"v_and_b32 v11, 15, v0")
        e(f"v_lshl_add_u32 v{vOWQ}, v11, 4, v{vOWQ}")
    if o.wqt == 3:
        e(f"v_lshrrev_b32 v10, 3, v0")
        e(f"v_and_b32 v11, 7, v0")
        e(f"v_lshlrev_b32 v{vOWQ}, 13, v10")
        e(f"v_lshl_add_u32 v{vOWQ}, v11, 4, v{vOWQ}")
        WQS = 65536
    addr64(sWQ, sWQ, sT2)
    e(f"global_load_dwordx2 v[{vXX}:{vXX+1}], v{vOX}, s[{sX}:{sX+1}]")
    e(f"global_load_dwordx2 v[{vXX+2}:{vXX+3}], v{vOX}, s[{sX}:{sX+1}] offset:1024")
    for t in range(4):
        e(f"global_load_dwordx4 v[{vWQ+4*t}:{vWQ+4*t+3}], v{vOWQ}, s[{sWQ}:{sWQ+1}]{[NT if o.wqnt else '', ' sc1 nt', ' sc0 sc1 nt', ' sc0 sc1', ' sc1', ' sc0 nt'][o.wqf]}")
        if t < 3:
            e(f"s_add_u32 s{sWQ}, s{sWQ}, {WQS}")
            e(f"s_addc_u32 s{sWQ+1}, s{sWQ+1}, 0")
    addr64(sK, sK, sT0)
    if not o.b1:
        e(f"v_mov_b32 v10, {L_CT}")
        e("v_mov_b32 v11, 0")
        e("ds_write_b32 v10, v11")
        e("s_waitcnt lgkmcnt(0)")
    if o.b0 or not o.b1: e("s_barrier")
    nk0 = (W - 4) if o.k0 < 0 else o.k0
    for t in range(nk0): ldK(t)
    if not o.st2: stamp(1)
    addr64(sV, sV, sT0)
    e(f"s_lshl_b32 s{sT3}, s4, 8")
    e(f"s_load_dword s{sEP}, s[{sWS}:{sWS+1}], s{sT3}")
    e(f"s_getreg_b32 s{sXCC}, hwreg(HW_REG_XCC_ID)")
    if o.t2:
        cm("waves 5/6: touch the V and wo pages this workgroup will stream later (translation warm-up)")
        e("s_cmp_eq_u32 s3, 4")
        e("s_cbranch_scc0 L_nt4")
        e("v_mov_b32 v10, 0")
        e(f"global_load_dword v{vTCH}, v10, s[{sK}:{sK+1}]")
        lab("L_nt4")
        e("s_cmp_eq_u32 s3, 5")
        e("s_cbranch_scc0 L_nt5")
        e("v_mov_b32 v10, 0")
        e(f"global_load_dword v{vTCH}, v10, s[{sV}:{sV+1}]")
        lab("L_nt5")
        e("s_cmp_eq_u32 s3, 6")
        e("s_cbranch_scc0 L_nt6")
        e(f"s_lshl_b32 s{sT1}, s5, 19")
        e(f"v_mov_b32 v10, s{sT1}")
        e(f"global_load_dword v{vTCH}, v10, s[{sWO}:{sWO+1}]")
        lab("L_nt6")
    if o.touch:
        cm("wave 7: touch the output page and the upper workspace page (translation warm-up); issued after the stream head")
        e("s_cmp_eq_u32 s3, 7")
        e("s_cbranch_scc0 L_notouch")
        e("v_mov_b32 v10, 0")
        e(f"v_mov_b32 v11, {WS_F + 0x80000}")
        e(f"global_load_dword v{vTCH}, v10, s[{sOUT}:{sOUT+1}]")
        e(f"global_load_dword v{vTCH+1}, v11, s[{sWS}:{sWS+1}]")
        lab("L_notouch")
    cm("masks")
    e("v_and_b32 v10, 1, v0")
    e("v_lshlrev_b32 v10, 4, v10")
    e("v_mov_b32 v11, 0xffff")
    e("v_lshlrev_b32 v11, v10, v11")
    e("v_bfe_u32 v10, v0, 1, 2")
    for r in range(4):
        e(f"v_cmp_eq_u32 vcc, {r}, v10")
        e("s_nop 1")
        e(f"v_cndmask_b32 v{vM+r}, 0, v11, vcc")
    e("v_and_b32 v10, 2, v0")
    e("v_cmp_eq_u32 vcc, 0, v10")
    e("s_nop 1")
    e(f"v_cndmask_b32 v{vM0}, 0, v11, vcc")
    e(f"v_xor_b32 v{vM1}, v{vM0}, v11")
    e("v_and_b32 v10, 3, v0")
    e(f"v_cmp_eq_u32 s[{sM1}:{sM1+1}], 1, v10")
    e(f"v_cmp_eq_u32 s[{sM2}:{sM2+1}], 2, v10")
    e(f"v_cmp_eq_u32 s[{sM3}:{sM3+1}], 3, v10")
    e(f"s_mov_b32 s{sSEL_LO}, 0x01000100")
    e(f"s_mov_b32 s{sSEL_HI}, 0x03020302")
    e(f"s_mov_b32 s{sC1}, 0x3e0293ee")
    e(f"s_mov_b32 s{sODD}, 0xaaaaaaaa")
    e(f"s_mov_b32 s{sODD+1}, 0xaaaaaaaa")
    cm("wo base / lane offset")
    e(f"s_lshl_b32 s{sT1}, s5, 19")
    e(f"s_lshl_b32 s{sT2}, s{sHI}, 16")
    e(f"s_add_u32 s{sT1}, s{sT1}, s{sT2}")
    e(f"s_lshl_b32 s{sT2}, s3, 13")
    e(f"s_add_u32 s{sT1}, s{sT1}, s{sT2}")
    e(f"s_lshl_b32 s{sT2}, s{sLO}, 9")
    e(f"s_add_u32 s{sT1}, s{sT1}, s{sT2}")
    e(f"s_add_u32 s{sT1}, s{sT1}, 4096")
    addr64(sWO, sWO, sT1)
    e(f"v_lshrrev_b32 v10, 4, v0")
    e(f"v_lshlrev_b32 v{vOWO}, 10, v10")
    e(f"v_and_b32 v11, 15, v0")
    e(f"v_lshl_add_u32 v{vOWO}, v11, 4, v{vOWO}")
    cm("bpermute source lane*4 = ((l>>4) + 32*((l>>3)&1))*4")
    e(f"v_bfe_u32 v11, v0, 3, 1")
    e(f"v_lshl_add_u32 v{vBP}, v11, 5, v10")
    e(f"v_lshlrev_b32 v{vBP}, 2, v{vBP}")
    cm("q poll address: Q + cl*16384 + b*8192 + w*1024")
    e(f"s_lshl_b32 s{sT1}, s{sCL}, 14")
    e(f"s_lshl_b32 s{sT2}, s{sB}, 13")
    e(f"s_add_u32 s{sT1}, s{sT1}, s{sT2}")
    e(f"s_lshl_b32 s{sT2}, s3, 10")
    e(f"s_add_u32 s{sT1}, s{sT1}, s{sT2}")
    e(f"s_add_u32 s{sT1}, s{sT1}, {WS_Q}")
    addr64(sQA, sWS, sT1)
    cm("q-proj")
    q = ["x0", "x1", "wq0", "wq1", "wq2", "wq3"] + [f"K{t}" for t in range(nk0)]
    def wait_for(name, extra=0):
        n = len(q) - 1 - q.index(name) + extra
        assert n <= 63
        e(f"s_waitcnt vmcnt({n})")
    def bbuild(dst, src, sel, tmp):
        e(f"v_perm_b32 v{tmp}, v{src}, v{src}, s{sel}")
        for r in range(4):
            e(f"v_and_b32 v{dst+r}, v{tmp}, v{vM+r}")
    if o.kx:
        assert nk0 == 0 and o.t2 and o.touch
        e("s_cmp_lt_u32 s3, 4")
        e("s_cbranch_scc1 L_kx4")
        e("s_cmp_eq_u32 s3, 7")
        e("s_cbranch_scc1 L_kx6")
        e("s_waitcnt vmcnt(5)")
        lab("L_kx6")
        e("s_waitcnt vmcnt(6)")
        e("s_branch L_kxgo")
        lab("L_kx4")
        e("s_waitcnt vmcnt(4)")
        lab("L_kxgo")
        for t in range(o.kx):
            ldK(t); q.append(f"K{t}")
        nk0 = o.kx
    tch = 2 if o.touch else 0
    nk = nk0
    for t in range(4):
        wait_for(f"wq{t}")
        outstanding = [x for x in q[q.index(f"wq{t}")+1:]]
        while nk < 8 and len(outstanding) < W:
            ldK(nk); q.append(f"K{nk}"); outstanding.append("k"); nk += 1
        sel = sSEL_HI if (t & 1) else sSEL_LO
        bbuild(vBB, vXX + (t >> 1), sel, 10)
        bbuild(vBB+4, vXX + 2 + (t >> 1), sel, 11)
        c0 = "0" if t == 0 else f"v[{vQA}:{vQA+3}]"
        c1 = "0" if t == 0 else f"v[{vQA+4}:{vQA+7}]"
        e(f"v_mfma_f32_16x16x32_bf16 v[{vQA}:{vQA+3}], v[{vWQ+4*t}:{vWQ+4*t+3}], v[{vBB}:{vBB+3}], {c0}")
        e("s_nop 0")
        e(f"v_mfma_f32_16x16x32_bf16 v[{vQA+4}:{vQA+7}], v[{vWQ+4*t}:{vWQ+4*t+3}], v[{vBB+4}:{vBB+7}], {c1}")
    e(f"s_lshl_b32 s{sT1}, s3, 11")
    e(f"v_lshlrev_b32 v10, 2, v0")
    e(f"v_add_u32 v10, s{sT1}, v10")
    e("s_nop 6")
    for b in range(2):
        e(f"ds_write2st64_b32 v10, v{vQA+4*b}, v{vQA+4*b+1} offset0:{L_QP//256+4*b} offset1:{L_QP//256+4*b+1}")
        e(f"ds_write2st64_b32 v10, v{vQA+4*b+2}, v{vQA+4*b+3} offset0:{L_QP//256+4*b+2} offset1:{L_QP//256+4*b+3}")
    e("s_waitcnt lgkmcnt(0)")
    stamp(2)
    e(f"s_add_u32 s{sTAG}, s{sEP}, 0x9e3779b9")
    if o.b1: e("s_barrier")
    else:
        e(f"v_mov_b32 v14, {L_CT}")
        e("v_mov_b32 v15, 1")
        e("s_mov_b64 exec, 1")
        e("ds_add_u32 v14, v15")
        e("s_mov_b64 exec, -1")
    def issue(kind, t):
        if kind == "K": ldK(t)
        elif kind == "V": ldV(t)
        elif kind == "wo": ldWO(t)
        elif kind == "PX": pollq(vPX[t])
        else: pollq()
    REST = [("V", t) for t in range(8)] + [("wo", t) for t in range(4)]
    def stream_to_poll(q, nk, extra_names):
        seq = [("K", t) for t in range(nk, 8)] + REST[:o.pq] + [("PQ", "")]
        after = W - 2 if o.aft < 0 else o.aft
        aft = REST[o.pq:o.pq + after]
        for i in range(o.mp - 1, -1, -1):
            aft.insert(min(len(aft), (i + 1) * o.mps), ("PX", i))
        seq += aft
        Wc = W
        for kind, t in seq:
            big = [x for x in q if not x.startswith("st") and not x.startswith("PX")]
            if kind == "PQ" and o.pd >= 0:
                wait_for_q(q, f"K{7 - o.pd}")
            elif len(big) >= Wc and kind != "PX":
                wait_for_q(q, big[len(big) - Wc])
            issue(kind, t); q.append(f"{kind}{t}")
            if kind == "PQ" and o.wv: Wc = o.wv
        return min(len(REST), o.pq + after)
    def wait_for_q(q, name):
        n = len(q) - 1 - q.index(name)
        e(f"s_waitcnt vmcnt({n})")
    e(f"s_cmp_eq_u32 s3, {0 if o.b1 else o.pub}")
    e("s_cbranch_scc0 L_noqpub")
    if o.prio: e("s_setprio 3")
    cm("one wave publishes the q partial sums")
    if not o.b1:
        lab("L_cw")
        e("ds_read_b32 v15, v14")
        e("s_waitcnt lgkmcnt(0)")
        e("v_readfirstlane_b32 s63, v15")
        e("s_cmp_lt_u32 s63, 8")
        e("s_cbranch_scc1 L_cw")
    e("v_lshrrev_b32 v10, 5, v0")
    e("v_lshlrev_b32 v10, 10, v10")
    e("v_bfe_u32 v11, v0, 2, 2")
    e("v_lshl_add_u32 v10, v11, 8, v10")
    e("v_bfe_u32 v11, v0, 4, 1")
    e("v_lshl_add_u32 v10, v11, 6, v10")
    e("v_and_b32 v11, 3, v0")
    e("v_lshl_add_u32 v10, v11, 3, v10")
    base = vD
    for kw in range(8):
        e(f"ds_read_b64 v[{base+4*kw}:{base+4*kw+1}], v10 offset:{L_QP+kw*2048}")
        e(f"ds_read_b64 v[{base+4*kw+2}:{base+4*kw+3}], v10 offset:{L_QP+kw*2048+160}")
    cm("store address: Q + cl*16384 + (l>>5)*8192 + HI*1024 + LO*512 + (l&31)*16")
    e(f"s_lshl_b32 s{sT1}, s{sCL}, 14")
    e(f"s_lshl_b32 s{sT2}, s{sHI}, 10")
    e(f"s_add_u32 s{sT1}, s{sT1}, s{sT2}")
    e(f"s_lshl_b32 s{sT2}, s{sLO}, 9")
    e(f"s_add_u32 s{sT1}, s{sT1}, s{sT2}")
    e(f"s_add_u32 s{sT1}, s{sT1}, {WS_Q}")
    addr64(sA, sWS, sT1)
    e("v_lshrrev_b32 v11, 5, v0")
    e("v_lshlrev_b32 v11, 13, v11")
    e("v_and_b32 v12, 31, v0")
    e("v_lshl_add_u32 v11, v12, 4, v11")
    e(f"v_mov_b32 v14, s{sXCC}")
    e(f"v_mov_b32 v15, s{sTAG}")
    e("s_waitcnt lgkmcnt(0)")
    n = 16
    regs = [base + 2*i for i in range(16)]
    while len(regs) > 2:
        nxt = []
        for i in range(0, len(regs), 2):
            a, b2 = regs[i], regs[i+1]
            e(f"v_add_f32 v{a}, v{a}, v{b2}")
            e(f"v_add_f32 v{a+1}, v{a+1}, v{b2+1}")
            nxt.append(a)
        regs = nxt
    e(f"v_add_f32 v12, v{regs[0]}, v{regs[1]}")
    e(f"v_add_f32 v13, v{regs[0]+1}, v{regs[1]+1}")
    if o.dq:
        e(f"global_store_dwordx4 v11, v[12:15], s[{sA}:{sA+1}]")
        e(f"s_add_u32 s{sA}, s{sA}, {WS_Q2 - WS_Q}")
        e(f"s_addc_u32 s{sA+1}, s{sA+1}, 0")
    e(f"global_store_dwordx4 v11, v[12:15], s[{sA}:{sA+1}] sc1")
    if o.prio: e("s_setprio 0")
    stamp(3)
    q0 = list(q) + ["st0"] + (["st1"] if o.dq else [])
    nv_issued = stream_to_poll(q0, nk, None)
    wait_for_q(q0, "PQ")
    e("s_branch L_qchk")
    lab("L_noqpub")
    stamp(3)
    q1 = list(q)
    nv2 = stream_to_poll(q1, nk, None)
    assert nv2 == nv_issued
    wait_for_q(q1, "PQ")
    lab("L_qchk")
    q = q1[q1.index("PQ")+1:]
    more = REST[nv_issued:nv_issued + 2]
    e(f"s_mov_b32 s{sCNT}, {o.spin}")
    e(f"v_cmp_eq_u32 vcc, s{sTAG}, v{vP+3}")
    e("s_cmp_eq_u64 vcc, exec")
    e("s_cbranch_scc1 L_qok")
    for i in range(o.mp):
        wait_for_q(q, f"PX{i}")
        e(f"v_cmp_eq_u32 vcc, s{sTAG}, v{vPX[i]+3}")
        e("s_cmp_eq_u64 vcc, exec")
        e(f"s_cbranch_scc1 L_qx{i}")
    pollqm()
    for kd, t in more: issue(kd, t)
    e(f"s_waitcnt vmcnt({len(more)})")
    if o.dq:
        e(f"v_cmp_eq_u32 vcc, s{sTAG}, v{vP+3}")
        e("s_cmp_eq_u64 vcc, exec")
        e("s_cbranch_scc1 L_qafter")
        pollqm()
        e("s_waitcnt vmcnt(0)")
        e(f"s_add_u32 s{sQA}, s{sQA}, {WS_Q2 - WS_Q}")
        e(f"s_addc_u32 s{sQA+1}, s{sQA+1}, 0")
    lab("L_qre")
    e(f"v_cmp_eq_u32 vcc, s{sTAG}, v{vP+3}")
    e("s_cmp_eq_u64 vcc, exec")
    e("s_cbranch_scc1 L_qafter")
    e(f"s_sub_u32 s{sCNT}, s{sCNT}, 1")
    e(f"s_cmp_eq_u32 s{sCNT}, 0")
    e("s_cbranch_scc1 L_qafter")
    pollqm()
    e("s_waitcnt vmcnt(0)")
    e("s_branch L_qre")
    for i in range(o.mp):
        lab(f"L_qx{i}")
        for r in range(4): e(f"v_mov_b32 v{vP+r}, v{vPX[i]+r}")
        if i < o.mp - 1: e("s_branch L_qok")
    lab("L_qok")
    for kd, t in more: issue(kd, t)
    lab("L_qafter")
    for kd, t in more: q.append(f"{kd}{t}")
    nr = nv_issued + len(more)
    stamp(4)
    stampcnt(11)
    cm("combine the two partial sums, round to bf16, share through LDS")
    e(f"v_cmp_eq_u32 vcc, s{sXCC}, v{vP+2}")
    e(f"v_mov_b32 v10, v{vP}")
    e(f"v_mov_b32 v11, v{vP+1}")
    e("s_cmp_eq_u64 vcc, exec")
    e(f"s_cselect_b32 s{sT2}, 1, 0")
    e(f"v_permlane32_swap_b32 v{vP}, v10")
    e(f"v_permlane32_swap_b32 v{vP+1}, v11")
    e(f"v_mov_b32 v13, s{sT2}")
    e(f"v_add_f32 v{vP}, v{vP}, v10")
    e(f"v_add_f32 v{vP+1}, v{vP+1}, v11")
    e(f"v_and_b32 v12, 31, v0")
    e(f"v_cvt_pk_bf16_f32 v11, v{vP}, v{vP+1}")
    e(f"s_lshl_b32 s{sT1}, s3, 7")
    e(f"v_lshlrev_b32 v12, 2, v12")
    e(f"v_add_u32 v12, s{sT1}, v12")
    e(f"ds_write_b32 v12, v11 offset:{L_Q}")
    e(f"s_lshl_b32 s{sT1}, s3, 2")
    e(f"v_mov_b32 v14, s{sT1}")
    e(f"ds_write_b32 v14, v13 offset:{L_FL}")
    e("s_waitcnt lgkmcnt(0)")
    e("s_barrier")
    if o.st2: stamp(1)
    e(f"v_add_u32 v10, {L_Q}, v{vOK}")
    e(f"ds_read_b128 v[{vQ}:{vQ+3}], v10")
    e(f"v_mov_b32 v10, 0")
    e(f"ds_read_b128 v[{vS}:{vS+3}], v10 offset:{L_FL}")
    e(f"ds_read_b128 v[{vS+4}:{vS+7}], v10 offset:{L_FL+16}")
    if o.nw:
        for _ in range(o.nw):
            if nr < len(REST):
                issue(*REST[nr]); q.append(f"{REST[nr][0]}{REST[nr][1]}"); nr += 1
    elif nr < len(REST):
        if len(q) >= W: wait_for_q(q, q[len(q) - W])
        issue(*REST[nr]); q.append(f"{REST[nr][0]}{REST[nr][1]}"); nr += 1
    e("s_waitcnt lgkmcnt(0)")
    def dreg(G, a): return vD + G*16 + a*4
    for G in range(2):
        for a in range(4):
            t = 4*G + a; d = dreg(G, a)
            e(f"v_mfma_f32_16x16x32_bf16 v[{d}:{d+3}], v[{vK+4*t}:{vK+4*t+3}], v[{vQ}:{vQ+3}], 0")
    cm("colocation flag (all 16 workgroups of the cluster on this XCD)")
    for i in range(0, 8, 2): e(f"v_and_b32 v{vS+i}, v{vS+i}, v{vS+i+1}")
    e(f"v_and_b32 v{vS}, v{vS}, v{vS+2}")
    e(f"v_and_b32 v{vS+4}, v{vS+4}, v{vS+6}")
    e(f"v_and_b32 v{vS}, v{vS}, v{vS+4}")
    e("s_nop 1")
    e(f"v_readfirstlane_b32 s{sCOLO}, v{vS}")
    e("s_nop 4")
    for G in range(2):
        for step in range(4):
            for a in range(4):
                d = dreg(G, a) + step; sdst = vS + 4*G + a
                qp = f"quad_perm:[{step},{step},{step},{step}] row_mask:0xf bank_mask:0xf"
                if step == 0: e(f"v_mov_b32_dpp v{sdst}, v{d} {qp}")
                else: e(f"v_add_f32_dpp v{sdst}, v{d}, v{sdst} {qp}")
    for G in range(2):
        e(f"v_cndmask_b32 v{vR+G}, v{vS+4*G}, v{vS+4*G+1}, s[{sM1}:{sM1+1}]")
    for G in range(2):
        e(f"v_cndmask_b32 v{vR+G}, v{vR+G}, v{vS+4*G+2}, s[{sM2}:{sM2+1}]")
    for G in range(2):
        e(f"v_cndmask_b32 v{vR+G}, v{vR+G}, v{vS+4*G+3}, s[{sM3}:{sM3+1}]")
    e(f"v_max_f32 v10, v{vR}, v{vR+1}")
    quadrow_reduce(10, "v_max_f32", 11)
    cm("per-wave max -> LDS [h][w]")
    e("v_bfe_u32 v12, v0, 2, 2")
    e("v_lshlrev_b32 v12, 5, v12")
    e(f"s_lshl_b32 s{sT1}, s3, 2")
    e(f"v_add_u32 v13, s{sT1}, v12")
    e("s_mov_b64 exec, 0x1111")
    e(f"ds_write_b32 v13, v10 offset:{L_M}")
    e("s_mov_b64 exec, -1")
    for _ in range(o.nw):
        if nr < len(REST):
            issue(*REST[nr]); q.append(f"{REST[nr][0]}{REST[nr][1]}"); nr += 1
    if o.nb3:
        e(f"v_mul_f32 v14, s{sC1}, v10")
        for G in range(2):
            e(f"v_fma_f32 v{vR+G}, v{vR+G}, s{sC1}, -v14")
        for G in range(2):
            e(f"v_exp_f32 v{vR+G}, v{vR+G}")
        e("s_nop 0")
    else:
        e("s_waitcnt lgkmcnt(0)")
        if o.st2: stamp(8)
        e("s_barrier")
        e(f"ds_read_b128 v[{vS}:{vS+3}], v12 offset:{L_M}")
        e(f"ds_read_b128 v[{vS+4}:{vS+7}], v12 offset:{L_M+16}")
        e(f"s_and_b32 s{sT1}, s3, 3")
        e(f"s_lshl_b32 s{sT1}, s{sT1}, 5")
        e(f"v_mov_b32 v14, s{sT1}")
        e(f"ds_read_b128 v[{vD}:{vD+3}], v14 offset:{L_M}")
        e(f"ds_read_b128 v[{vD+4}:{vD+7}], v14 offset:{L_M+16}")
        e("s_waitcnt lgkmcnt(2)")
        e(f"v_max3_f32 v10, v{vS}, v{vS+1}, v{vS+2}")
        e(f"v_max3_f32 v11, v{vS+3}, v{vS+4}, v{vS+5}")
        e(f"v_max3_f32 v10, v10, v{vS+6}, v{vS+7}")
        e(f"v_max_f32 v10, v10, v11")
        e(f"v_mul_f32 v10, s{sC1}, v10")
        for G in range(2):
            e(f"v_fma_f32 v{vR+G}, v{vR+G}, s{sC1}, -v10")
        for G in range(2):
            e(f"v_exp_f32 v{vR+G}, v{vR+G}")
        e("s_waitcnt lgkmcnt(0)")
        e(f"v_max3_f32 v14, v{vD}, v{vD+1}, v{vD+2}")
        e(f"v_max3_f32 v15, v{vD+3}, v{vD+4}, v{vD+5}")
        e(f"v_max3_f32 v14, v14, v{vD+6}, v{vD+7}")
        e(f"v_max_f32 v14, v14, v15")
        e(f"v_mul_f32 v{vMI}, s{sC1}, v14")
    e(f"v_add_f32 v10, v{vR}, v{vR+1}")
    for G in range(2):
        e(f"v_cvt_pk_bf16_f32 v{vR+G}, v{vR+G}, v{vR+G}")
    e("s_nop 0")
    for t in range(8):
        G, a = t >> 2, t & 3
        qp = f"quad_perm:[{a},{a},{a},{a}] row_mask:0xf bank_mask:0xf"
        e(f"v_and_b32_dpp v{vX+2*t}, v{vR+G}, v{vM0} {qp}")
        e(f"v_and_b32_dpp v{vX+2*t+1}, v{vR+G}, v{vM1} {qp}")
    stamp(5)
    cm("PV with the wo loads folded into the window")
    def pv(t):
        for u in range(2):
            c = "0" if t == 0 else f"v[{vACC+4*u}:{vACC+4*u+3}]"
            e(f"v_mfma_f32_16x16x16_bf16 v[{vACC+4*u}:{vACC+4*u+3}], v[{vV+4*t+2*u}:{vV+4*t+2*u+1}], v[{vX+2*t}:{vX+2*t+1}], {c}")
    for t in range(8):
        while ("V", t) in REST[nr:]:
            issue(*REST[nr]); q.append(f"{REST[nr][0]}{REST[nr][1]}"); nr += 1
        if f"V{t}" in q:
            wait_for_q(q, f"V{t}")
            q = q[q.index(f"V{t}")+1:]
        pv(t)
        while nr < len(REST) and len(q) < (o.wv or W):
            issue(*REST[nr]); q.append(f"{REST[nr][0]}{REST[nr][1]}"); nr += 1
        if t == 1:
            cm("row-sum of P (off the critical path)")
            quadrow_reduce(10, "v_add_f32", 11)
            e("s_mov_b64 exec, 0x1111")
            e(f"ds_write_b32 v13, v10 offset:{L_L}")
            e("s_mov_b64 exec, -1")
            cm("o partial LDS address: w*OPW + h*OPH + rg*128 + i*8")
            e(f"v_bfe_u32 v11, v0, 2, 2")
            e(f"v_mul_u32_u24 v{vOA}, {OPH}, v11")
            e(f"v_lshrrev_b32 v11, 4, v0")
            e(f"v_lshl_add_u32 v{vOA}, v11, 7, v{vOA}")
            e(f"v_and_b32 v11, 3, v0")
            e(f"v_lshl_add_u32 v{vOA}, v11, 3, v{vOA}")
            e(f"s_mul_i32 s{sT1}, s3, {OPW}")
            e(f"s_add_u32 s{sT1}, s{sT1}, {L_OP}")
            e(f"v_add_u32 v{vOA}, s{sT1}, v{vOA}")
        if t == 3 and o.pre:
            cm("final gather and output addresses")
            e(f"s_lshl_b32 s{sT1}, s2, 12")
            e(f"s_add_u32 s{sT1}, s{sT1}, {WS_F}")
            addr64(sWQ, sWS, sT1)
            outaddr(sX)
        if t == 2:
            cm("publisher read address, store address, poll address")
            e(f"s_and_b32 s{sT2}, s3, 3")
            e(f"s_mul_i32 s{sT1}, s{sT2}, {OPH}")
            e(f"s_add_u32 s{sT1}, s{sT1}, {L_OP}")
            e(f"v_lshlrev_b32 v{vPA}, 3, v0")
            e(f"v_add_u32 v{vPA}, s{sT1}, v{vPA}")
            e(f"s_lshl_b32 s{sT1}, s{sCL}, 4")
            e(f"s_add_u32 s{sT1}, s{sT1}, s6")
            e(f"s_lshl_b32 s{sT1}, s{sT1}, 12")
            e(f"s_lshl_b32 s{sT2}, s{sT2}, 10")
            e(f"s_add_u32 s{sT1}, s{sT1}, s{sT2}")
            e(f"s_add_u32 s{sT1}, s{sT1}, {WS_O}")
            addr64(sA, sWS, sT1)
            e(f"s_lshl_b32 s{sT1}, s{sCL}, 16")
            e(f"s_lshl_b32 s{sT2}, s{sHI}, 9")
            e(f"s_add_u32 s{sT1}, s{sT1}, s{sT2}")
            e(f"s_lshl_b32 s{sT2}, s3, 6")
            e(f"s_add_u32 s{sT1}, s{sT1}, s{sT2}")
            e(f"s_add_u32 s{sT1}, s{sT1}, {WS_O}")
            addr64(sA2, sWS, sT1)
            e("v_lshrrev_b32 v11, 2, v0")
            e("v_lshlrev_b32 v11, 12, v11")
            e("v_and_b32 v12, 3, v0")
            e(f"v_lshl_add_u32 v{vOX}, v12, 4, v11")
    while nr < len(REST):
        issue(*REST[nr]); q.append(f"{REST[nr][0]}{REST[nr][1]}"); nr += 1
    stamp(6)
    e("s_nop 7")
    for r in range(4):
        e(f"ds_write2_b32 v{vOA}, v{vACC+r}, v{vACC+4+r} offset0:{r*8} offset1:{r*8+1}")
    e("s_waitcnt lgkmcnt(0)")
    e("s_barrier")
    e("s_cmp_lt_u32 s3, 4")
    e("s_cbranch_scc0 L_noopub")
    if o.nb3:
        vF = vD + 24
        e(f"s_lshl_b32 s{sT1}, s3, 5")
        e(f"v_mov_b32 v14, s{sT1}")
        e(f"ds_read_b128 v[{vF}:{vF+3}], v14 offset:{L_M}")
        e(f"ds_read_b128 v[{vF+4}:{vF+7}], v14 offset:{L_M+16}")
        e(f"ds_read_b128 v[{vS}:{vS+3}], v14 offset:{L_L}")
        e(f"ds_read_b128 v[{vS+4}:{vS+7}], v14 offset:{L_L+16}")
        for wv in range(8):
            e(f"ds_read_b64 v[{vD+2*wv}:{vD+2*wv+1}], v{vPA} offset:{wv*OPW}")
        e(f"v_mov_b32 v15, s{sTAG}")
        e("s_waitcnt lgkmcnt(10)")
        e(f"v_max3_f32 v10, v{vF}, v{vF+1}, v{vF+2}")
        e(f"v_max3_f32 v11, v{vF+3}, v{vF+4}, v{vF+5}")
        e(f"v_max3_f32 v10, v10, v{vF+6}, v{vF+7}")
        e(f"v_max_f32 v10, v10, v11")
        e(f"v_mul_f32 v{vMI}, s{sC1}, v10")
        for wv in range(8): e(f"v_fma_f32 v{vF+wv}, v{vF+wv}, s{sC1}, -v{vMI}")
        for wv in range(8): e(f"v_exp_f32 v{vF+wv}, v{vF+wv}")
        e("s_waitcnt lgkmcnt(8)")
        e(f"v_mul_f32 v{vS}, v{vS}, v{vF}")
        e(f"v_mul_f32 v{vS+1}, v{vS+1}, v{vF+1}")
        for wv in range(2, 8): e(f"v_fma_f32 v{vS+(wv&1)}, v{vS+wv}, v{vF+wv}, v{vS+(wv&1)}")
        e("s_waitcnt lgkmcnt(0)")
        e(f"v_mul_f32 v12, v{vD}, v{vF}")
        e(f"v_mul_f32 v13, v{vD+1}, v{vF}")
        e(f"v_mul_f32 v10, v{vD+2}, v{vF+1}")
        e(f"v_mul_f32 v11, v{vD+3}, v{vF+1}")
        for wv in range(2, 8):
            a, b2 = (12, 13) if wv % 2 == 0 else (10, 11)
            e(f"v_fma_f32 v{a}, v{vD+2*wv}, v{vF+wv}, v{a}")
            e(f"v_fma_f32 v{b2}, v{vD+2*wv+1}, v{vF+wv}, v{b2}")
        e(f"v_add_f32 v{vS}, v{vS}, v{vS+1}")
        e("v_add_f32 v12, v12, v10")
        e("v_add_f32 v13, v13, v11")
    else:
        for wv in range(8):
            e(f"ds_read_b64 v[{vD+2*wv}:{vD+2*wv+1}], v{vPA} offset:{wv*OPW}")
        e(f"s_lshl_b32 s{sT1}, s3, 5")
        e(f"v_mov_b32 v14, s{sT1}")
        e(f"ds_read_b128 v[{vS}:{vS+3}], v14 offset:{L_L}")
        e(f"ds_read_b128 v[{vS+4}:{vS+7}], v14 offset:{L_L+16}")
        e(f"v_mov_b32 v15, s{sTAG}")
        e("s_waitcnt lgkmcnt(2)")
        regs = [vD + 2*i for i in range(8)]
        while len(regs) > 2:
            nxt = []
            for i in range(0, len(regs), 2):
                a, b2 = regs[i], regs[i+1]
                e(f"v_add_f32 v{a}, v{a}, v{b2}")
                e(f"v_add_f32 v{a+1}, v{a+1}, v{b2+1}")
                nxt.append(a)
            regs = nxt
        e(f"v_add_f32 v12, v{regs[0]}, v{regs[1]}")
        e(f"v_add_f32 v13, v{regs[0]+1}, v{regs[1]+1}")
        e("s_waitcnt lgkmcnt(0)")
        for i in range(0, 8, 2): e(f"v_add_f32 v{vS+i}, v{vS+i}, v{vS+i+1}")
        e(f"v_add_f32 v{vS}, v{vS}, v{vS+2}")
        e(f"v_add_f32 v{vS+4}, v{vS+4}, v{vS+6}")
        e(f"v_add_f32 v{vS}, v{vS}, v{vS+4}")
    e(f"v_cndmask_b32 v14, v{vMI}, v{vS}, s[{sODD}:{sODD+1}]")
    if o.colo:
        e(f"s_cmp_eq_u32 s{sCOLO}, 1")
        e("s_cbranch_scc1 L_oplain")
    e(f"global_store_dwordx4 v{vOV}, v[12:15], s[{sA}:{sA+1}] sc1")
    if o.colo:
        e("s_branch L_noopub")
        lab("L_oplain")
        e(f"global_store_dwordx4 v{vOV}, v[12:15], s[{sA}:{sA+1}]")
    lab("L_noopub")
    stamp(7)
    if o.b5: e("s_barrier")
    e(f"s_mov_b32 s{sCNT}, {o.spin}")
    lab("L_pollo")
    e(f"global_load_dwordx4 v[{vP}:{vP+3}], v{vOX}, s[{sA2}:{sA2+1}] sc1")
    e("s_waitcnt vmcnt(0)")
    if o.mk >= 2:
        e("s_mov_b64 exec, -1")
        e(f"v_cmp_ne_u32 vcc, s{sTAG}, v{vP+3}")
        e("s_cmp_eq_u64 vcc, 0")
        e("s_cbranch_scc1 L_goto")
        e(f"s_sub_u32 s{sCNT}, s{sCNT}, 1")
        e(f"s_cmp_eq_u32 s{sCNT}, 0")
        e("s_cbranch_scc1 L_goto")
        e("s_mov_b64 exec, vcc")
        e("s_branch L_pollo")
    else:
        e(f"v_cmp_eq_u32 vcc, s{sTAG}, v{vP+3}")
        e("s_cmp_eq_u64 vcc, exec")
        e("s_cbranch_scc1 L_goto")
        e(f"s_sub_u32 s{sCNT}, s{sCNT}, 1")
        e(f"s_cmp_lg_u32 s{sCNT}, 0")
        e("s_cbranch_scc1 L_pollo")
    lab("L_goto")
    stamp(9)
    stampcnt(12)
    dp = lambda pat: f"{pat} row_mask:0xf bank_mask:0xf"
    e(f"v_mov_b32_dpp v10, v{vP+2} {dp('quad_perm:[0,0,2,2]')}")
    e(f"v_mov_b32_dpp v11, v{vP+2} {dp('quad_perm:[1,1,3,3]')}")
    e("s_nop 0")
    e(f"v_max_f32_dpp v12, v10, v10 {dp('row_ror:4')}")
    e("s_nop 1")
    e(f"v_max_f32_dpp v12, v12, v12 {dp('row_ror:8')}")
    e("s_nop 0")
    e(f"v_mov_b32 v13, v12")
    e("s_nop 1")
    e(f"v_permlane16_swap_b32 v12, v13")
    e("s_nop 1")
    e(f"v_max_f32 v12, v12, v13")
    e(f"v_sub_f32 v12, v10, v12")
    e(f"v_exp_f32 v12, v12")
    e("s_nop 0")
    rr = [11, vP, vP+1]
    for r in rr: e(f"v_mul_f32 v{r}, v{r}, v12")
    e("s_nop 0")
    for pat in ("row_ror:4", "row_ror:8"):
        for r in rr: e(f"v_add_f32_dpp v{r}, v{r}, v{r} {dp(pat)}")
    for i, r in enumerate(rr): e(f"v_mov_b32 v{13+i}, v{r}")
    for i, r in enumerate(rr): e(f"v_permlane16_swap_b32 v{r}, v{13+i}")
    e("s_nop 0")
    for i, r in enumerate(rr): e(f"v_add_f32 v{r}, v{r}, v{13+i}")
    e("v_rcp_f32 v11, v11")
    e("s_nop 0")
    e(f"v_mul_f32 v{vP}, v{vP}, v11")
    e(f"v_mul_f32 v{vP+1}, v{vP+1}, v11")
    e(f"v_cvt_pk_bf16_f32 v10, v{vP}, v{vP+1}")
    e(f"ds_bpermute_b32 v10, v{vBP}, v10")
    e(f"s_lshl_b32 s{sT1}, s3, 11")
    e(f"v_lshlrev_b32 v12, 2, v0")
    e(f"v_add_u32 v12, s{sT1}, v12")
    e("s_waitcnt lgkmcnt(0)")
    bbuild(vBB, 10, sSEL_LO, 11)
    bbuild(vBB+4, 10, sSEL_HI, 13)
    vD0 = vQA
    e("s_nop 0")
    for rg in range(2):
        for hf in range(2):
            i = rg*2+hf
            c = "0" if rg == 0 else f"v[{vD0+4*hf}:{vD0+4*hf+3}]"
            e(f"v_mfma_f32_16x16x32_bf16 v[{vD0+4*hf}:{vD0+4*hf+3}], v[{vWO+4*i}:{vWO+4*i+3}], v[{vBB+4*rg}:{vBB+4*rg+3}], {c}")
    cm("F publish addresses (waves 0..3 use them)")
    e(f"s_lshl_b32 s{sT1}, s3, 9")
    e("v_lshlrev_b32 v10, 3, v0")
    e(f"v_add_u32 v10, s{sT1}, v10")
    e(f"s_lshl_b32 s{sT1}, s4, 19")
    e(f"s_lshl_b32 s{sT2}, s{sLO}, 18")
    e(f"s_add_u32 s{sT1}, s{sT1}, s{sT2}")
    e(f"s_lshl_b32 s{sT2}, s3, 16")
    e(f"s_add_u32 s{sT1}, s{sT1}, s{sT2}")
    e(f"s_lshl_b32 s{sT2}, s5, 9")
    e(f"s_add_u32 s{sT1}, s{sT1}, s{sT2}")
    e(f"s_lshl_b32 s{sT2}, s{sHI}, 6")
    e(f"s_add_u32 s{sT1}, s{sT1}, s{sT2}")
    e(f"s_add_u32 s{sT1}, s{sT1}, {WS_F}")
    addr64(sA, sWS, sT1)
    e("v_lshrrev_b32 v11, 2, v0")
    e("v_lshlrev_b32 v11, 12, v11")
    e("v_and_b32 v13, 3, v0")
    e("v_lshl_add_u32 v11, v13, 4, v11")
    for hf in range(2):
        e(f"ds_write2st64_b32 v12, v{vD0+4*hf}, v{vD0+4*hf+1} offset0:{L_FP//256+4*hf} offset1:{L_FP//256+4*hf+1}")
        e(f"ds_write2st64_b32 v12, v{vD0+4*hf+2}, v{vD0+4*hf+3} offset0:{L_FP//256+4*hf+2} offset1:{L_FP//256+4*hf+3}")
    e("s_waitcnt lgkmcnt(0)")
    e("s_barrier")
    e("s_cmp_lt_u32 s3, 4")
    e("s_cbranch_scc0 L_fin")
    for wv in range(8):
        e(f"ds_read_b64 v[{vD+2*wv}:{vD+2*wv+1}], v10 offset:{L_FP+wv*2048}")
    e(f"v_mov_b32 v13, s{sTAG}")
    e(f"v_mov_b32 v15, s{sTAG}")
    e("s_waitcnt lgkmcnt(0)")
    regs = [vD + 2*i for i in range(8)]
    while len(regs) > 2:
        nxt = []
        for i in range(0, len(regs), 2):
            a, b2 = regs[i], regs[i+1]
            e(f"v_add_f32 v{a}, v{a}, v{b2}")
            e(f"v_add_f32 v{a+1}, v{a+1}, v{b2+1}")
            nxt.append(a)
        regs = nxt
    e(f"v_add_f32 v12, v{regs[0]}, v{regs[1]}")
    e(f"v_add_f32 v14, v{regs[0]+1}, v{regs[1]+1}")
    e(f"global_store_dwordx4 v11, v[12:15], s[{sA}:{sA+1}] sc1")
    stamp(14)
    e("s_cmp_eq_u32 s3, 0")
    e("s_cbranch_scc0 L_fin")
    cm("final gather (wave 0)")
    sFA = sWQ if o.pre else sA
    if not o.pre:
        e(f"s_lshl_b32 s{sT1}, s2, 12")
        e(f"s_add_u32 s{sT1}, s{sT1}, {WS_F}")
        addr64(sA, sWS, sT1)
    e(f"s_mov_b32 s{sCNT}, {o.spin}")
    if o.fack: e("s_waitcnt vmcnt(0)")
    if o.mk:
        assert o.pre
        MK = [40, 48, 50, 52]
        for m in MK: e(f"s_mov_b64 s[{m}:{m+1}], -1")
        lab("L_pollf")
        for qq in range(4):
            e(f"s_mov_b64 exec, s[{MK[qq]}:{MK[qq]+1}]")
            e(f"s_cbranch_execz L_fs{qq}")
            e(f"global_load_dwordx4 v[{16+4*qq}:{16+4*qq+3}], v{vOV}, s[{sFA}:{sFA+1}] offset:{qq*1024} sc1")
            lab(f"L_fs{qq}")
        e("s_mov_b64 exec, -1")
        e("s_waitcnt vmcnt(0)")
        for qq in range(4):
            e(f"v_cmp_ne_u32 vcc, s{sTAG}, v{17+4*qq}")
            e(f"v_cmp_ne_u32 s[{MK[qq]}:{MK[qq]+1}], s{sTAG}, v{19+4*qq}")
            e("s_nop 0")
            e(f"s_or_b64 s[{MK[qq]}:{MK[qq]+1}], s[{MK[qq]}:{MK[qq]+1}], vcc")
        e(f"s_or_b64 s[{sC}:{sC+1}], s[40:41], s[48:49]")
        e(f"s_or_b64 vcc, s[50:51], s[52:53]")
        e(f"s_or_b64 vcc, vcc, s[{sC}:{sC+1}]")
        e("s_cmp_eq_u64 vcc, 0")
        e("s_cbranch_scc1 L_gotf")
    else:
        lab("L_pollf")
        for qq in range(4):
            e(f"global_load_dwordx4 v[{16+4*qq}:{16+4*qq+3}], v{vOV}, s[{sFA}:{sFA+1}] offset:{qq*1024} sc1")
        e("s_waitcnt vmcnt(0)")
        regs = [17, 19, 21, 23, 25, 27, 29, 31]
        e(f"v_cmp_eq_u32 vcc, s{sTAG}, v{regs[0]}")
        for r in regs[1:]:
            e(f"v_cmp_eq_u32 s[{sC}:{sC+1}], s{sTAG}, v{r}")
            e(f"s_and_b64 vcc, vcc, s[{sC}:{sC+1}]")
        e("s_cmp_eq_u64 vcc, exec")
        e("s_cbranch_scc1 L_gotf")
    e(f"s_sub_u32 s{sCNT}, s{sCNT}, 1")
    e(f"s_cmp_lg_u32 s{sCNT}, 0")
    e("s_cbranch_scc1 L_pollf")
    lab("L_gotf")
    stamp(15)
    stampcnt(13)
    e("v_add_f32 v16, v16, v20")
    e("v_add_f32 v18, v18, v22")
    e("v_add_f32 v24, v24, v28")
    e("v_add_f32 v26, v26, v30")
    e("v_add_f32 v16, v16, v24")
    e("v_add_f32 v18, v18, v26")
    e("s_nop 1")
    for pat in ["row_ror:4", "row_ror:8"]:
        e(f"v_add_f32_dpp v16, v16, v16 {pat} row_mask:0xf bank_mask:0xf")
        e(f"v_add_f32_dpp v18, v18, v18 {pat} row_mask:0xf bank_mask:0xf")
        e("s_nop 1")
    for sw in ["v_permlane16_swap_b32", "v_permlane32_swap_b32"]:
        e("v_mov_b32 v20, v16")
        e("v_mov_b32 v22, v18")
        e("s_nop 1")
        e(f"{sw} v16, v20")
        e(f"{sw} v18, v22")
        e("s_nop 1")
        e("v_add_f32 v16, v16, v20")
        e("v_add_f32 v18, v18, v22")
    e("v_cvt_pk_bf16_f32 v16, v16, v18")
    if not o.pre: outaddr(sA)
    sOA = sX if o.pre else sA
    e("v_lshlrev_b32 v11, 2, v0")
    e("s_mov_b64 exec, 0xf")
    e(f"global_store_dword v11, v16, s[{sOA}:{sOA+1}]")
    e(f"s_and_b32 s{sT1}, s2, 127")
    e(f"s_cmp_eq_u32 s{sT1}, 0")
    e("s_cbranch_scc0 L_fin")
    e(f"s_lshl_b32 s{sT1}, s4, 8")
    e(f"v_mov_b32 v11, s{sT1}")
    e(f"v_mov_b32 v12, s{sTAG}")
    e("s_mov_b64 exec, 1")
    e(f"global_store_dword v11, v12, s[{sWS}:{sWS+1}]")
    lab("L_fin")
    if o.prof:
        stamp(10)
        e("s_waitcnt lgkmcnt(0)")
        e("s_mov_b64 exec, 1")
        e(f"s_lshl_b32 s{sT1}, s2, 3")
        e(f"s_add_u32 s{sT1}, s{sT1}, s3")
        e(f"s_lshl_b32 s{sT1}, s{sT1}, 7")
        e(f"s_add_u32 s{sT1}, s{sT1}, {WS_PROF}")
        e(f"v_mov_b32 v11, s{sT1}")
        for i in range(NST):
            e(f"v_mov_b32 v12, s{sST+2*i}")
            e(f"global_store_dword v11, v12, s[{sWS}:{sWS+1}] offset:{4*i}")
            e("s_nop 1")
    lab("L_end")
    e("s_endpgm")
    L.append('.section .rodata,"a"')
    L.append(".p2align 6")
    L.append(f".amdhsa_kernel {NAME}_kernel")
    L.append(f"  .amdhsa_next_free_vgpr {NV}")
    L.append("  .amdhsa_next_free_sgpr 100")
    L.append(f"  .amdhsa_accum_offset {NV}")
    L.append("  .amdhsa_group_segment_fixed_size 0")
    L.append("  .amdhsa_kernarg_size 104")
    L.append("  .amdhsa_user_sgpr_count 2")
    L.append("  .amdhsa_user_sgpr_kernarg_segment_ptr 1")
    L.append("  .amdhsa_system_sgpr_workgroup_id_x 1")
    L.append(".end_amdhsa_kernel")
    return "\n".join(L) + "\n"

if __name__ == "__main__":
    o = Opt()
    out = sys.argv[1]
    for a in sys.argv[2:]:
        k, v = a.split("=")
        assert hasattr(o, k), k
        setattr(o, k, int(v))
    open(out, "w").write(gen(o))
```
